```python
import torch

def _softmax(x, axis=-1):
    return torch.softmax(x, dim=axis)

def _gelu(x):
    return torch.nn.functional.gelu(x, approximate='tanh')

def _silu(x):
    return torch.nn.functional.silu(x)

def _sigmoid(x):
    return torch.sigmoid(x)

def _layernorm(x, axis=-1, eps=1e-05):
    m = x.mean(dim=axis, keepdim=True)
    v = x.var(dim=axis, keepdim=True, unbiased=False)
    return (x - m) / torch.sqrt(v + eps)

def _scatter_add(tgt, idx, src, axis=0):
    return tgt.clone().index_add_(axis, idx, src)

def _segment_sum(src, seg, n):
    out = torch.zeros((n,) + src.shape[1:], dtype=src.dtype)
    return out.index_add_(0, seg, src)

def _pad(x, pw):
    flat = tuple((v for pair in reversed(pw) for v in pair))
    return torch.nn.functional.pad(x, flat)
kernel_name = 'concat_heads__compressed_kv_cla__memory_aug_recurrent_mem_tr__prompt'

def setup_inputs():

    _w = lambda a: (lambda t: t.to(torch.bfloat16) if t.is_floating_point() else t)(torch.as_tensor(a))

    def _A_setup():
        B, H, Sq, Sk, D, M = (1, 32, 2048, 2048, 128, 576)
        Dc = 4 * D
        return {'x': _w((lambda *s: torch.randn(*s, dtype=torch.bfloat16) * 1.6)(B, Sq, M)), 'c_kv': _w((lambda *s: torch.randn(*s, dtype=torch.bfloat16) * 0.2)(B, Sk, Dc)), 'w_q': _w((lambda *s: torch.randn(*s, dtype=torch.bfloat16) * 3.2)(M, H, D) * M ** (-0.5)), 'w_uk': _w((lambda *s: torch.randn(*s, dtype=torch.bfloat16) * 3.2)(Dc, H, D) * Dc ** (-0.5)), 'w_uv': _w((lambda *s: torch.randn(*s, dtype=torch.bfloat16) * 0.2)(Dc, H, D) * Dc ** (-0.5)), 'w_o': _w((lambda *s: torch.randn(*s, dtype=torch.bfloat16) * 0.2)(H, D, M) * (H * D) ** (-0.5))}
    _A_in = _A_setup()

    def _B_setup():
        B, S, Dm = (1, 2048, 576)
        H, Dh = (32, 128)
        M, seg = (8, 32)
        seg = min(seg, S)
        S = S // seg * seg
        return {'x': _w((lambda *s: torch.randn(*s, dtype=torch.bfloat16) * 0.05)(B, S, Dm)), 'mem0': _w((lambda *s: torch.randn(*s, dtype=torch.bfloat16) * 0.4)(B, M, Dm)), 'Wq': _w((lambda *s: torch.randn(*s, dtype=torch.bfloat16) * 6.4)(Dm, H, Dh) * Dm ** (-0.5)), 'Wk': _w((lambda *s: torch.randn(*s, dtype=torch.bfloat16) * 6.4)(Dm, H, Dh) * Dm ** (-0.5)), 'Wv': _w((lambda *s: torch.randn(*s, dtype=torch.bfloat16) * 0.4)(Dm, H, Dh) * Dm ** (-0.5)), 'Wo': _w((lambda *s: torch.randn(*s, dtype=torch.bfloat16) * 0.4)(H, Dh, Dm) * (H * Dh) ** (-0.5)), 'seg_len': seg}
    _B_in = _B_setup()
    return {'A_x': _A_in['x'], 'A_c_kv': _A_in['c_kv'], 'A_w_q': _A_in['w_q'], 'A_w_uk': _A_in['w_uk'], 'A_w_uv': _A_in['w_uv'], 'A_w_o': _A_in['w_o'], 'B_x': _B_in['x'], 'B_mem0': _B_in['mem0'], 'B_Wq': _B_in['Wq'], 'B_Wk': _B_in['Wk'], 'B_Wv': _B_in['Wv'], 'B_Wo': _B_in['Wo'], 'B_seg_len': _B_in['seg_len']}

def reference(A_x, A_c_kv, A_w_q, A_w_uk, A_w_uv, A_w_o, B_x, B_mem0, B_Wq, B_Wk, B_Wv, B_Wo, B_seg_len):

    def _A_ref(x, c_kv, w_q, w_uk, w_uv, w_o):
        B, Sq, M = (x.shape[0], x.shape[1], x.shape[2])
        Sk = c_kv.shape[1]
        H, D = (w_q.shape[1], w_q.shape[2])
        q = torch.einsum('bqm,mhd->bhqd', x, w_q)
        k = torch.einsum('bkc,chd->bhkd', c_kv, w_uk)
        v = torch.einsum('bkc,chd->bhkd', c_kv, w_uv)
        scores = torch.einsum('bhqd,bhkd->bhqk', q, k) * D ** (-0.5)
        off = Sk - Sq
        qi = torch.arange(Sq)[:, None]
        kj = torch.arange(Sk)[None, :]
        cmask = kj <= qi + off
        scores = torch.where(cmask[None, None], scores, -1000000000.0)
        p = _softmax(scores, axis=-1)
        ctx = torch.einsum('bhqk,bhkd->bhqd', p, v)
        return torch.einsum('bhqd,hdm->bqm', ctx, w_o)

    def _B_ref(x, mem0, Wq, Wk, Wv, Wo, seg_len):
        B, S, Dm = x.shape
        H, Dh = (Wq.shape[1], Wq.shape[2])
        M = mem0.shape[1]
        scale = Dh ** (-0.5)
        n_seg = S // seg_len
        L = M + seg_len
        idx = torch.arange(L)
        mask = (idx[:, None] < M) | (idx[:, None] >= idx[None, :])
        mem = mem0
        outs = []
        for s in range(n_seg):
            xs = x[:, s * seg_len:(s + 1) * seg_len, :].clone()
            h = torch.concatenate([mem, xs], axis=1)
            q = torch.einsum('btd,dhe->bhte', h, Wq)
            k = torch.einsum('btd,dhe->bhte', h, Wk)
            v = torch.einsum('btd,dhe->bhte', h, Wv)
            scores = torch.einsum('bhqe,bhke->bhqk', q, k) * scale
            scores = torch.where(mask[None, None], scores, -1000000000.0)
            p = _softmax(scores, axis=-1)
            o = torch.einsum('bhqk,bhke->bhqe', p, v)
            o = torch.einsum('bhte,hed->btd', o, Wo)
            mem = o[:, :M, :].clone()
            outs.append(o[:, M:, :])
        return torch.concatenate(outs, axis=1)
    a = _A_ref(A_x, A_c_kv, A_w_q, A_w_uk, A_w_uv, A_w_o)
    b = _B_ref(B_x, B_mem0, B_Wq, B_Wk, B_Wv, B_Wo, B_seg_len)
    return torch.concatenate([a, b], axis=-1)
```

```python
from common import *

WS = 's[20:23]'
vL16, vKa, vVa, vNinf, vFo, vT = 1, 2, 3, 4, 5, 6
vNM = 12
vP, vL, vS, vC, vO = 16, 32, 48, 80, 112
vPK = 240
aQ, aQ2, aK, aV, aOne = 0, 64, 128, 160, 192
sH, sQ1, sQ2 = 32, 33, 34
sDt, sDend, sDo, sDs, sRs, sT, sLo, sHi, sN, sTmp, sBase, sBlk, sN2, sSpin, sTn, sW12 = range(35, 51)
sTri, sM00, sMF, sML = 52, 60, 68, 70
sFl, sBig, sSml = 72, 73, 74
NS = 8

def S_(tau, u): return vS + 8 * u + 4 * tau
def C_(tau, u): return vC + 8 * u + 4 * tau
def O_(f, u): return vO + 32 * u + 4 * f
def P_(u): return vP + 4 * u
def L_(u): return vL + 4 * u
def Q_(u, k): return aQ + 16 * u + 4 * k
MF = 'v_mfma_f32_16x16x32_bf16 %s, %s, %s, %s'

def s_phase(us, taus=(0, 1), czero=False):
    o = []
    for k in range(4):
        for tau in taus:
            for u in us:
                d = V(S_(tau, u), 4)
                c = d if k else ('0' if czero else V(C_(tau, u), 4))
                o.append((MF % (d, A(aK + 4 * (2 * k + tau), 4), A(Q_(u, k), 4), c), 2 * k + tau if u == us[-1] else None))
    return o
def pv_phase(us, czero=False):
    o = []
    for f in range(8):
        for u in us:
            d = V(O_(f, u), 4)
            o.append((MF % (d, A(aV + 4 * f, 4), V(P_(u), 4), '0' if czero else d), f if u == us[-1] else None))
    for u in us:
        d = V(L_(u), 4)
        o.append((MF % (d, A(aOne, 4), V(P_(u), 4), '0' if czero else d), None))
    return o
def soft(u):
    e = lambda tau, r: ['v_exp_f32 %s, %s' % (V(S_(tau, u) + r), V(S_(tau, u) + r))]
    c = lambda j, tau, h: 'v_cvt_pk_bf16_f32 %s, %s, %s' % (V(P_(u) + j), V(S_(tau, u) + 2 * h), V(S_(tau, u) + 2 * h + 1))
    return [e(0, 0), e(0, 1), e(1, 0), e(1, 1), e(0, 2), [c(0, 0, 0), c(1, 1, 0)], e(0, 3), e(1, 2), e(1, 3), [c(2, 0, 1), c(3, 1, 1)]]
def mask_salu(sa):
    return (['s_cmp_lt_u32 %s, %s' % (S(sTn), S(sa)), 's_cselect_b64 %s, -1, 0' % S(sMF, 2),
             's_cmp_le_u32 %s, %s' % (S(sTn), S(sa)), 's_cselect_b64 %s, -1, 0' % S(sML, 2),
             's_cmp_eq_u32 %s, %s' % (S(sTn), S(sa))] +
            ['s_cselect_b64 %s, %s, %s' % (S(sM00 + 2 * r, 2), S(sTri + 2 * r, 2), S(sMF, 2)) for r in range(4)])
def mask_valu(u):
    o = []
    for tau in range(2):
        for r in range(4):
            m = sM00 + 2 * r if tau == u % 2 else (sMF if tau else sML)
            o.append('v_cndmask_b32 %s, %s, %s, %s' % (V(C_(tau, u) + r), V(vNinf), V(vNM + u), S(m, 2)))
    return o
def pairs(l): return [l[i:i + 2] for i in range(0, len(l), 2)]
def kread(f): return 'ds_read_b128 %s, %s offset:%d' % (A(aK + 4 * f, 4), V(vKa), 1024 * f)
def vread(f): return 'ds_read_b128 %s, %s offset:%d' % (A(aV + 4 * f, 4), V(vVa), 8192 + 1024 * f)
def dma_ops():
    return (['s_lshl_b32 %s, %s, 19' % (S(sDo), S(sDt)), 's_add_u32 m0, %s, %s' % (S(sDs), S(sW12)), 's_add_u32 %s, %s, %s' % (S(sDo), S(sDo), S(sBase))] +
            ['buffer_load_dwordx4 %s, %s, %s offen offset:%d sc1 lds' % (V(vL16), WS, S(sDo), 1024 * i) for i in range(4)] +
            ['s_add_u32 %s, %s, 0x4000' % (S(sDs), S(sDs)), 's_and_b32 %s, %s, 0x%x' % (S(sDs), S(sDs), NS * 0x4000 - 1),
             's_add_u32 %s, %s, 1' % (S(sDt), S(sDt)), 's_cmp_eq_u32 %s, %s' % (S(sDt), S(sDend)),
             's_cselect_b32 %s, %s, %s' % (S(sDend), S(sN2), S(sDend)), 's_cselect_b32 %s, 0, %s' % (S(sDt), S(sDt))])
ADV_S = ['s_add_u32 %s, %s, 0x4000' % (S(sRs), S(sRs)), 's_and_b32 %s, %s, 0x%x' % (S(sRs), S(sRs), NS * 0x4000 - 1)]
ADV_V = [['v_mov_b32 %s, %s' % (V(vVa), V(vKa)), 'v_add_u32 %s, %s, %s' % (V(vKa), S(sRs), V(vL16))]]

def emit(a, mf, slots, start=0, other=(), rd=None, pre=(), tail=1):
    n = len(mf)
    gaps = [[[], []] for _ in range(n)]
    for i, (m, f) in enumerate(mf):
        if rd and f is not None: gaps[i][0].append(rd(f))
    gaps[0][0][:0] = list(pre)
    other = list(other)
    free = [g for g in range(n) if not gaps[g][0]] or list(range(n))
    for i, x in enumerate(other): gaps[free[(i * len(free)) // len(other)]][0].append(x)
    span = n - tail - start
    for i, s_ in enumerate(slots): gaps[start + (i * span) // len(slots)][1] += s_
    for (m, f), (nv, vv) in zip(mf, gaps):
        a(m); a(nv); a(vv)

def body(a, mode, masked=False, first=False, end=()):
    g0, g1 = ((0, 1), (2, 3)) if mode == 2 else ((2,), (3,))
    def half(g, h):
        if mode == 2: return soft(g[h])
        s_ = soft(g[0]); return s_[:5] if h == 0 else s_[5:]
    st = 3
    BAR = ['s_waitcnt vmcnt(%d)' % (0 if first else 4 * (NS - 3)), 's_barrier']
    nxt = ['s_add_u32 %s, %s, 1' % (S(sTn), S(sTn))]
    a('s_waitcnt lgkmcnt(0)')
    if first:
        emit(a, s_phase(g0), pairs(['v_mov_b64 %s, 0' % V(O_(0, 3) + 2 * i, 2) for i in range(16)] + ['v_mov_b64 %s, 0' % V(L_(2) + 2 * i, 2) for i in range(4)]),
             other=[vread(f) for f in range(8)])
        emit(a, s_phase(g1), half(g0, 0) + half(g0, 1), st, rd=kread, pre=BAR + list(end), other=nxt + mask_salu(sLo)[:4])
        a('s_waitcnt lgkmcnt(8)')
        emit(a, pv_phase(g0, True), ADV_V + half(g1, 0) + pairs(mask_valu(0) + mask_valu(1)), st, other=ADV_S + mask_salu(sLo)[4:] + dma_ops(), tail=0)
        return
    mA = pairs(mask_valu(3)) if mode == 1 else []
    emit(a, s_phase(g0), half(g1, 1) + mA[:1], 0, other=(nxt + mask_salu(sLo)) if masked and mode == 2 else ())
    mB = pairs(mask_valu(0)) if masked and mode == 2 else mA[1:]
    if mode == 2: emit(a, pv_phase(g1), half(g0, 0) + mB, st, rd=vread)
    else: emit(a, pv_phase(g1), mB + half(g0, 0), 0, rd=vread)
    mC = pairs(mask_valu(1)) if masked and mode == 2 else []
    emit(a, s_phase(g1), half(g0, 1) + mC, 0, rd=kread, pre=BAR, other=ADV_S)
    a('s_waitcnt lgkmcnt(8)')
    phase_d(a, mode, True, end, nxt if not (masked and mode == 2) else [])
def phase_d(a, mode, dma, end=(), nxt=()):
    if mode == 2:
        emit(a, pv_phase((0, 1)), ADV_V + [[], []] + soft(2), 0, other=dma_ops() + list(nxt) + list(end))
    else:
        a(list(nxt) + mask_salu(sHi))
        m = pairs(mask_valu(2))
        emit(a, pv_phase((2,)), (ADV_V if dma else []) + m[:3 - dma] + soft(3)[:5] + m[3 - dma:], 0, other=(dma_ops() if dma else []) + list(end), tail=0)
        if not end: a('s_nop 0')

def cross_max(x, t):
    return ['v_mov_b32 %s, %s' % (V(t), V(x)), 's_nop 1', 'v_permlane16_swap_b32 %s, %s' % (V(x), V(t)),
            'v_max_f32 %s, %s, %s' % (V(x), V(x), V(t)), 'v_mov_b32 %s, %s' % (V(t), V(x)), 's_nop 1',
            'v_permlane32_swap_b32 %s, %s' % (V(x), V(t)), 'v_max_f32 %s, %s, %s' % (V(x), V(x), V(t))]
def inter(lists):
    out = []
    for grp in zip(*lists):
        if grp[0].startswith('s_nop'): continue
        out += grp
    return out

def slow_path(a, Lslow, Lback):
    us = (0, 1, 2, 3)
    a(Lslow + ':')
    a('s_waitcnt vmcnt(0) lgkmcnt(0)')
    def load(dst, off):
        for f in range(8):
            if f % 4 == 0: a('s_add_u32 %s, %s, %d' % (S(sTmp), S(sDo), off + 1024 * f))
            a('buffer_load_dwordx4 %s, %s, %s, %s offen offset:%d sc1' % (A(dst + 4 * f, 4), V(vL16), WS, S(sTmp), 1024 * (f % 4)))
    for ps in range(2):
        L = a.lab('sl')
        if ps == 0:
            for u in us: a('v_mov_b32 %s, 0' % V(vNM + u)); a('v_mov_b32 %s, %s' % (V(vPK + u), V(vNinf)))
        else:
            a(inter([cross_max(vPK + u, vPK + 4 + u) for u in us]))
            for u in us: a('v_sub_f32 %s, 0, %s' % (V(vNM + u), V(vPK + u)))
            for i in range(64): a('v_mov_b64 %s, 0' % V(vO + 2 * i, 2))
            for i in range(8): a('v_mov_b64 %s, 0' % V(vL + 2 * i, 2))
        a('s_mov_b32 %s, 0' % S(sTn))
        a(L + ':')
        a('s_lshl_b32 %s, %s, 19' % (S(sDo), S(sTn)))
        a('s_add_u32 %s, %s, %s' % (S(sDo), S(sDo), S(sBase))); a('s_sub_u32 %s, %s, %s' % (S(sDo), S(sDo), S(sW12)))
        load(aK, 0)
        if ps: load(aV, 8192)
        a(mask_salu(sLo)); a(mask_valu(0) + mask_valu(1))
        a(mask_salu(sHi)); a(mask_valu(2) + mask_valu(3))
        a('s_waitcnt vmcnt(0)'); a('s_nop 0')
        a([m for m, _ in s_phase(us)])
        a('s_nop 7')
        if ps == 0:
            for u in us:
                for i in range(4): a('v_max3_f32 %s, %s, %s, %s' % (V(vPK + u), V(vPK + u), V(S_(0, u) + 2 * i), V(S_(0, u) + 2 * i + 1)))
        else:
            for u in us:
                for s_ in soft(u): a(s_)
            a('s_nop 1')
            a([m for m, _ in pv_phase(us)])
        a('s_add_u32 %s, %s, 1' % (S(sTn), S(sTn)))
        a('s_cmp_le_u32 %s, %s' % (S(sTn), S(sHi)))
        a('s_cbranch_scc1 ' + L)
    for f in range(8): a('ds_read_b128 %s, %s offset:%d' % (A(aK + 4 * f, 4), V(vVa), 1024 * f))
    a('s_branch ' + Lback)

def att(a, wait_inputs, opt={}, stamp=None):
    st = stamp or (lambda a, i: None)
    a('v_and_b32 %s, 63, v0' % V(vL16)); a('v_lshlrev_b32 %s, 4, %s' % (V(vL16), V(vL16)))
    a('v_mov_b32 %s, 0xff800000' % V(vNinf))
    a('v_min_u32 %s, 1, v0' % V(vFo)); a('v_lshlrev_b32 %s, 28, %s' % (V(vFo), V(vFo)))
    a('v_mov_b32 %s, 0x3f803f80' % V(vT))
    for i in range(4): a('v_accvgpr_write_b32 %s, %s' % (A(aOne + i), V(vT)))
    for r in range(4):
        m = sum(1 << l for l in range(64) if 4 * (l // 16) + r <= l % 16)
        a('s_mov_b32 %s, 0x%x' % (S(sTri + 2 * r), m & 0xffffffff)); a('s_mov_b32 %s, 0x%x' % (S(sTri + 2 * r + 1), m >> 32))
    a('s_mov_b32 %s, 0x%x' % (S(sBig), f2u(2.0 ** opt.get('big', 40)))); a('s_mov_b32 %s, 0x%x' % (S(sSml), f2u(2.0 ** -60)))
    a('s_lshl_b32 %s, s4, 12' % S(sW12))
    a('s_lshl_b32 %s, %s, 14' % (S(sBase), S(sH)))
    a('s_add_u32 %s, %s, %s' % (S(sBase), S(sBase), S(sW12))); a('s_add_u32 %s, %s, 0x%x' % (S(sBase), S(sBase), WS_KVA))
    a('s_lshl_b32 %s, %s, 3' % (S(sDend), S(sQ1))); a('s_add_u32 %s, %s, 8' % (S(sDend), S(sDend)))
    a('s_lshl_b32 %s, %s, 3' % (S(sN2), S(sQ2))); a('s_add_u32 %s, %s, 8' % (S(sN2), S(sN2)))
    for s_ in (sDt, sDs, sBlk): a('s_mov_b32 %s, 0' % S(s_))
    wait_inputs(a)
    st(a, 3)
    def qload(sq, dst):
        for hi in range(2):
            a('s_lshl_b32 %s, %s, 3' % (S(sTmp), S(sq)))
            if hi: a('s_add_u32 %s, %s, 7' % (S(sTmp), S(sTmp))); a('s_sub_u32 %s, %s, s4' % (S(sTmp), S(sTmp)))
            else: a('s_add_u32 %s, %s, s4' % (S(sTmp), S(sTmp)))
            a('s_lshl_b32 %s, %s, 5' % (S(sTmp), S(sTmp))); a('s_add_u32 %s, %s, %s' % (S(sTmp), S(sTmp), S(sH)))
            a('s_lshl_b32 %s, %s, 13' % (S(sTmp), S(sTmp))); a('s_add_u32 %s, %s, 0x%x' % (S(sTmp), S(sTmp), WS_QA))
            for b in range(8):
                if b == 4: a('s_add_u32 %s, %s, 4096' % (S(sTmp), S(sTmp)))
                a('buffer_load_dwordx4 %s, %s, %s, %s offen offset:%d sc1' % (A(dst + 16 * (2 * hi + b % 2) + 4 * (b // 2), 4), V(vL16), WS, S(sTmp), 1024 * (b % 4)))
    a(dma_ops()); qload(sQ1, aQ)
    for i in range(NS - 2): a(dma_ops())
    qload(sQ2, aQ2)
    a('s_waitcnt vmcnt(%d)' % (4 * (NS - 2) + 16))
    a('s_barrier')
    a('v_mov_b32 %s, %s' % (V(vKa), V(vL16)))
    a([kread(f) for f in range(8)])
    a('s_mov_b32 %s, 0' % S(sRs)); a(ADV_S); a(ADV_V)
    a('s_mov_b32 %s, 0x%x' % (S(sFl), WS_DUMP))
    Lblk = a.lab('ablk'); Lslow = a.lab('aslow'); Lback = a.lab('aback'); Ldone = a.lab('adone')
    a(Lblk + ':')
    a('s_lshl_b32 %s, %s, 3' % (S(sN), S(sQ1)))
    a('s_add_u32 %s, %s, s4' % (S(sLo), S(sN)))
    a('s_add_u32 %s, %s, 7' % (S(sHi), S(sN))); a('s_sub_u32 %s, %s, s4' % (S(sHi), S(sHi)))
    a('s_mov_b32 %s, 0' % S(sTn))
    a('s_waitcnt lgkmcnt(0)')
    us = (0, 1, 2, 3)
    emit(a, s_phase(us, (0,), True), pairs(['v_mov_b64 %s, 0' % V(O_(0, 2) + 2 * i, 2) for i in range(16)]), other=mask_salu(sLo))
    a('s_nop 4')
    for u in us: a('v_max3_f32 %s, %s, %s, %s' % (V(vNM + u), V(S_(0, u)), V(S_(0, u) + 1), V(S_(0, u) + 2)))
    for u in us: a('v_max_f32 %s, %s, %s' % (V(vNM + u), V(vNM + u), V(S_(0, u) + 3)))
    a(inter([cross_max(vNM + u, vT + u) for u in us]))
    for u in us: a('v_sub_f32 %s, 0, %s' % (V(vNM + u), V(vNM + u)))
    a(mask_valu(0) + mask_valu(1))
    for u in (2, 3):
        for i in range(8): a('v_mov_b32 %s, %s' % (V(C_(0, u) + i), V(vNM + u)))
    a('v_mov_b32 %s, 1' % V(vT))
    body(a, 2, first=True, end=['buffer_store_dword %s, %s, %s, %s offen sc1' % (V(vT), V(vFo), WS, S(sFl))])
    Lp = a.lab('apl'); Lm = a.lab('amk'); L1 = a.lab('am1')
    a('s_cmp_eq_u32 %s, 0' % S(sN)); a('s_cbranch_scc1 ' + Lm)
    a('s_sub_u32 %s, %s, 1' % (S(sT), S(sN)))
    a('.p2align 3'); a(Lp + ':')
    body(a, 2, end=['s_cmp_lt_u32 %s, %s' % (S(sTn), S(sT))])
    a('s_cbranch_scc1 ' + Lp)
    a(Lm + ':')
    a('s_add_u32 %s, %s, 4' % (S(sT), S(sN)))
    Lm2 = a.lab('amk')
    a('.p2align 3'); a(Lm2 + ':')
    body(a, 2, masked=True, end=['s_cmp_lt_u32 %s, %s' % (S(sTn), S(sT))])
    a('s_cbranch_scc1 ' + Lm2)
    a('s_add_u32 %s, %s, 8' % (S(sT), S(sN)))
    phase_d(a, 1, False)
    a('.p2align 3'); a(L1 + ':')
    body(a, 1, masked=True, end=['s_cmp_lt_u32 %s, %s' % (S(sTn), S(sT))])
    a('s_cbranch_scc1 ' + L1)
    for s_ in soft(3)[5:]: a(s_)
    a('s_nop 1')
    pv = pv_phase((3,))
    a([m for m, _ in pv[-1:] + pv[:-1]])
    for u in us:
        a('v_cmp_ngt_f32 %s, %s, %s' % (S(sM00 + 2 * u, 2), S(sBig), V(L_(u))))
        a('v_cmp_nlt_f32 vcc, %s, %s' % (S(sSml), V(L_(u))))
        a('s_or_b64 %s, %s, vcc' % (S(sM00 + 2 * u, 2), S(sM00 + 2 * u, 2)))
    a('s_or_b64 %s, %s, %s' % (S(sM00, 2), S(sM00, 2), S(sM00 + 2, 2)))
    a('s_or_b64 %s, %s, %s' % (S(sM00 + 4, 2), S(sM00 + 4, 2), S(sM00 + 6, 2)))
    a('s_or_b64 %s, %s, %s' % (S(sM00, 2), S(sM00, 2), S(sM00 + 4, 2)))
    a('s_cbranch_scc1 ' + Lslow)
    a(Lback + ':')
    for u in us: a('v_rcp_f32 %s, %s' % (V(L_(u)), V(L_(u))))
    n = 0
    for u in us:
        if u % 2 == 0:
            a('s_lshl_b32 %s, %s, 5' % (S(sT), S(sHi if u else sLo))); a('s_add_u32 %s, %s, %s' % (S(sT), S(sT), S(sH)))
            a('s_lshl_b32 %s, %s, 13' % (S(sT), S(sT))); a('s_add_u32 %s, %s, 0x%x' % (S(sT), S(sT), WS_CTXA))
            a('s_add_u32 %s, %s, 4096' % (S(sTmp), S(sT)))
        for k in range(4):
            pk = vPK + 4 * (n % 4); n += 1
            x = O_(2 * k, u)
            for i in range(4): a('v_pk_mul_f32 %s, %s, %s op_sel_hi:[1,0]' % (V(x + 2 * i, 2), V(x + 2 * i, 2), V(L_(u), 2)))
            for j, o in enumerate((0, 4, 2, 6)): a('v_cvt_pk_bf16_f32 %s, %s, %s' % (V(pk + j), V(x + o), V(x + o + 1)))
            b = 2 * k + u % 2
            a('buffer_store_dwordx4 %s, %s, %s, %s offen offset:%d sc1' % (V(pk, 4), V(vL16), WS, S(sTmp if b >= 4 else sT), 1024 * (b % 4)))
    a('s_lshl_b32 %s, %s, 5' % (S(sFl), S(sQ1))); a('s_add_u32 %s, %s, %s' % (S(sFl), S(sFl), S(sH)))
    a('s_lshl_b32 %s, %s, 2' % (S(sFl), S(sFl))); a('s_add_u32 %s, %s, 0x%x' % (S(sFl), S(sFl), FLAG(FL_AT)))
    a('s_cmp_eq_u32 %s, 1' % S(sBlk)); a('s_cbranch_scc1 ' + Ldone)
    a('s_mov_b32 %s, 1' % S(sBlk)); a('s_mov_b32 %s, %s' % (S(sQ1), S(sQ2)))
    for i in range(64): a('v_accvgpr_mov_b32 %s, %s' % (A(aQ + i), A(aQ2 + i)))
    st(a, 4)
    a('s_branch ' + Lblk)
    slow_path(a, Lslow, Lback)
    a(Ldone + ':')
    a('s_waitcnt vmcnt(0) lgkmcnt(0)')
    a('s_barrier')
    a('v_mov_b32 %s, 1' % V(vT))
    a('buffer_store_dword %s, %s, %s, %s offen sc1' % (V(vT), V(vFo), WS, S(sFl)))
```

```python
from common import *

L_MEM, L_KX, L_Q, L_KM, L_O, L_F = 0, 9216, 17408, 19456, 21632, 24576
M2SZ = P1_BUF
vT16, vDum, vVa, vL16, vVb, vIdx, vPm, vZero, vXw, vXr, vQw, vQr = range(12)
VX, W0, W1, W2, W3 = 12, 20, 36, 52, 64
WREG = 72
sH = 6
sStep, sKV, sKVM, sP1r, sP1h, sM2a, sM2b, sM2c, sM2w, sM2x = 36, 37, 38, 39, 40, 41, 42, 43, 44, 45
sTmp, sSpin, sC, sFPB, sFCH, sTm2, sVXo = 47, 54, 55, 56, 57, 58, 59
sHf = 48
sTag = 46
sP1w = 60
sM2wh, sM2xh, sKXo, sPF, sXq = 65, 66, 67, 68, 69
sLo = 70
sSel, sOdd, sOne = 24, 32, 34
TOGGLE = (sM2w, sM2x, sM2wh, sM2xh, sM2a, sM2c)
WS = 's[20:23]'

WO_ORDER = [8, 0, 1, 2, 3, 4, 5, 6, 7]
frags = [(m, t, tau) for t in range(9) for m in 'qkv' for tau in range(2)] + [('o', tp, tl) for tl in range(9) for tp in range(2)]
lds_frags = [('k', t, 1) for t in range(9)] + [('o', 1, tl) for tl in WO_ORDER[:8]]
reg_frags = [f for f in frags if f not in lds_frags]
assert len(reg_frags) == 55
regpos = {f: (WREG + 8 * i) for i, f in enumerate(reg_frags)}
def fbase(f):
    off = L_F + 8192 * f
    return (off // 65536) * 65536, off % 65536
def smf(d, a_, b): return 'v_smfmac_f32_16x16x64_bf16 %s, %s, %s, %s' % (V(d, 4), V(a_, 4), U(b, 8), V(vIdx))

def spin_fail(a, lab):
    a('s_sub_u32 %s, %s, 1' % (S(sSpin), S(sSpin)))
    a('s_cbranch_scc0 ' + lab)
    a('s_endpgm')

def setup(a):
    a('v_and_b32 v20, 63, v0')
    a('v_lshlrev_b32 %s, 4, v20' % V(vL16))
    a('v_mov_b32 %s, 0' % V(vZero))
    a('s_mov_b32 %s, 0xcccccccc' % S(sHf)); a('s_mov_b32 %s, 0xcccccccc' % S(sHf + 1))
    a('v_mov_b32 v21, 0x44444444'); a('v_mov_b32 v22, 0xeeeeeeee')
    a('v_cndmask_b32 %s, v21, v22, %s' % (V(vIdx), S(sHf, 2)))
    a('s_mul_i32 %s, s4, 544' % S(sTmp))
    a('v_lshrrev_b32 v21, 4, v20'); a('v_lshlrev_b32 v21, 7, v21')
    a('v_and_b32 v22, 32, v20'); a('v_add3_u32 v21, v21, v22, %s' % S(sTmp))
    a('v_and_b32 v22, 15, v20'); a('v_lshl_add_u32 %s, v22, 3, v21' % V(vXw))
    a('v_lshrrev_b32 v21, 5, v20'); a('v_mul_u32_u24 v21, 544, v21')
    a('v_and_b32 v22, 3, v20'); a('v_lshl_add_u32 v21, v22, 7, v21')
    a('v_and_b32 v22, 2, v20'); a('v_lshl_add_u32 v21, v22, 4, v21')
    a('v_and_b32 v22, 16, v20'); a('v_lshl_add_u32 v21, v22, 2, v21')
    a('v_and_b32 v22, 12, v20'); a('v_lshl_add_u32 %s, v22, 1, v21' % V(vXr))
    a('v_lshrrev_b32 v21, 4, v0'); a('v_lshlrev_b32 v21, 7, v21')
    a('v_and_b32 v22, 14, v20'); a('v_lshl_add_u32 v21, v22, 2, v21')
    a('v_and_b32 v22, 1, v20'); a('v_lshl_add_u32 %s, v22, 1, v21' % V(vQw))
    a('v_and_b32 v21, 12, v20'); a('v_lshlrev_b32 v21, 5, v21')
    a('v_lshl_add_u32 v21, v22, 6, v21')
    a('v_and_b32 v22, 48, v20'); a('v_add_u32 %s, v21, v22' % V(vQr))
    a('s_mov_b32 %s, 0x%x' % (S(sC), QSCALE))
    a('s_mov_b32 %s, 0x%x' % (S(sSpin), SPIN))
    a('s_lshl_b32 %s, %s, 6' % (S(sTmp), S(sH)))
    for r in range(3): a('s_add_u32 %s, %s, 0x%x' % (S(sP1w + r), S(sTmp), WS_P1 + 4096 * r))
    a('s_lshl_b32 %s, %s, 7' % (S(sTmp), S(sH)))
    a('s_add_u32 %s, %s, 0x%x' % (S(sFPB), S(sTmp), FLAG(FL_PB)))
    a('s_add_u32 %s, %s, 0x%x' % (S(sFCH), S(sTmp), FLAG(FL_CH)))
    a('s_mul_i32 %s, %s, %d' % (S(sTmp), S(sH), P1_STRIDE))
    a('s_add_u32 %s, %s, 0x%x' % (S(sP1h), S(sTmp), WS_P1 + 4 * 2048))
    a('s_lshl_b32 %s, s4, 11' % S(sTm2))
    a('s_add_u32 %s, %s, %s' % (S(sTmp), S(sTmp), S(sTm2)))
    a('s_add_u32 %s, %s, 0x%x' % (S(sP1r), S(sTmp), WS_P1))
    a('s_lshl_b32 %s, s4, 11' % S(sM2b))
    a('s_add_u32 %s, %s, 0x%x' % (S(sM2a), S(sM2b), WS_M2 + M2SZ))
    a('s_mov_b32 %s, 0x%x' % (S(sM2c), WS_M2 + M2SZ + 8192))
    a('s_lshr_b32 %s, s4, 1' % S(sXq)); a('s_mul_i32 %s, %s, 1088' % (S(sXq), S(sXq)))
    a('s_and_b32 %s, s4, 1' % S(sTmp)); a('s_lshl_b32 %s, %s, 5' % (S(sTmp), S(sTmp)))
    a('s_add_u32 %s, %s, %s' % (S(sXq), S(sXq), S(sTmp)))
    a('s_lshl_b32 %s, %s, 5' % (S(sTmp), S(sH)))
    a('s_add_u32 %s, %s, 0x%x' % (S(sM2wh), S(sTmp), WS_M2 + M2SZ + 8192))
    a('s_add_u32 %s, %s, 0x%x' % (S(sM2xh), S(sTmp), WS_M2 + 8192))
    a('s_lshr_b32 %s, %s, 3' % (S(sTmp), S(sH))); a('s_lshl_b32 %s, %s, 9' % (S(sTmp), S(sTmp)))
    a('s_and_b32 %s, %s, 1' % (S(sTm2), S(sH))); a('s_lshl_b32 %s, %s, 8' % (S(sTm2), S(sTm2)))
    a('s_add_u32 %s, %s, %s' % (S(sTmp), S(sTmp), S(sTm2)))
    a('s_and_b32 %s, %s, 6' % (S(sTm2), S(sH))); a('s_lshl_b32 %s, %s, 5' % (S(sTm2), S(sTm2)))
    a('s_add_u32 %s, %s, %s' % (S(sTmp), S(sTmp), S(sTm2)))
    a('s_lshl_b32 %s, s4, 11' % S(sTm2))
    a('s_add_u32 %s, %s, %s' % (S(sTmp), S(sTmp), S(sTm2)))
    a('s_add_u32 %s, %s, 0x%x' % (S(sM2w), S(sTmp), WS_M2 + M2SZ))
    a('s_add_u32 %s, %s, 0x%x' % (S(sM2x), S(sTmp), WS_M2))
    a('s_lshl_b32 %s, %s, 14' % (S(sTmp), S(sH)))
    a('s_add_u32 %s, %s, 0x%x' % (S(sKV), S(sTmp), WS_KVB))
    a('s_add_u32 %s, %s, %s' % (S(sKXo), S(sKV), S(sTm2)))
    a('s_add_u32 %s, %s, 8192' % (S(sVXo), S(sKXo)))
    a('s_lshl_b32 %s, %s, 12' % (S(sTmp), S(sH)))
    a('s_add_u32 %s, %s, 0x%x' % (S(sKVM), S(sTmp), WS_KVM - 0x30000))
    a('s_mov_b32 %s, 0' % S(sStep))
    a('s_mov_b32 %s, 0' % S(sTag))

def h_addr(d, t):
    x = V(vL16)
    return ['v_bfe_u32 %s, %s, 8, 1' % (V(d), x), 'v_bfe_u32 %s, %s, 9, 1' % (V(t), x),
            'v_lshl_or_b32 %s, %s, 1, %s' % (V(d), V(d), V(t)), 'v_bfe_u32 %s, %s, 5, 1' % (V(t), x),
            'v_lshl_or_b32 %s, %s, 1, %s' % (V(d), V(d), V(t)), 'v_and_b32 %s, 0xd0, %s' % (V(t), x),
            'v_lshlrev_b32 %s, 24, %s' % (V(t), V(t)), 'v_lshl_or_b32 %s, %s, 2, %s' % (V(d), V(d), V(t))]
def m2_addr(d, t):
    x = V(vL16)
    return ['v_bfe_u32 %s, %s, 8, 2' % (V(d), x), 'v_bfe_u32 %s, %s, 2, 4' % (V(t), x),
            'v_lshl_or_b32 %s, %s, 4, %s' % (V(d), V(d), V(t)), 'v_and_b32 %s, 0xc0, %s' % (V(t), x),
            'v_lshl_or_b32 %s, %s, 24, %s' % (V(d), V(t), V(d))]
def p1w_addr(d, t):
    return ['v_bfe_u32 %s, %s, 7, 5' % (V(d), V(vT16)), 'v_mul_u32_u24 %s, %d, %s' % (V(d), P1_STRIDE, V(d)),
            'v_bfe_u32 %s, %s, 4, 3' % (V(t), V(vL16)), 'v_lshl_add_u32 %s, %s, 3, %s' % (V(d), V(t), V(d))]

def init_handoff(a):
    for i in range(4): a('v_mov_b32 %s, 0' % V(W0 + i))
    a('v_mov_b32 %s, -1' % V(W0 + 7))
    a(h_addr(W0 + 4, W0 + 5)); a(m2_addr(W0 + 6, W0 + 5))
    for s_ in (sP1r, sP1h):
        for m in range(2):
            a('buffer_store_dwordx4 %s, %s, %s, %s offen offset:%d sc1' % (V(W0, 4), V(vL16), WS, S(s_), 1024 * m))
    for s_ in (sM2w, sM2x):
        a('buffer_store_dword %s, %s, %s, %s offen sc1' % (V(W0 + 7), V(W0 + 6), WS, S(s_)))
    for s_ in (sM2wh, sM2xh):
        a('buffer_store_dword %s, %s, %s, %s offen sc1' % (V(W0 + 7), V(W0 + 4), WS, S(s_)))

def load_weights(a, wflags, arrive):
    vA, vB, vR, vWb, T, vC = 12, 14, 16, 60, 40, 56
    a('v_and_b32 v30, 63, v0')
    a('v_bfe_u32 v31, v30, 1, 2'); a('v_lshrrev_b32 v32, 5, v30'); a('v_xor_b32 v31, v31, v32')
    a('v_lshlrev_b32 v31, 5, v31'); a('v_and_b32 v32, 1, v30'); a('v_lshl_add_u32 v31, v32, 4, v31')
    a('v_xor_b32 v33, 64, v31')
    a('v_lshrrev_b32 v32, 3, v30')
    a('s_lshl_b32 %s, s4, 4' % S(sTmp))
    a('v_and_b32 v34, 3, v32'); a('v_lshrrev_b32 v35, 2, v32'); a('v_lshl_add_u32 v34, v34, 1, v35')
    a('v_add_u32 v34, %s, v34' % S(sTmp))
    a('v_lshl_add_u32 %s, v34, 13, v31' % V(vA))
    a('v_add_u32 v34, 8, v34')
    a('v_lshl_add_u32 %s, v34, 13, v33' % V(vA + 1))
    a('v_and_b32 v34, 1, v32'); a('v_lshlrev_b32 v34, 6, v34'); a('v_and_b32 v35, 6, v32')
    a('s_lshl_b32 %s, s4, 3' % S(sTmp))
    a('v_add3_u32 v34, v34, v35, %s' % S(sTmp))
    a('v_lshl_add_u32 %s, v34, 13, v31' % V(vC))
    a('v_add_u32 v34, 1, v34')
    a('v_lshl_add_u32 %s, v34, 13, v33' % V(vC + 1))
    a('v_lshrrev_b32 v34, 3, v0')
    a('v_mul_u32_u24 v34, 1152, v34')
    a('v_add_u32 %s, v34, v31' % V(vB))
    a('v_add_u32 v34, %d, v34' % (64 * 1152))
    a('v_add_u32 %s, v34, v33' % V(vB + 1))
    a('v_bfe_u32 v31, v30, 4, 1'); a('v_bfe_u32 v32, v30, 3, 1')
    a('v_lshl_add_u32 v33, v32, 1, v31'); a('v_xor_b32 v33, s4, v33'); a('v_lshlrev_b32 v33, 5, v33')
    a('v_lshl_add_u32 v33, v31, 9, v33'); a('v_lshl_add_u32 v33, v32, 10, v33')
    a('v_bfe_u32 v31, v30, 2, 1'); a('v_lshl_add_u32 v33, v31, 7, v33')
    a('v_lshrrev_b32 v31, 5, v30'); a('v_lshl_add_u32 v33, v31, 11, v33')
    a('v_and_b32 v31, 3, v30'); a('v_lshl_add_u32 %s, v31, 3, v33' % V(vR))
    a('v_add_u32 %s, 0x10000, %s' % (V(vR + 1), V(vR))); a('v_add_u32 %s, 0x20000, %s' % (V(vR + 2), V(vR)))
    a('v_lshlrev_b32 %s, 4, v0' % V(vWb))
    a('v_add_u32 %s, 0x10000, %s' % (V(vWb + 1), V(vWb))); a('v_add_u32 %s, 0x20000, %s' % (V(vWb + 2), V(vWb)))
    sA, sB, sM = 70, 71, 72
    a('s_lshl_b32 %s, %s, 8' % (S(sA), S(sH)))
    a('s_mul_i32 %s, %s, 147456' % (S(sB), S(sH)))
    a('s_lshl_b32 %s, s4, 11' % S(sM))
    seq = list(reg_frags)
    n0 = len(seq)
    seq += [lds_frags[n % 17] for n in range(n0, n0 + 17)]
    D = 8
    q = Seq(a, vm=['init'])
    def dma(n):
        m, t, tau = seq[n]
        for zz in range(2):
            a('s_add_u32 m0, %s, %d' % (S(sM), L_F + 8192 * (n % 17) + 1024 * zz))
            if m == 'o':
                if zz == 0: a('s_add_u32 %s, %s, %d' % (S(sTmp), S(sB), 32 * t * 1152 + 128 * tau))
                else: a('s_nop 0')
                q('buffer_load_dwordx4 %s, s[24:27], %s offen %s lds' % (V(vB + zz), S(sTmp), wflags), n)
            else:
                row = 512 if t == 8 else 128 * (t // 2) + 32 * (t % 2)
                if zz == 0: a('s_add_u32 %s, %s, %d' % (S(sTmp), S(sA), row * 8192 + 128 * tau))
                else: a('s_nop 0')
                q('buffer_load_dwordx4 %s, %s, %s offen %s lds' % (V((vA if t == 8 else vC) + zz), S(8 + 4 * 'qkv'.index(m), 4), S(sTmp), wflags), n)
    def finish(n):
        f = seq[n]; t = T + 8 * (n % 2)
        if f in lds_frags:
            b, o = fbase(n % 17)
            for hf in range(2):
                a('ds_write_b128 %s, %s offset:%d' % (V(vWb + b // 65536), V(t + 4 * hf, 4), o + 4096 * hf))
    for n in range(D): dma(n)
    for n in range(72):
        q.wait(n)
        a('s_waitcnt lgkmcnt(0)')
        a('s_barrier')
        if n == 0: arrive(a, q)
        if n + D < 72: dma(n + D)
        if n: finish(n - 1)
        f = seq[n]
        dst = regpos.get(f, T + 8 * (n % 2))
        b, o = fbase(n % 17)
        for y in range(4):
            a('ds_read_b64_tr_b16 %s, %s offset:%d' % (U(dst + 2 * y, 2), V(vR + b // 65536), o + 4096 * (y // 2) + 256 * (y % 2)))
    a('s_waitcnt lgkmcnt(0)')
    a('s_barrier')
    finish(71)

def arrive(a, q):
    L = a.lab('arr')
    a('s_getreg_b32 s73, hwreg(HW_REG_XCC_ID, 0, 3)')
    a('s_lshl_b32 s73, s73, 3')
    a('s_lshl_b64 s[74:75], 1, s73')
    a('v_mov_b32 v64, s74'); a('v_mov_b32 v65, s75')
    a('v_mov_b32 v66, 0x7ff00000'); a('v_cmp_eq_u32 vcc, 0, v0'); a('s_nop 1')
    a('v_cndmask_b32 v66, v66, %s, vcc' % V(vZero))
    q('buffer_atomic_add_x2 v[64:65], v66, s[28:31], 0 offen offset:8', 'arr')

def wait_flag(a, soff, need, lab):
    L = a.lab(lab); Lok = a.lab(lab + 'ok')
    a(L + ':')
    a('buffer_load_dword %s, %s, %s, %s offen sc1' % (V(vDum), V(vZero), WS, soff))
    a('s_waitcnt vmcnt(0)')
    a('v_cmp_le_u32 vcc, %s, %s' % (need, V(vDum)))
    a('s_cbranch_vccnz ' + Lok)
    spin_fail(a, L)
    a(Lok + ':')

def frag_read(q, f, dst, name):
    b, o = fbase(f)
    assert b == q.base, (f, b, q.base)
    return ['ds_read_b128 %s, %s offset:%d' % (V(dst + 4 * hf, 4), V(vT16), o + 4096 * hf) for hf in range(2)]

def start(a, flags_ready):
    a('v_lshlrev_b32 %s, 4, v0' % V(vT16))
    srd(a, 32, 'B_mem0')
    a('v_lshrrev_b32 v24, 4, %s' % V(vL16))
    a('v_bfe_u32 v25, v24, 2, 2'); a('v_and_b32 v26, 1, v24'); a('v_lshl_add_u32 v25, v25, 1, v26')
    a('v_mul_u32_u24 v25, 1152, v25')
    a('v_and_b32 v26, 48, v24'); a('v_and_b32 v27, 2, v24'); a('v_lshl_add_u32 v27, v27, 2, v26')
    a('v_lshl_add_u32 v29, v27, 1, v25'); a('v_add_u32 v25, v26, v25')
    a('s_lshr_b32 %s, s4, 1' % S(sTmp)); a('s_lshl_b32 %s, %s, 8' % (S(sTmp), S(sTmp)))
    a('s_and_b32 %s, s4, 1' % S(sTm2)); a('s_lshl_b32 %s, %s, 6' % (S(sTm2), S(sTm2)))
    a('s_add_u32 %s, %s, %s' % (S(sTmp), S(sTmp), S(sTm2)))
    a('s_waitcnt lgkmcnt(0)')
    for m in range(2):
        for tl in range(2):
            a('buffer_load_dwordx4 %s, v25, s[32:35], %s offen offset:%d' % (V(W1 + 8 * m + 4 * tl, 4), S(sTmp), 512 * m + 128 * tl))
    a('buffer_load_dwordx4 %s, v29, s[32:35], 0 offen offset:1024' % V(W3, 4))
    L = a.lab('hs'); Lok = a.lab('hsok')
    a(L + ':')
    a('buffer_load_dwordx2 v[26:27], %s, s[28:31], 0 offen offset:8 sc1' % V(vZero))
    a('s_waitcnt vmcnt(0)')
    a('v_sad_u8 v28, v26, 0, 0'); a('v_sad_u8 v28, v27, 0, v28')
    a('v_cmp_eq_u32 vcc, 32, v28')
    a('s_cbranch_vccnz ' + Lok)
    spin_fail(a, L)
    a(Lok + ':')
    a('v_readfirstlane_b32 s74, v26'); a('v_readfirstlane_b32 s75, v27')
    a('v_mov_b32 v30, 0x05040100'); a('v_mov_b32 v31, 0x07060302')
    a('v_cndmask_b32 v32, v30, v31, %s' % S(sHf, 2))
    for m in range(2):
        for i in range(4):
            a('v_perm_b32 %s, %s, %s, v32' % (V(W2 + 4 * m + i), V(W1 + 8 * m + 4 + i), V(W1 + 8 * m + i)))
    for i in range(4):
        a('v_perm_b32 %s, %s, %s, v%d' % (V(W2 + 8 + i), V(W3 + 2 * (i % 2) + 1), V(W3 + 2 * (i % 2)), 30 + i // 2))
    a('ds_write_b128 %s, %s' % (V(vT16), V(W2, 4)))
    a('ds_write_b128 %s, %s offset:4096' % (V(vT16), V(W2 + 4, 4)))
    a('ds_write_b128 %s, %s offset:8192' % (V(vL16), V(W2 + 8, 4)))
    flags_ready(a)
    for r in range(4):
        a('s_mov_b32 %s, 0x%x' % (S(sSel + 2 * r), 0x000f000f << (4 * r))); a('s_mov_b32 %s, 0x%x' % (S(sSel + 2 * r + 1), 0x000f000f << (4 * r)))
    a('s_mov_b32 %s, 0xaaaaaaaa' % S(sOdd)); a('s_mov_b32 %s, 0xaaaaaaaa' % S(sOdd + 1))
    a('s_mov_b32 %s, 0x3f803f80' % S(sOne)); a('s_mov_b32 %s, 0x3f803f80' % S(sOne + 1))
    wait_flag(a, S(sFPB), '3', 'pb0')
    a('s_lshl_b32 %s, s4, 11' % S(sTmp))
    a('s_add_u32 m0, %s, %d' % (S(sTmp), L_KX))
    a('v_lshlrev_b32 v24, 2, %s' % V(vT16))
    for tau in range(2):
        a('buffer_load_dwordx4 %s, %s, %s offen offset:%d sc1 lds' % (V(vL16), WS, S(sKXo), 1024 * tau))
    a('buffer_load_dword v25, v24, %s, %s offen sc1' % (WS, S(sKV)))
    a('s_add_u32 %s, %s, 0x80000' % (S(sPF), S(sKV)))
    a('buffer_load_dword v25, v24, %s, %s offen sc1' % (WS, S(sPF)))
    a('s_add_u32 %s, %s, 0x80000' % (S(sPF), S(sPF)))
    for s_ in (sP1r, sP1h):
        for m in range(2):
            a('buffer_load_dwordx4 %s, %s, %s, %s offen offset:%d sc1' % (V(W3, 4), V(vL16), WS, S(s_), 1024 * m))
    for b in range(2):
        a('s_mov_b32 %s, 0x%x' % (S(sTmp), WS_M2 + M2SZ * b))
        a('buffer_load_dword v25, v24, %s, %s offen sc1' % (WS, S(sTmp)))
    a('s_mov_b32 %s, -1' % S(sLo)); a('s_mov_b32 %s, 0' % S(sLo + 1))
    a('s_lshl_b32 %s, s4, 12' % S(sTmp)); a('s_add_u32 %s, %s, %s' % (S(sPF), S(sPF), S(sTmp)))
    a('v_mov_b32 %s, 0' % V(vVa)); a('v_mov_b32 %s, 0' % V(vVb))
    a('s_waitcnt vmcnt(0)')
    q = Seq(a); q.base = 0
    a(frag_read(q, 0, W0, None)); a(frag_read(q, 1, W0 + 8, None))
    for i in range(8): a('v_mov_b64 %s, 0' % V(W1 + 2 * i, 2))
    a(step_addrs())
    for s_ in TOGGLE:
        a('s_xor_b32 %s, %s, 0x%x' % (S(s_), S(s_), P1_BUF))
    a('s_lshr_b64 s[74:75], s[74:75], s73')
    a('s_and_b32 s74, s74, 0xff')
    a('s_cmp_eq_u32 s74, 32')

def step_addrs():
    return ['v_lshl_add_u32 %s, %s, 3, %s' % (V(vDum), V(vL16), S(sPF)), 'v_mov_b32 %s, %s' % (V(vPm), S(sFPB)),
            'v_cndmask_b32 %s, %s, %s, %s' % (V(vDum), V(vPm), V(vDum), S(sLo, 2))]

def kvm_stores(q, a, tmp, addr):
    return [lambda: a('v_add_u32 %s, %s, %s' % (V(addr), S(sXq), V(vXr))),
            lambda: q('ds_read_b64_tr_b16 %s, %s offset:%d' % (V(tmp, 2), V(addr), L_KM), 'kmr'),
            lambda: a('v_mov_b32 %s, %s' % (V(tmp + 2), V(vVa))),
            lambda: a('v_mov_b32 %s, %s' % (V(tmp + 3), V(vVb))),
            lambda: (q.wait('kmr'), q('buffer_store_dwordx4 %s, %s, %s, %s offen sc1' % (V(tmp, 4), V(vT16), WS, S(sKVM)), 'kvs'))]

def step_loop(a, sf, Lexit, opt, stamp=None):
    def add(d, x, y): return 'v_add_f32 %s, %s, %s' % (V(d), V(x), V(y))
    def add2(d, x): return [add(d, x, x + 2), add(d + 1, x + 1, x + 3)]
    def cvt(d, x, y): return 'v_cvt_pk_bf16_f32 %s, %s, %s' % (V(d), V(x), V(y))
    def cnd(d, x, y, m=sHf): return 'v_cndmask_b32 %s, %s, %s, %s' % (V(d), x, y, S(m, 2))
    def mov2(d, x): return 'v_mov_b64 %s, %s' % (V(d, 2), x)
    def sadd(d, x):
        if opt.get('nopf') and d in (sVXo, sKXo): x = 0
        return 's_add_u32 %s, %s, 0x%x' % (S(d), S(d), x)
    def sxor(d, x=P1_BUF): return 's_xor_b32 %s, %s, 0x%x' % (S(d), S(d), x)
    def delay(n):
        while n > 0: a('s_nop %d' % (min(n, 16) - 1)); n -= 16
    st = stamp or (lambda i: None)
    Lstep = a.lab('step'); Lfail = a.lab('fail')
    Sx = [W0, W0 + 4]; Sm = W0 + 8; R0 = W0 + 12; R1 = W2 + 8
    kxr = {(0, 0): Sx[0], (0, 1): Sx[1], (1, 0): R0, (1, 1): R0, (2, 0): W1, (2, 1): W1 + 4, (3, 0): R0, (3, 1): R1}
    qa, qb, ka, kb = W1, W1 + 4, W1 + 8, W1 + 12
    va, vb = W3, W3 + 4
    KQ, YH = W3, W3 + 4
    tails = []
    def mem(u): return W2 + 4 * (u % 3 if u < 12 else u % 2)
    def mu3(d, x, y, z): return 'v_max3_u32 %s, %s, %s, %s' % (V(d), V(x), V(y), V(z))
    def ldi(x, so, n=2):
        return ['buffer_load_dwordx4 %s, %s, %s, %s offen offset:%d sc1' % (V(x + 4 * m, 4), V(vL16), WS, S(so), 1024 * m) for m in range(n)]
    def chk(quads, C, x=''):
        regs = [r + i for r in quads for i in range(4)]
        o = [mu3(C, *regs[:3])]; regs = regs[3:]
        while len(regs) > 1: o.append(mu3(C, C, regs[0], regs[1])); regs = regs[2:]
        o.append('v_max_u32 %s, %s, %s' % (V(C), V(C), V(regs[0])))
        return o + ['v_cmp%s_eq_u32 vcc, -1, %s' % (x, V(C))]
    def retry(L, loads, check, cnt, first=None):
        L1 = a.lab('rt'); Le = a.lab('rte')
        a(L + ':')
        a('s_mov_b64 exec, vcc')
        a(L1 + ':')
        for u in range(3):
            a(loads)
            if stamp: a('s_add_u32 s%d, s%d, %d' % (cnt[0], cnt[0], cnt[1]))
            a('s_waitcnt vmcnt(%d)' % (len(loads) * (opt.get('dep', 2) - 1)))
            a(check)
            a('s_cbranch_execz ' + Le)
        a('s_sub_u32 %s, %s, 1' % (S(sSpin), S(sSpin))); a('s_cbranch_scc0 ' + L1)
        a('s_endpgm')
        a(Le + ':')
        a('s_mov_b64 exec, -1')
    a('.p2align 3')
    a(Lstep + ':')
    q = Seq(a, vm=['pre']); q.base = 0
    def mread(u): q('ds_read_b128 %s, %s offset:%d' % (V(mem(u), 4), V(vL16), L_MEM + 1024 * (u % 9)), ('m', u))
    def kxread(kap, tau): q('ds_read_b128 %s, %s offset:%d' % (V(kxr[kap, tau], 4), V(vL16), L_KX + 2048 * kap + 1024 * tau), ('kx', kap, tau))
    a('s_mov_b64 exec, -1')
    q.drain(vm=False)
    a('s_barrier')
    st('B0')
    for u in range(3): mread(u)
    st('B0x')
    ex = {}
    def at(g, f, name='x'):
        l = ex.setdefault(g, [])
        fn = f if callable(f) else (lambda: q(f, name))
        if not callable(f) and f.startswith('v_'): l.append(fn)
        else: l.insert(0, fn)
    def gap(g):
        for f in ex.pop(g, []): f()
    kv = kvm_stores(q, a, KQ, vPm)
    q(ldi(VX, sVXo)[0], 'vx'); at(1, ldi(VX, sVXo)[1], 'vx')
    if not opt.get('nopf'): at(opt.get('gpf', 7), 'buffer_load_dword %s, %s, %s, 0 offen sc1' % (V(vDum), V(vDum), WS))
    at(15, kv[4])
    at(8, 's_max_u32 %s, %s, 1' % (S(sTmp), S(sStep))); at(9, 's_sub_u32 %s, %s, 1' % (S(sTmp), S(sTmp)))
    at(12, 'v_min_u32 %s, 16, %s' % (V(vPm), V(vT16)))
    at(13, 'v_lshlrev_b32 %s, 24, %s' % (V(vPm), V(vPm)))
    at(20, 'v_mov_b32 %s, %s' % (V(KQ), S(sTmp)))
    at(23, 'buffer_store_dword %s, %s, %s, %s offen sc1' % (V(KQ), V(vPm), WS, S(sFCH)))
    at(27, lambda: q.wait('pre'))
    for i in range(4): at(28 + i, mov2(W3 + 2 * i, '0'))
    at(32, mov2(Sm, '0')); at(33, mov2(Sm + 2, '0'))
    at(32, lambda: kxread(1, 0))
    q.wait(('m', 0))
    st('m0')
    for t in range(9):
        rd = []
        if 1 <= t <= 7:
            rd = [(x, ('kb', t + 1)) for x in frag_read(q, t + 1, W0 + 8 * ((t + 1) % 2), None)]
        a(smf(qa, mem(t), regpos[('q', t, 0)]))
        if rd: q(*rd[0])
        gap(4 * t)
        a(smf(qb, mem(t), regpos[('q', t, 1)]))
        if rd: q(*rd[1])
        gap(4 * t + 1)
        a(smf(ka, mem(t), regpos[('k', t, 0)]))
        if t: mread(t + 2)
        q.wait(('kb', t), ('m', t + 1))
        if t < 7 and fbase(t + 2)[0] != q.base:
            a('v_add_u32 %s, 0x10000, %s' % (V(vT16), V(vT16))); q.base += 65536
        gap(4 * t + 2)
        if t == 8: a(add(qa, qa, qa + 2))
        a(smf(kb, mem(t), W0 + 8 * (t % 2)))
        gap(4 * t + 3)
    assert not ex, ex
    st('p1e')
    vsm = [(t, tau) for t in range(9) for tau in range(2)]
    wb = [W1, W1 + 8]
    wl = [(p, hf) for p in range(2) for hf in range(2)]; wl_on = []
    def wo_read(p, hf):
        if fbase(9 + p)[0] != q.base:
            a('v_add_u32 %s, 0x10000, %s' % (V(vT16), V(vT16))); q.base += 65536
        q(frag_read(q, 9 + p, wb[p % 2], None)[hf], ('wo', p))
    def vstep(n=1, feed=True):
        for _ in range(n):
            t, tau = vsm.pop(0)
            q.wait(('m', 9 + t))
            a(smf(va + 4 * tau, mem(9 + t), regpos[('v', t, tau)]))
            k = 0
            nx = {0: 3, 1: 4, 2: 99}.get(t, t + 2)
            if tau == 1 and nx < 9 and feed: mread(9 + nx); k = 1
            while k < 2 and wl and wl_on: wo_read(*wl.pop(0)); k += 1
    def qw(x, off, hi): q('ds_write_b16%s %s, %s offset:%d' % ('_d16_hi' if hi else '', V(vQw), V(x), L_Q + off + 64 * hi), 'w')
    mread(11)
    kxread(0, 0)
    a(add(qa + 1, qa + 1, qa + 3))
    a(cvt(qa, qa, qa + 1))
    vstep(1)
    qw(qa, 0, 0); qw(qa, 0, 1)
    a(add2(qb, qb)); a(cvt(qb, qb, qb + 1))
    vstep(1, False)
    qw(qb, 4, 0); qw(qb, 4, 1)
    a(add2(ka, ka)); a(add2(kb, kb))
    a(cvt(ka, ka, ka + 1)); a(cvt(ka + 1, kb, kb + 1))
    q('ds_write_b64 %s, %s offset:%d' % (V(vXw), V(ka, 2), L_KM), 'w')
    vstep(1)
    mread(12); kxread(0, 1)
    vstep(3)
    q.wait('w')
    a('s_barrier')
    st('B1')
    def qread(k): q('ds_read_b128 %s, %s offset:%d' % (V(W1 + 4 * k, 4), V(vQr), L_Q + 512 * k), ('q', k))
    def xrd(base, dst, tp, z, name):
        q('ds_read_b64_tr_b16 %s, %s offset:%d' % (V(dst + 2 * z, 2), V(vXr), base + 1088 * tp + 32 * z), name)
    def kmread(tp): xrd(L_KM, R1, tp, 0, ('km', tp)); xrd(L_KM, R1, tp, 1, ('km', tp))
    qread(0); qread(1)
    vstep(); kmread(0)
    vstep(); qread(2)
    vstep(); qread(3)
    vstep()
    def sx(k, tau):
        q.wait(('q', k), ('kx', k, tau))
        a('v_mfma_f32_16x16x32_bf16 %s, %s, %s, %s' % (V(Sx[tau], 4), V(kxr[k, tau], 4), V(W1 + 4 * k, 4), V(Sx[tau], 4) if k else '0'))
    def sm(tp):
        q.wait(('km', tp), ('q', 2 * tp + 1))
        a(smf(Sm, R1, W1 + 8 * tp))
    T0, T1, T2, T3, ONE = Sm + 2, Sm + 3, Sm + 1, vPm, R0
    sx(0, 0); sx(0, 1); sx(1, 0); kxread(1, 1)
    sm(0); kmread(1); kxread(2, 0)
    vstep(2)
    sx(1, 1); kxread(2, 1); kxread(3, 0)
    sm(1); kxread(3, 1)
    sx(2, 0)
    vstep(2)
    a(add(Sm, Sm, Sm + 2))
    sx(2, 1)
    a(add(Sm + 1, Sm + 1, Sm + 3)); a('v_max_f32 %s, %s, %s' % (V(T0), V(Sm), V(Sm + 1)))
    sx(3, 0)
    a(cnd(Sm, V(Sm), V(Sm + 1)))
    sx(3, 1)
    st('Se')
    def mx3(d, x, y, z): return 'v_max3_f32 %s, %s, %s, %s' % (V(d), V(x), V(y), V(z))
    a(mov2(ONE, S(sOne, 2))); a(mov2(ONE + 2, S(sOne, 2)))
    wl_on.append(1)
    vstep(1)
    a(mx3(T0, T0, Sx[0], Sx[0] + 1))
    vstep(1)
    a(mx3(T0, T0, Sx[0] + 2, Sx[0] + 3))
    a(mx3(T0, T0, Sx[1], Sx[1] + 1))
    a(mx3(T1, T0, Sx[1] + 2, Sx[1] + 3)); a(mx3(T2, T0, Sx[1] + 2, Sx[1] + 3))
    cn = [cnd(Sx[0] + r, V(Sx[0] + r), V(Sx[1] + r)) for r in range(4)]
    vstep(1); a(cn[0]); vstep(1); a(cn[1])
    a('v_permlane16_swap_b32 %s, %s' % (V(T1), V(T2)))
    a('v_max_f32 %s, %s, %s' % (V(T0), V(T1), V(T2)))
    a('v_max_f32 %s, %s, %s' % (V(T3), V(T1), V(T2)))
    a(cn[2:])
    assert not vsm and not wl
    st('max')
    a('v_permlane32_swap_b32 %s, %s' % (V(T0), V(T3)))
    a('v_max_f32 %s, %s, %s' % (V(T0), V(T0), V(T3)))
    a('v_mul_f32 %s, -%s, %s' % (V(T0), S(sC), V(T0)))
    for x in [Sm] + [Sx[0] + r for r in range(4)]: a('v_fma_f32 %s, %s, %s, %s' % (V(x), V(x), S(sC), V(T0)))
    a('v_exp_f32 %s, %s' % (V(Sm), V(Sm)))
    a(add2(va, va))
    a(cnd(Sm + 1, '0', V(Sm))); a(cnd(Sm, V(Sm), '0'))
    a(cvt(vPm, Sm, Sm + 1))
    a(add2(vb, vb))
    oa, ob, LL = W2, W2 + 4, W2 + 8
    a('v_mfma_f32_16x16x16_bf16 %s, %s, %s, 0' % (V(LL, 4), V(vPm, 2), V(ONE, 2)))
    a(cvt(vVa, va, va + 1)); a(cvt(vVb, vb, vb + 1))
    for r in range(2): a('v_exp_f32 %s, %s' % (V(Sx[0] + r), V(Sx[0] + r)))
    a('v_mfma_f32_16x16x16_bf16 %s, %s, %s, 0' % (V(oa, 4), V(vPm, 2), V(vVa, 2)))
    q.wait('vx')
    a('v_exp_f32 %s, %s' % (V(Sx[0] + 2), V(Sx[0] + 2)))
    a('v_mfma_f32_16x16x16_bf16 %s, %s, %s, 0' % (V(ob, 4), V(vPm, 2), V(vVb, 2)))
    a('s_cmp_eq_u32 %s, 63' % S(sStep))
    a('v_exp_f32 %s, %s' % (V(Sx[0] + 3), V(Sx[0] + 3)))
    a(cvt(T0, Sx[0], Sx[0] + 1)); a(cvt(T1, Sx[0] + 2, Sx[0] + 3))
    def sm32(d, b): a('v_smfmac_f32_16x16x32_bf16 %s, %s, %s, %s' % (V(d, 4), V(T0, 2), V(b, 4), V(vIdx)))
    wacc = [W3, W3 + 4, W0, W0 + 4, W0 + 8, W0 + 12, VX, VX + 4, W2 + 8]
    zer = [mov2(x + 2 * i, '0') for x in wacc for i in range(2)]
    a(zer.pop(0)); a(zer.pop(0))
    st('pv')
    for d, b in ((LL, ONE), (oa, VX), (ob, VX + 4)):
        sm32(d, b)
        if d == ob: a('s_nop 0')
        else: a(zer.pop(0)); a(zer.pop(0))
    a(add2(LL, LL))
    for i in range(2): a('v_rcp_f32 %s, %s' % (V(LL + i), V(LL + i)))
    a(add2(oa, oa))
    for i in range(2): a('v_mul_f32 %s, %s, %s' % (V(oa + i), V(oa + i), V(LL + i)))
    a(add2(ob, ob))
    for i in range(2): a('v_mul_f32 %s, %s, %s' % (V(ob + i), V(ob + i), V(LL + i)))
    a(cvt(oa, oa, oa + 1)); a(cvt(oa + 1, ob, ob + 1))
    q('ds_write_b64 %s, %s offset:%d' % (V(vXw), V(oa, 2), L_O), 'ow')
    st('ow')
    a('s_cbranch_scc1 ' + Lexit)
    PW = vPm
    a(p1w_addr(PW, LL))
    sal = [sxor(sTag, 1), sadd(sKXo, 0x80000), sadd(sVXo, 0x80000), sadd(sKVM, 0x20000),
           's_cmp_lt_u32 %s, 61' % S(sStep), 's_cselect_b32 %s, 0x80000, 0' % S(sTmp), 's_add_u32 %s, %s, %s' % (S(sPF), S(sPF), S(sTmp)),
           's_add_u32 %s, %s, 1' % (S(sStep), S(sStep)), 's_add_u32 %s, %s, 3' % (S(sTm2), S(sStep)), 's_min_u32 %s, %s, 64' % (S(sTm2), S(sTm2))] + [sxor(x) for x in TOGGLE]
    for i in range(opt.get('k1', 4)): a(sal.pop(0)); a(zer.pop(0))
    q.wait('ow')
    a('s_barrier')
    st('B2')
    for tp in range(2):
        for z in range(2): xrd(L_O, W2 + 4 * tp, tp, z, ('oa', tp))
        a(zer.pop(0))
    nlate = opt.get('k2', 2)
    while len(zer) > nlate:
        if sal: a(sal.pop(0))
        a(zer.pop(0))
    def fin(p):
        x = wacc[p]
        def tag(d): return 'v_and_or_b32 %s, %s, -2, %s' % (V(d), V(d), S(sTag))
        if p == 0:
            return add2(x, x) + [cvt(x + 1, x + 1, x + 1), cvt(x, x, x), tag(x + 1),
                    'buffer_store_dwordx2 %s, %s, %s, %s offen %s' % (V(x, 2), V(PW), WS, S(sP1w + 2), sf)]
        if p % 2: return add2(x, x)
        y = wacc[p - 1]; r = p // 2 - 1
        return add2(x, x) + [cvt(y + 1, y + 1, x + 1), cvt(y, y, x), tag(y + 1),
                'buffer_store_dwordx2 %s, %s, %s, %s offen offset:%d %s' % (V(y, 2), V(PW), WS, S(sP1w + r // 2), 2048 * (r % 2), sf)]
    order = [(0, 0)]
    for p in range(1, 9): order += [(p, 0), (p - 1, 1)]
    order += [(8, 1)]
    pend = []; ready = {}
    side = {1: 0, 3: 1}
    q.wait(('oa', 0))
    st('wo0')
    for n, (p, tp) in enumerate(order):
        tl = WO_ORDER[p]
        k = 0
        if tp == 0: a(smf(wacc[p], W2, regpos[('o', 0, tl)]))
        else:
            a(smf(wacc[p], W2 + 4, wb[p % 2] if p < 8 else regpos[('o', 1, tl)]))
            ready[n + 2] = p
            if p < 6: wo_read(p + 2, 0); wo_read(p + 2, 1); k = 2
        if k == 0 and pend and pend[0].startswith('buffer'): q(pend.pop(0), 'p1'); k += 2
        if n in side:
            q('buffer_load_dwordx4 %s, %s, %s offen offset:%d sc1 lds' % (V(vL16), WS, S(sKXo), 1024 * side[n]), 'kxd'); k += 2
        while k < 2 and sal: a(sal.pop(0)); k += 1
        if zer: a(zer.pop(0))
        if n in ready:
            if k == 0 and not pend: a('s_nop 0')
            pend += fin(ready[n])
        for _ in range(2):
            if pend and not pend[0].startswith('buffer'): a(pend.pop(0))
        if n + 1 < len(order) and order[n + 1][1] == 1: q.wait(('oa', 1), ('wo', order[n + 1][0]))
        if n == 5:
            a('v_add_u32 %s, 0x10000, %s' % (V(vT16), V(vT16))); q.base += 65536
    a(sal)
    SEL, X, D, XH, DH = W1 + 8, W1, W1 + 12, W0, W0 + 8
    MA, HA, LA, C, TT, NEG = W2, W2 + 1, W2 + 2, W2 + 3, W2 + 6, W2 + 7
    a(pend)
    a(fin(7))
    a('s_cmp_eq_u32 s4, 0')
    a('s_nop 0')
    a(fin(8))
    st('Woe')
    def red(d, x, m): return 'v_mfma_f32_16x16x32_bf16 %s, %s, %s, %s' % (V(d, 4), V(SEL, 4), V(x + 4 * m, 4), V(d, 4) if m else '0')
    def tchk(quads, x=''):
        o = []
        for i, r in enumerate(quads):
            o.append('v_bitop3_b32 %s, %s, %s, %s bitop3:0x7e' % (V(C + min(i, 1) + (i == 2)), V(r + 1), V(r + 3), S(sTag)))
            if i == 2: o.append('v_or3_b32 %s, %s, %s, %s' % (V(C), V(C), V(C + 1), V(C + 2)))
        return o + ['v_bitop3_b32 %s, %s, 1, %s bitop3:0xc8' % (V(C), V(C), V(C + 1)), 'v_cmp%s_ne_u32 vcc, 0, %s' % (x, V(C))]
    def ror(d, n): return 'v_add_f32_dpp %s, %s, %s row_ror:%d row_mask:0xf bank_mask:0xf' % (V(d), V(d), V(d), n)
    def pub(d, ad, so): return [cvt(d, d, d + 1), 'buffer_store_dword %s, %s, %s, %s offen %s' % (V(d), V(ad), WS, S(so), sf)]
    lates = []
    def misc():
        a('v_mov_b32 %s, 0x3f80' % V(SEL + 3))
        a(cnd(SEL + 3, V(SEL + 3), '1.0', sOdd))
        a([cnd(SEL + r, '0', V(SEL + 3), sSel + 2 * r) for r in range(4)])
        a(m2_addr(MA, TT))
        a('v_subrev_u32 %s, 0x20000, %s' % (V(vT16), V(vT16)))
        a('v_mov_b32 %s, -1' % V(NEG))
        a('v_add_u32 %s, %s, %s' % (V(LA), S(sM2b), V(vL16)))
        for f in kvm_stores(Seq(a), a, KQ, TT)[:4]: f()
    def kb01():
        qq = Seq(a); qq.base = 0
        a(frag_read(qq, 0, W0, None)); a(frag_read(qq, 1, W0 + 8, None))
    def hop2(hx):
        quads = [VX, VX + 4, YH][:2 + hx]
        lds = ldi(VX, sM2a) + ldi(YH, sM2c, hx)
        a('buffer_store_dword %s, %s, %s, %s offen %s' % (V(NEG), V(MA), WS, S(sM2x), sf))
        if hx: a('buffer_store_dword %s, %s, %s, %s offen %s' % (V(NEG), V(HA), WS, S(sM2xh), sf))
        a('v_cmp_gt_u32 vcc, %s, %s' % (S(sTm2), V(vDum)))
        if hx: kb01()
        for i in range(8): a(mov2(W1 + 2 * i, '0'))
        Lf = a.lab('fok'); Lfw = a.lab('fw'); L2 = a.lab('p2')
        a('s_cmp_lg_u32 vcc_hi, 0')
        a('s_cbranch_scc1 ' + Lfw)
        a(Lf + ':')
        lates.append((Lfw, Lf))
        a(step_addrs())
        delay(opt.get('d2', 20) - 6 * hx + hx * opt.get('d2h', 0))
        a(lds)
        delay(opt.get('sp2', 24))
        a(L2 + ':')
        for u in range(3):
            a(lds)
            if stamp: a('s_add_u32 s17, s17, 1')
            a('s_waitcnt vmcnt(%d)' % len(lds))
            c = chk(quads, C, 'x')
            a(c[:-1])
            for m in range(2 + hx): a('ds_write_b128 %s, %s offset:%d' % (V(LA), V(quads[m], 4), L_MEM + (0, 1024, 8192)[m]))
            a(c[-1])
            st('h2e')
            a('s_cbranch_execz ' + Lstep)
        a('s_sub_u32 %s, %s, 1' % (S(sSpin), S(sSpin)))
        a('s_cbranch_scc0 ' + L2)
        a('s_endpgm')
    def reduce1(ins):
        Lr = a.lab('r1'); Lr2 = a.lab('r2'); Lb = a.lab('b1')
        def attempt(x, young, L):
            a('s_waitcnt vmcnt(%d)' % (young + 1)); a(red(D, x, 0))
            a('s_waitcnt vmcnt(%d)' % young); a(red(D, x, 1))
            st('got1')
            a(tchk([x, x + 4]))
            a('s_nop 3')
            a(ror(D, 4)); a(ror(D + 1, 4))
            a('s_cbranch_vccnz ' + L)
            a(ror(D, 8)); a(ror(D + 1, 8))
            a(pub(D, MA, sM2w))
        attempt(X, 2 * ins, Lr2 if ins else Lr)
        a(Lb + ':')
        st('pub')
        def tail():
            x = VX if ins else X
            if ins:
                a(Lr2 + ':')
                if stamp: a('s_add_u32 s17, s17, 0x100')
                attempt(VX, 0, Lr)
                a('s_branch ' + Lb)
            retry(Lr, ldi(x, sP1r), tchk([x, x + 4], 'x'), (16, 1))
            a('s_nop 2')
            a(red(D, x, 0)); a(red(D, x, 1)); a('s_nop 7')
            a(ror(D, 4)); a(ror(D + 1, 4)); a('s_nop 0'); a(ror(D, 8)); a(ror(D + 1, 8))
            a(pub(D, MA, sM2w))
            if not ins: a('s_waitcnt vmcnt(1)')
            a('s_branch ' + Lb)
        tails.append(tail)
    LH = a.lab('wH'); Lq = a.lab('q1')
    a('s_cbranch_scc1 ' + LH)
    misc(); kb01()
    st('pre1')
    for w in (1, 2):
        a('s_cmp_eq_u32 s4, %d' % w); a('s_waitcnt vmcnt(%d)' % (3 - w + opt.get('e1', 0))); a('s_cbranch_scc1 ' + Lq)
    a('s_waitcnt vmcnt(%d)' % opt.get('e1', 0))
    a(Lq + ':')
    st('ack1')
    delay(opt.get('d1', 0))
    a(ldi(X, sP1r))
    if opt.get('sp1', 28): delay(opt.get('sp1', 28)); a(ldi(VX, sP1r))
    reduce1(1 if opt.get('sp1', 28) else 0)
    hop2(0)
    a(LH + ':')
    st('pre1')
    a(h_addr(HA, TT))
    a('s_waitcnt vmcnt(%d)' % opt.get('a0', 2))
    st('ack1')
    ld3 = ldi(XH, sP1h) + ldi(X, sP1r)
    a(ld3)
    misc()
    Lr = a.lab('r1'); Lb = a.lab('b1')
    quads = [X, X + 4, XH, XH + 4]
    a('s_waitcnt vmcnt(2)'); a(red(DH, XH, 0)); a(red(DH, XH, 1))
    a('s_waitcnt vmcnt(1)'); a(red(D, X, 0))
    a('s_waitcnt vmcnt(0)'); a(red(D, X, 1))
    st('got1')
    a(tchk(quads))
    def fin3(br):
        a(ror(DH + 1, 4)); a(ror(D, 4)); a(ror(D + 1, 4))
        a(ror(DH + 1, 8)); a(ror(D, 8)); a(ror(D + 1, 8))
        if br: a('s_cbranch_vccnz ' + Lr)
        a(pub(D, MA, sM2w))
        a('v_mov_b32_dpp %s, %s quad_perm:[1,0,3,2] row_mask:0xf bank_mask:0xf' % (V(DH + 2), V(DH + 1)))
        a(pub(DH + 1, HA, sM2wh))
    fin3(1)
    a(Lb + ':')
    st('pub')
    hop2(1)
    retry(Lr, ld3, tchk(quads, 'x'), (16, 1))
    a('s_nop 2')
    a(red(DH, XH, 0)); a(red(DH, XH, 1)); a(red(D, X, 0)); a(red(D, X, 1)); a('s_nop 6')
    fin3(0)
    a('s_waitcnt vmcnt(2)')
    a('s_branch ' + Lb)
    for t_ in tails: t_()
    for Lfw, Lf in lates:
        a(Lfw + ':')
        wait_flag(a, S(sFPB), S(sTm2), 'pb')
        a('s_branch ' + Lf)
    a(Lfail + ':')
    a('s_endpgm')

def chain(a, opt, flags_ready, wflags='nt', stamp=None, stamp_once=None, force_slow=False):
    srd(a, 8, 'B_wq'); srd(a, 12, 'B_wk'); srd(a, 16, 'B_wv'); srd(a, 24, 'B_wo'); srd(a, 28, 'dbg')
    setup(a)
    a('s_waitcnt lgkmcnt(0)')
    init_handoff(a)
    load_weights(a, wflags, arrive)
    if stamp_once: stamp_once(a, 1)
    start(a, flags_ready)
    Lslow = a.lab('slow'); Lexit = a.lab('chexit')
    if force_slow: a('s_branch ' + Lslow)
    a('s_cbranch_scc0 ' + Lslow)
    step_loop(a, '', Lexit, opt, stamp)
    a(Lslow + ':')
    step_loop(a, 'sc1', Lexit, opt, stamp)
    a(Lexit + ':')
    q = Seq(a)
    a('s_add_u32 %s, %s, 0x20000' % (S(sKVM), S(sKVM)))
    for f in kvm_stores(q, a, W3, vPm): f()
    a('s_waitcnt vmcnt(0) lgkmcnt(0)')
    a('s_barrier')
    a('v_subrev_u32 %s, 0x10000, %s' % (V(vT16), V(vT16)))
    a('v_min_u32 %s, 16, %s' % (V(vT16), V(vT16))); a('v_lshlrev_b32 %s, 24, %s' % (V(vT16), V(vT16)))
    a('v_mov_b32 %s, 64' % V(vPm))
    a('buffer_store_dword %s, %s, %s, %s offen sc1' % (V(vPm), V(vT16), WS, S(sFCH)))
```

```python
KNAME = 'concat_heads__compressed_kv_cla__memory_aug_recurrent_mem_tr__prompt'

ARG = dict(A_x=0, A_ckv=8, A_wq=16, A_wuk=24, A_wuv=32, A_wo=40, B_x=48, B_mem0=56, B_wq=64, B_wk=72,
           B_wv=80, B_wo=88, seg=96, out=104, dbg=112, ws=120)
SIZE = dict(A_x=2048*576*2, A_ckv=2048*512*2, A_wq=576*4096*2, A_wuk=512*4096*2, A_wuv=512*4096*2, A_wo=4096*576*2,
            B_x=2048*576*2, B_mem0=8*576*2, B_wq=576*4096*2, B_wk=576*4096*2, B_wv=576*4096*2, B_wo=4096*576*2,
            out=2048*1152*2, dbg=256, ws=268435456)

MB = 1 << 20
WS_FLAGS = 0
WS_M2    = 0x160000
WS_P1    = 0x100000
P1_STRIDE = 5*2048 + 256
P1_BUF   = 0x80000
WS_WL2   = 0x200000
WS_DUMP  = 128*MB
WS_STAMP = 0x380000
WS_KVM   = 4*MB
WS_KVA   = 16*MB
WS_KVB   = 48*MB
WS_QA    = 80*MB
WS_CTXA  = 96*MB
WS_CTXB  = 112*MB

import struct, math
def f2u(x): return struct.unpack('<I', struct.pack('<f', x))[0]
QSCALE = f2u(math.log2(math.e) / math.sqrt(128.0))

class Asm:
    def __init__(self):
        self.l = []
        self.n = 0
    def __call__(self, s):
        if isinstance(s, (list, tuple)):
            for x in s: self(x)
        else:
            for x in s.split('\n'):
                x = x.strip()
                if x: self.l.append(x if x.endswith(':') else ' ' + x)
    def lab(self, base):
        self.n += 1
        return 'L%s_%d' % (base, self.n)
    def text(self): return '\n'.join(self.l) + '\n'

def R(kind, i, n=1):
    return '%s%d' % (kind, i) if n == 1 else '%s[%d:%d]' % (kind, i, i + n - 1)
def V(i, n=1): return R('v', i, n)
def A(i, n=1): return R('a', i, n)
def S(i, n=1): return R('s', i, n)
def U(i, n=1):
    assert (i < 256) == (i + n - 1 < 256), (i, n)
    return V(i, n) if i < 256 else A(i - 256, n)

def srd(a, s, name):
    a('s_load_dwordx2 %s, s[0:1], %d' % (S(s, 2), ARG[name]))
    a('s_mov_b32 %s, 0x%x' % (S(s + 2), SIZE[name]))
    a('s_mov_b32 %s, 0x20000' % S(s + 3))

def weave(main, fill):
    out = list(fill.get(-1, []))
    for i, m in enumerate(main):
        out.append(m)
        out += fill.get(i, [])
    assert all(k < len(main) for k in fill), (max(fill), len(main))
    return out

HEAD = '''.amdgcn_target "amdgcn-amd-amdhsa--gfx950"
.text
'''
def kernel_open(name):
    return '.globl %s\n.p2align 8\n.type %s,@function\n%s:\n' % (name, name, name)
def kernel_desc(name, vgpr=512, acc=256):
    return '''.amdhsa_kernel %s
  .amdhsa_next_free_vgpr %d
  .amdhsa_next_free_sgpr 102
  .amdhsa_accum_offset %d
  .amdhsa_group_segment_fixed_size 0
  .amdhsa_kernarg_size 128
  .amdhsa_user_sgpr_count 2
  .amdhsa_user_sgpr_kernarg_segment_ptr 1
  .amdhsa_system_sgpr_workgroup_id_x 1
  .amdhsa_float_denorm_mode_32 3
.end_amdhsa_kernel
''' % (name, vgpr, acc)
RODATA = '.section .rodata,"a"\n.p2align 6\n'

class Seq:
    def __init__(self, a, lg=(), vm=()):
        self.a = a; self.lg = list(lg); self.vm = list(vm)
    def __call__(self, s, name=None):
        if isinstance(s, (list, tuple)):
            for x in s: self(x, name)
            return
        op = s.split()[0]
        if op.startswith('ds_'):
            self.lg.append(name); assert len(self.lg) <= 15 or True
        elif op.startswith(('buffer_', 'global_')): self.vm.append(name)
        self.a(s)
    def _n(self, q, names):
        idx = [i for i, n in enumerate(q) if n in names]
        if not idx: return None
        return len(q) - 1 - max(idx)
    def wait(self, *names):
        l = self._n(self.lg, names); v = self._n(self.vm, names)
        p = []
        if v is not None:
            v = min(v, 63); p.append('vmcnt(%d)' % v); self.vm = self.vm[len(self.vm) - v:]
        if l is not None:
            l = min(l, 15); p.append('lgkmcnt(%d)' % l); self.lg = self.lg[len(self.lg) - l:]
        if p: self.a('s_waitcnt ' + ' '.join(p))
        return bool(p)
    def drain(self, lg=True, vm=True):
        self.a('s_waitcnt ' + ' '.join((['vmcnt(0)'] if vm else []) + (['lgkmcnt(0)'] if lg else [])))
        if lg: self.lg = []
        if vm: self.vm = []

def FLAG(i): return WS_FLAGS + 128 * i
FL_PB, FL_CH, FL_PA, FL_QA, FL_QB, FL_AT, FL_LD = 0, 32, 64, 96, 112, 128, 136
SPIN = 0x40000
```

```python
import re, sys
REG = re.compile(r'\b([vas])(\d+)\b|\b([vas])\[(\d+):(\d+)\]')
def regs(op):
    out = set()
    for m in REG.finditer(op):
        if m.group(1): out.add((m.group(1), int(m.group(2))))
        else: out.update((m.group(3), i) for i in range(int(m.group(4)), int(m.group(5)) + 1))
    if re.search(r'\bvcc\b', op): out.add(('s', 'vcc'))
    if re.search(r'\bm0\b', op): out.add(('s', 'm0'))
    if re.search(r'\bexec\b', op): out.add(('s', 'exec'))
    return out
TRANS = ('v_exp_', 'v_log_', 'v_rcp_', 'v_rsq_', 'v_sqrt_', 'v_sin_', 'v_cos_')
class I:
    def __init__(s, text, line):
        s.text = text; s.line = line
        t = text.split(';')[0].strip()
        p = t.split(None, 1); s.op = p[0]
        ops = [x.strip() for x in p[1].split(',')] if len(p) > 1 else []
        s.ops = ops; op = s.op
        s.mfma = op.startswith('v_mfma') or op.startswith('v_smfmac')
        s.valu = op.startswith('v_') and not s.mfma
        s.vmem = op.startswith('buffer_') or op.startswith('global_')
        s.ds = op.startswith('ds_')
        s.salu = op.startswith('s_')
        s.trans = op.startswith(TRANS)
        s.dpp = s.valu and bool(re.search(r'quad_perm|row_|wave_', t))
        s.perml = op.startswith('v_permlane')
        s.rdl = op.startswith('v_readfirstlane') or op.startswith('v_readlane')
        s.states = 1
        if op == 's_nop': s.states = int(ops[0], 0) + 1
        s.d = set(); s.u = set(); s.ab = set(); s.c = set(); s.stdata = set()
        if s.mfma:
            s.passes = 8 if '32x32' in op else 4
            s.d = regs(ops[0]); s.ab = regs(ops[1]) | regs(ops[2])
            if op.startswith('v_smfmac'): s.ab |= regs(ops[3]); s.c = set(s.d)
            else: s.c = regs(ops[3])
            s.u = s.ab | s.c
        elif s.valu:
            s.d = regs(ops[0]); rest = ops[1:]
            if op.startswith(('v_add_co', 'v_sub_co', 'v_addc_co', 'v_subb_co')): s.d |= regs(ops[1]); rest = ops[2:]
            for x in rest: s.u |= regs(x)
            if s.perml or op.startswith('v_swap'): s.d |= regs(ops[1]); s.u |= regs(ops[0])
            if op.startswith(('v_fmac', 'v_writelane')) or s.dpp: s.u |= regs(ops[0])
            if op.startswith('v_cmpx'): s.d.add(('s', 'exec'))
        elif s.vmem:
            lds = bool(re.search(r'\blds\b', t)); s.ldsdma = lds
            if op in ('buffer_inv', 'buffer_wbl2'): pass
            elif '_load' in op and not lds:
                s.d = regs(ops[0])
                for x in ops[1:]: s.u |= regs(x)
            else:
                for x in ops: s.u |= regs(x)
                if 'atomic' in op and 'sc0' in t: s.d = regs(ops[0])
                if re.search(r'x[34]$', op) and 'store' in op: s.stdata = regs(ops[0] if op.startswith('buffer') else ops[1])
            if lds: s.u.add(('s', 'm0'))
        elif s.ds:
            if op.startswith(('ds_read', 'ds_bpermute', 'ds_permute', 'ds_swizzle')):
                s.d = regs(ops[0])
                for x in ops[1:]: s.u |= regs(x)
            else:
                for x in ops: s.u |= regs(x)
        elif s.salu:
            if op.startswith(('s_cmp', 's_cbranch', 's_branch', 's_waitcnt', 's_barrier', 's_nop', 's_endpgm', 's_sleep', 's_setprio', 's_bitcmp')):
                for x in ops: s.u |= regs(x)
            elif ops:
                s.d = regs(ops[0])
                for x in ops[1:]: s.u |= regs(x)
def vec(rs): return {r for r in rs if r[0] != 's'}
def sca(rs): return {r for r in rs if r[0] == 's'}
def need(p, c):
    n = 0; tb = False
    if p.mfma:
        big = 8 if p.passes == 4 else 12
        if c.mfma:
            if p.d & c.ab: n = big; tb = True
            elif p.d & c.c and not (p.d == c.c and p.passes == c.passes): n = big - 2; tb = True
            elif p.d & c.d and not (p.d & c.c) and p.passes != c.passes: n = big; tb = True
        elif (c.valu or c.vmem or c.ds) and p.d & (c.u | c.d): n = big; tb = True
        if c.valu and p.c & c.d: n = max(n, 3 if p.passes == 4 else 7); tb = True
    elif p.valu:
        dv = vec(p.d); dsr = sca(p.d)
        if c.mfma and dv & c.u: n = 2
        if (c.dpp or c.perml) and dv & c.u: n = max(n, 2)
        if c.rdl and dv & c.u: n = max(n, 1)
        if p.trans and c.valu and not c.trans and dv & c.u: n = max(n, 1)
        if c.valu and dsr & c.u: n = max(n, 2)
        if c.vmem and dsr & c.u: n = max(n, 5)
        if ('s', 'exec') in dsr and (c.mfma or c.perml or c.rdl or c.dpp): n = max(n, 5)
    elif p.vmem and p.stdata:
        if c.valu and p.stdata & c.d: n = 2
        elif p.stdata & c.d: n = 1
    elif p.salu:
        if ('s', 'm0') in p.d and c.vmem and getattr(c, 'ldsdma', False): n = 1
    return n, tb
MARGIN = 1
def check(text, verbose=True):
    ins = []; labels = {}
    for ln, l in enumerate(text.split('\n'), 1):
        t = l.split(';')[0].strip()
        if not t or t.startswith('.'): continue
        if t.endswith(':'): labels[t[:-1]] = len(ins); continue
        ins.append(I(t, ln))
    errs = set()
    def succ(i):
        x = ins[i]
        if x.op == 's_endpgm' or x.op.startswith('s_setpc'): return []
        if x.op == 's_branch': return [labels[x.ops[0]]] if x.ops[0] in labels else []
        r = [i + 1] if i + 1 < len(ins) else []
        if x.op.startswith('s_cbranch') and x.ops[0] in labels: r.append(labels[x.ops[0]])
        return r
    for i, p in enumerate(ins):
        if not (p.mfma or p.valu or p.stdata or ('s', 'm0') in p.d): continue
        lim = 12
        st = [(j, 0, 4, 0 if p.mfma else -99, (p.passes * 4) if p.mfma else 0) for j in succ(i)]
        while st:
            j, n, t, lm, ll = st.pop()
            if j >= len(ins): continue
            c = ins[j]
            if c.mfma: t = max(t, lm + ll)
            k, tb = need(p, c)
            if k > n and not (tb and t >= 4 * (k + 1) + 4 * MARGIN):
                errs.add((p.line, c.line, k, n, p.text, c.text))
            n2 = n + c.states
            if n2 >= lim: continue
            if c.mfma: lm, ll = t, c.passes * 4
            for q in succ(j): st.append((q, n2, t + 4 * c.states, lm, ll))
    for e in sorted(errs):
        if verbose: print('HAZARD line %d -> %d need %d have %d:\n    %s\n    %s' % e, file=sys.stderr)
    return len(errs)
if __name__ == '__main__':
    n = check(open(sys.argv[1]).read())
    print('%d hazards' % n, file=sys.stderr)
    sys.exit(1 if n else 0)
```

```python
from common import *
WS = 's[20:23]'
sCs, sT0, sDT, sN, sCtx, sOcol, sFb, sNeed0, sDNeed = range(32, 41)
sT, sTn, sCnt, sRot, sTmp, sA, sB, sNb, sLb, sSpin, sNeed, sHh, sFo, sOo = range(41, 55)
vL16, vFl, vFa, vRa, vWa, vOa, vPk = 1, 2, 3, 4, 5, 6, 8
vX, vAcc = 32, 96
def wreg(j, ct, z=None):
    i = (3 * j + ct) * 4
    i = 256 + i if i < 256 else 128 + i - 256
    return U(i, 4) if z is None else U(i + 2 * z, 2)
RED = 24576

def load_weights(a, wflags):
    vD, vR = 8, 11
    for z in range(3):
        a('v_add_u32 v12, %d, v7' % (64 * z))
        a('v_mul_u32_u24 v13, 171, v12'); a('v_lshrrev_b32 v13, 10, v13')
        a('v_mul_u32_u24 v14, 6, v13'); a('v_sub_u32 v14, v12, v14')
        a('v_mul_u32_u24 v13, 1152, v13'); a('v_lshl_add_u32 %s, v14, 4, v13' % V(vD + z))
    a('v_bfe_u32 v12, v7, 2, 1'); a('v_bfe_u32 v13, v7, 3, 1'); a('v_lshl_add_u32 v12, v13, 6, v12')
    a('v_lshrrev_b32 v13, 4, v7'); a('v_lshl_add_u32 v12, v13, 2, v12'); a('v_mul_u32_u24 v12, 96, v12')
    a('v_and_b32 v13, 3, v7'); a('v_lshl_add_u32 v12, v13, 3, v12')
    a('s_mul_i32 %s, s4, 36864' % S(sLb))
    a('v_add_u32 %s, %s, v12' % (V(vR), S(sLb)))
    a('s_mul_i32 %s, %s, 96' % (S(sB), S(sCs)))
    def dma(hh):
        a('s_add_u32 %s, %s, %d' % (S(sA), S(sRot), hh)); a('s_and_b32 %s, %s, 7' % (S(sA), S(sA)))
        a('s_lshl_b32 %s, s4, 3' % S(sTmp)); a('s_add_u32 %s, %s, %s' % (S(sA), S(sA), S(sTmp)))
        a('s_mul_i32 %s, %s, 147456' % (S(sA), S(sA))); a('s_add_u32 %s, %s, %s' % (S(sA), S(sA), S(sB)))
        for z in range(12):
            a('s_add_u32 m0, %s, %d' % (S(sLb), 12288 * (hh % 3) + 1024 * z))
            if z and z % 3 == 0: a('s_add_u32 %s, %s, %d' % (S(sA), S(sA), 32 * 1152))
            else: a('s_nop 0')
            a('buffer_load_dwordx4 %s, s[8:11], %s offen %s lds' % (V(vD + z % 3), S(sA), wflags))
    dma(0); dma(1)
    for hh in range(8):
        a('s_waitcnt lgkmcnt(0)')
        if hh + 2 < 8: dma(hh + 2)
        a('s_waitcnt vmcnt(%d)' % (12 * min(2, 7 - hh)))
        n = 0
        for k in range(4):
            for ct in range(3):
                for z in range(2):
                    a('ds_read_b64_tr_b16 %s, %s offset:%d' % (wreg(4 * hh + k, ct, z), V(vR), 12288 * (hh % 3) + 96 * (16 * k + 2 * z) + 32 * ct))

def ostream(a, flag_off, fcnt, wflags='', pre=None, stamp=None):
    st = stamp or (lambda a, i: None)
    a('v_and_b32 v7, 63, v0'); a('v_lshlrev_b32 %s, 4, v7' % V(vL16))
    a('v_and_b32 %s, %s, v7' % (V(vFa), fcnt)); a('v_lshlrev_b32 %s, 2, %s' % (V(vFa), V(vFa)))
    a('s_and_b32 %s, %s, 7' % (S(sRot), S(sCs)))
    a('s_mov_b32 %s, 0x%x' % (S(sSpin), SPIN))
    load_weights(a, wflags)
    a('v_mul_u32_u24 v13, 171, v0'); a('v_lshrrev_b32 v13, 10, v13')
    a('v_mul_u32_u24 v14, 6, v13'); a('v_sub_u32 v14, v0, v14')
    a('v_mul_u32_u24 %s, 2304, v13' % V(vOa)); a('v_lshl_add_u32 %s, v14, 4, %s' % (V(vOa), V(vOa)))
    a('v_lshrrev_b32 v12, 4, v13'); a('v_mul_u32_u24 v12, 3072, v12'); a('v_lshl_add_u32 v12, v14, 9, v12')
    a('v_and_b32 v13, 15, v13'); a('v_lshl_add_u32 %s, v13, 4, v12' % V(vRa))
    a('s_mul_i32 %s, s4, 6144' % S(sTmp)); a('v_add_u32 %s, %s, %s' % (V(vWa), S(sTmp), V(vL16)))
    a('s_mul_i32 %s, %s, 96' % (S(sTmp), S(sCs))); a('s_add_u32 %s, %s, %s' % (S(sOcol), S(sOcol), S(sTmp)))
    a('s_lshl_b32 %s, s4, 16' % S(sTmp)); a('s_add_u32 %s, %s, %s' % (S(sCtx), S(sCtx), S(sTmp)))
    a('s_mov_b32 %s, %s' % (S(sTn), S(sT0))); a('s_mov_b32 %s, %s' % (S(sNeed), S(sNeed0)))
    a('s_mov_b32 %s, 0' % S(sCnt))
    if pre: pre(a)
    st(a, 6)
    FL = 'buffer_load_dword %s, %s, %s, %s offen sc1' % (V(vFl), V(vFa), WS, S(sFo))
    def spin(L, Lok):
        a(L + ':'); a(FL)
        a('s_waitcnt vmcnt(0)')
        a('v_cmp_gt_u32 vcc, %s, %s' % (S(sNeed), V(vFl)))
        a('s_cbranch_vccz ' + Lok)
        a('s_sleep 1')
        a('s_sub_u32 %s, %s, 1' % (S(sSpin), S(sSpin))); a('s_cbranch_scc0 ' + L)
        a('s_endpgm')
    def head_off(hh):
        return ['s_add_u32 %s, %s, %d' % (S(sHh), S(sRot), hh), 's_and_b32 %s, %s, 7' % (S(sHh), S(sHh)),
                's_lshl_b32 %s, %s, 13' % (S(sHh), S(sHh)), 's_add_u32 %s, %s, %s' % (S(sA), S(sNb), S(sHh)),
                's_add_u32 %s, %s, 4096' % (S(sB), S(sA))]
    def xload(j, tt):
        b = 2 * (j % 4) + tt
        return 'buffer_load_dwordx4 %s, %s, %s, %s offen offset:%d sc1' % (V(vX + 8 * (j % 8) + 4 * tt, 4), V(vL16), WS, S(sB if b >= 4 else sA), 1024 * (b % 4))
    NB = ['s_lshl_b32 %s, %s, 18' % (S(sNb), S(sTn)), 's_add_u32 %s, %s, %s' % (S(sNb), S(sNb), S(sCtx))]
    L0 = a.lab('os0'); L0k = a.lab('os0k')
    a(flag_off(sFo, sTn))
    spin(L0, L0k)
    a(L0k + ':')
    a(NB)
    for j in range(8):
        if j % 4 == 0: a(head_off(j // 4))
        a(xload(j, 0)); a(xload(j, 1))
    a('s_waitcnt lgkmcnt(0)')
    a('s_barrier')
    Lloop = a.lab('osl'); Lw = a.lab('osw'); Lwk = a.lab('oswk'); Lend = a.lab('ose'); Lskip = a.lab('oss')
    a('.p2align 3'); a(Lloop + ':')
    for j in range(32):
        sal = []
        if j == 1:
            sal = ['s_mov_b32 %s, %s' % (S(sT), S(sTn)), 's_add_u32 %s, %s, 1' % (S(sCnt), S(sCnt)), 's_cmp_lt_u32 %s, %s' % (S(sCnt), S(sN)),
                   's_cselect_b32 %s, %s, 0' % (S(sTmp), S(sDT)), 's_cselect_b32 %s, %s, 0' % (S(sOo), S(sDNeed))]
        if j == 2: sal = ['s_add_u32 %s, %s, %s' % (S(sTn), S(sTn), S(sTmp)), 's_add_u32 %s, %s, %s' % (S(sNeed), S(sNeed), S(sOo))] + flag_off(sFo, sTn)
        if j == 3: sal = ['s_mul_i32 %s, %s, %d' % (S(sOo), S(sT), 32 * 2304), 's_add_u32 %s, %s, %s' % (S(sOo), S(sOo), S(sOcol))]
        if j == 13: sal = [FL]
        if j == 22: sal = ['v_cmp_gt_u32 vcc, %s, %s' % (S(sNeed), V(vFl))]
        if j == 23: sal = ['s_cbranch_vccnz ' + Lw, Lwk + ':'] + NB
        if j % 4 == 0: sal = head_off((j // 4 + 2) % 8)
        a('s_waitcnt vmcnt(14)')
        for tt in range(2):
            for ct in range(3):
                d = V(vAcc + 12 * tt + 4 * ct, 4)
                a('v_mfma_f32_16x16x32_bf16 %s, %s, %s, %s' % (d, wreg(j, ct), V(vX + 8 * (j % 8) + 4 * tt, 4), d if j else '0'))
                if ct == 2: a(xload(j + 8, tt))
                elif tt == 0: a(sal[:3] if ct == 0 else sal[3:])
    a('s_cmp_eq_u32 s4, 3')
    a('s_nop 2')
    for t in range(6): a('ds_write_b128 %s, %s offset:%d' % (V(vWa), V(vAcc + 4 * t, 4), 1024 * t))
    a('v_xor_b32 %s, 0x8000, %s' % (V(vWa), V(vWa)))
    a('s_waitcnt lgkmcnt(0)')
    a('s_barrier')
    a('s_cbranch_scc1 ' + Lskip)
    for w in range(4):
        for gg in range(2): a('ds_read_b128 %s, %s offset:%d' % (V(vAcc + 8 * w + 4 * gg, 4), V(vRa), 6144 * w + 256 * gg))
    a('v_xor_b32 %s, 0x8000, %s' % (V(vRa), V(vRa)))
    for w in range(1, 4):
        a('s_waitcnt lgkmcnt(%d)' % (6 - 2 * w))
        for i in range(4): a('v_pk_add_f32 %s, %s, %s' % (V(vAcc + 2 * i, 2), V(vAcc + 2 * i, 2), V(vAcc + 8 * w + 2 * i, 2)))
    for i in range(4): a('v_cvt_pk_bf16_f32 %s, %s, %s' % (V(vPk + i), V(vAcc + 2 * i), V(vAcc + 2 * i + 1)))
    a('buffer_store_dwordx4 %s, %s, s[24:27], %s offen' % (V(vPk, 4), V(vOa), S(sOo)))
    a(Lskip + ':')
    a('s_cmp_lt_u32 %s, %s' % (S(sCnt), S(sN)))
    a('s_cbranch_scc1 ' + Lloop)
    a('s_branch ' + Lend)
    spin(Lw, Lwk)
    a(Lend + ':')
    a('s_waitcnt vmcnt(0)')
```

```python
from common import *

sW0, sW1, sO0, sO1, sN, sT0 = 32, 33, 34, 35, 36, 37
sTc, sTp1, sTp2, sCnt, sSlotR, sSlotW, sTmp, sXo, sSt0, sSt1, sM0, sScale = 39, 40, 41, 42, 43, 44, 45, 46, 47, 48, 49, 50

vXb, vXr, vWr = 4, 6, 8
vOffX, vOffW, vOffO, vFlagOff, vFlagVal = 10, 11, 12, 13, 14
vPK = 16
vXF = 32
vACC = 64
def wreg(m, tau, j, NK, z=None):
    i = ((m * 2 + tau) * NK + j) * 4
    i = 256 + i if i < 256 else 224 + i - 256
    return U(i, 4) if z is None else U(i + 2 * z, 2)
def acc(P, m, tau, tt): return vACC + 32 * P + 16 * m + 8 * tau + 4 * tt

def setup_lanes(a, KD):
    PX = KD * 2
    XS = 32 * PX
    a('v_and_b32 v1, 63, v0')
    a('v_lshrrev_b32 v2, 3, v0')
    a('v_mul_u32_u24 %s, %d, v2' % (V(vOffX), PX))
    a('v_lshrrev_b32 v2, 4, v0')
    a('v_xor_b32 v2, v2, v0')
    a('v_and_b32 v2, 7, v2')
    a('v_lshl_add_u32 %s, v2, 4, %s' % (V(vOffX), V(vOffX)))
    a('v_lshrrev_b32 v2, 4, v1')
    a('v_bfe_u32 v3, v1, 1, 3')
    a('v_xor_b32 v2, v2, v3')
    a('v_and_b32 v3, 15, v1')
    a('v_lshlrev_b32 v3, 7, v3')
    a('v_lshl_add_u32 %s, v2, 4, v3' % V(vXb))
    a('v_xor_b32 %s, 64, %s' % (V(vXb + 1), V(vXb)))
    a('v_lshrrev_b32 v2, 4, v0')
    a('v_lshlrev_b32 %s, 13, v2' % V(vOffW))
    a('v_lshrrev_b32 v2, 7, v0')
    a('v_lshrrev_b32 v3, 4, v1')
    a('v_lshl_add_u32 v3, v2, 2, v3')
    a('v_bfe_u32 v2, v1, 1, 3')
    a('v_xor_b32 v2, v2, v3')
    a('v_lshl_add_u32 %s, v2, 5, %s' % (V(vOffW), V(vOffW)))
    a('v_and_b32 v2, 1, v1')
    a('v_lshl_add_u32 %s, v2, 4, %s' % (V(vOffW), V(vOffW)))
    a('v_bfe_u32 v2, v1, 2, 3')
    a('v_xor_b32 v3, s4, v2')
    a('v_lshlrev_b32 v3, 5, v3')
    a('v_and_b32 v2, 3, v2')
    a('v_lshl_add_u32 v3, v2, 8, v3')
    a('v_lshrrev_b32 v2, 4, v1')
    a('v_lshl_add_u32 v3, v2, 11, v3')
    a('v_and_b32 v2, 3, v1')
    a('v_lshl_add_u32 v3, v2, 3, v3')
    a('v_add_u32 %s, %d, v3' % (V(vWr), 2 * XS))
    a('v_xor_b32 v3, 0x80, v3')
    a('v_add_u32 %s, %d, v3' % (V(vWr + 1), 2 * XS))
    a('s_lshl_b32 %s, s4, 11' % S(sTmp))
    a('v_lshl_add_u32 %s, v1, 4, %s' % (V(vOffO), S(sTmp)))

def x_dma(KD, xflags):
    return [('s_add_u32 m0, %s, %d' % (S(sM0), 3968 * kb),
             'buffer_load_dwordx4 %s, s[8:11], %s offen offset:%d %s lds' % (V(vOffX), S(sXo), 128 * kb, xflags))
            for kb in range(KD // 64)]

def default_next(dt):
    def f(dst, src): return ['s_add_u32 %s, %s, %d' % (S(dst), S(src), dt)]
    return f

def pack2(t0, t1, pk, scale=None):
    ins = []
    if scale:
        for t in (t0, t1):
            for i in range(4): ins.append('v_mul_f32 %s, %s, %s' % (V(t + i), scale, V(t + i)))
    for j, (t, hf) in enumerate([(t0, 0), (t1, 0), (t0, 1), (t1, 1)]):
        ins.append('v_cvt_pk_bf16_f32 %s, %s, %s' % (V(pk + j), V(t + 2 * hf), V(t + 2 * hf + 1)))
    return ins

def load_weights(a, KD, wflags):
    NK = KD // 32; XS = 64 * KD; STG = 2 * XS
    def dma(u):
        o = []
        for m in range(2):
            for pp in range(2):
                o.append('s_add_u32 m0, %s, %d' % (S(sM0), STG + (u % 4) * 16384 + m * 8192 + pp * 4096))
                o.append('s_add_u32 %s, %s, %d' % (S(sTmp), S(sW0 + m), (32 * u + 16 * pp) * 8192))
                o.append('buffer_load_dwordx4 %s, %s, %s offen %s lds' % (V(vOffW), S(12 + 4 * m, 4), S(sTmp), wflags))
        return o
    a('s_lshl_b32 %s, s4, 10' % S(sM0))
    for u in range(3): a(dma(u))
    for u in range(NK):
        left = min(2, NK - 1 - u)
        a('s_waitcnt vmcnt(%d) lgkmcnt(0)' % (4 * left))
        a('s_barrier')
        if u + 3 < NK: a(dma(u + 3))
        for m in range(2):
            for tau in range(2):
                for z in range(2):
                    a('ds_read_b64_tr_b16 %s, %s offset:%d' % (wreg(m, tau, u, NK, z), V(vWr + tau),
                      (u % 4) * 16384 + m * 8192 + z * 1024))

def prologue(a, KD, nxt, xflags, wflags):
    XS = 64 * KD
    setup_lanes(a, KD)
    a('s_mov_b32 %s, %s' % (S(sTc), S(sT0)))
    a(nxt(sTp1, sTc))
    for slot, t in ((0, sTc), (1, sTp1)):
        a('s_lshl_b32 %s, s4, 10' % S(sM0))
        if slot: a('s_add_u32 %s, %s, %d' % (S(sM0), S(sM0), XS))
        a('s_mul_i32 %s, %s, %d' % (S(sXo), S(t), XS))
        for s_, d in x_dma(KD, xflags): a([s_, 's_nop 0', d])
    load_weights(a, KD, wflags)
    a('s_mov_b32 %s, 0x%x' % (S(sScale), QSCALE))
    a('s_mov_b32 %s, 0' % S(sCnt))
    a('s_mov_b32 %s, 0' % S(sSlotR))
    a('s_mov_b32 %s, %d' % (S(sSlotW), 2 * XS))
    for s in range(2): a('v_mov_b32 %s, %s' % (V(vXr + s), V(vXb + s)))

def xfrag(J, tt): return V(vXF + 8 * (J % 4) + 4 * tt, 4)
def xread(J, tt, NK):
    j = J % NK
    return 'ds_read_b128 %s, %s offset:%d' % (xfrag(J, tt), V(vXr + j % 2), 4096 * (j // 2) + 2048 * tt)

def tile_mfmas(P, KD, mode, accset=None):
    NK = KD // 32
    main = []
    for j in range(NK):
        for tt in range(2):
            for m in range(2):
                for tau in range(2):
                    d = V(acc(P if accset is None else accset, m, tau, tt), 4)
                    c = d if j else '0'
                    w = wreg(m, tau, j, NK); xf = xfrag(P * NK + j, tt)
                    if m == 1 and mode == 'kv': main.append('v_mfma_f32_16x16x32_bf16 %s, %s, %s, %s' % (d, xf, w, c))
                    else: main.append('v_mfma_f32_16x16x32_bf16 %s, %s, %s, %s' % (d, w, xf, c))
    return main

def stream_fill(put, P, KD, nxt, xflags, vm, after_bar=None):
    NK = KD // 32; XS = 64 * KD
    for j in range(NK):
        if j == NK - 2:
            put(8 * j, ['s_waitcnt vmcnt(%d)' % vm, 's_barrier'])
        put(8 * j, xread(P * NK + j + 2, 0, NK))
        put(8 * j + 1, xread(P * NK + j + 2, 1, NK))
        if j == NK - 2 and after_bar: put(8 * j + 2, after_bar)
        put(8 * j + 7, 's_waitcnt lgkmcnt(2)')
    put(2, nxt(sTp2, sTp1))
    put(3, ['s_add_u32 %s, %s, 2' % (S(sTmp), S(sCnt)), 's_mul_i32 %s, %s, %d' % (S(sXo), S(sTp2), XS)])
    put(4, ['s_cmp_lt_u32 %s, %s' % (S(sTmp), S(sN)), 's_cselect_b32 %s, %s, 0' % (S(sXo), S(sXo))])
    put(5, ['s_lshl_b32 %s, s4, 10' % S(sM0), 's_add_u32 %s, %s, %s' % (S(sM0), S(sM0), S(sSlotW))])
    for kb, (s_, d) in enumerate(x_dma(KD, xflags)):
        b = 8 * (1 + kb // 2) + 2 + 2 * (kb % 2)
        put(b, s_); put(b + 1, d)
    b = 8 * (NK - 5)
    put(b + 2, ['s_add_u32 %s, %s, %d' % (S(sSlotR), S(sSlotR), XS), 's_cmp_eq_u32 %s, %d' % (S(sSlotR), 4 * XS)])
    put(b + 3, ['s_cselect_b32 %s, 0, %s' % (S(sSlotR), S(sSlotR)), 's_add_u32 %s, %s, %d' % (S(sSlotW), S(sSlotW), XS)])
    put(b + 4, ['s_cmp_eq_u32 %s, %d' % (S(sSlotW), 4 * XS), 's_cselect_b32 %s, 0, %s' % (S(sSlotW), S(sSlotW))])
    for s in range(2):
        put(8 * (NK - 4 + s) + 2, 'v_add_u32 %s, %s, %s' % (V(vXr + s), S(sSlotR), V(vXb + s)))

def spread(put, fill, ins, lo, hi, cap=2):
    free = [g for g in range(lo, hi) for _ in range(max(0, cap - len(fill.get(g, []))))]
    assert len(free) >= len(ins), (len(free), len(ins))
    for i, x in enumerate(ins): put(free[(i * len(free)) // len(ins)], x)

def pstream(a, KD, mode, ostride, nxt, flag=True, xflags='', wflags='', stflags='sc1', pre_loop=None, dbg=''):
    NK = KD // 32; ND = KD // 64
    prologue(a, KD, nxt, xflags, wflags)
    if pre_loop: pre_loop(a)
    scale = S(sScale) if mode == 'qq' else None
    a('s_lshl_b32 %s, s2, 13' % S(sSt0))
    a('s_add_u32 %s, %s, 0x%x' % (S(sSt0), S(sSt0), WS_DUMP))
    a('s_mov_b32 %s, %s' % (S(sSt1), S(sSt0)))
    a('v_mov_b32 %s, 0' % V(vFlagVal))
    a('s_waitcnt vmcnt(0) lgkmcnt(0)')
    a('s_barrier')
    for J in range(2):
        for tt in range(2): a(xread(J, tt, NK))
    a('s_waitcnt lgkmcnt(2)')
    def stores(P):
        ins = []
        for m in range(2):
            for b in range(2):
                if m == 1 and mode == 'kv': t0, t1 = acc(P, m, b, 0), acc(P, m, b, 1)
                else: t0, t1 = acc(P, m, 0, b), acc(P, m, 1, b)
                pk = vPK + 8 * m + 4 * b
                ins += pack2(t0, t1, pk, scale)
                ins.append('buffer_store_dwordx4 %s, %s, s[20:23], %s offen offset:%d %s' %
                           (V(pk, 4), V(vOffO), S(sSt0 + m), 1024 * b, stflags))
        return ins
    Lloop = a.lab('ps_loop')
    a(Lloop + ':')
    for P in range(2):
        fill = {}
        def put(i, x): fill.setdefault(i, []).extend(x if isinstance(x, list) else [x])
        main = tile_mfmas(P, KD, mode)
        fl = 'buffer_store_dword %s, %s, s[20:23], 0 offen sc1' % (V(vFlagVal), V(vFlagOff)) if flag is True else None
        stream_fill(put, P, KD, nxt, xflags, ND + 4, fl)
        e = 8 * (NK - 1)
        put(e + 2, ['s_mul_i32 %s, %s, %d' % (S(sTmp), S(sTc), ostride), 's_add_u32 %s, %s, %s' % (S(sSt0), S(sO0), S(sTmp))])
        put(e + 3, ['s_add_u32 %s, %s, %s' % (S(sSt1), S(sO1), S(sTmp)), 'v_mov_b32 %s, %s' % (V(vFlagVal), S(sCnt))])
        put(e + 4, ['s_mov_b32 %s, %s' % (S(sTc), S(sTp1)), 's_mov_b32 %s, %s' % (S(sTp1), S(sTp2))])
        put(e + 5, ['s_add_u32 %s, %s, 1' % (S(sCnt), S(sCnt))] + (['s_cmp_lt_u32 %s, %s' % (S(sCnt), S(sN))] if P else []))
        spread(put, fill, stores(1 - P), 8 * (2 + ND // 2), 8 * (NK - 2), cap=1 if mode == 'kv' else 2)
        body = weave(main, fill)
        if 'nost' in dbg: body = [x if 'buffer_store_dwordx4' not in x else 's_nop 0' for x in body]
        if 'x0' in dbg: body = [x if not x.startswith('s_cselect_b32 s46') else 's_mov_b32 s46, 0' for x in body]
        if 'st0' in dbg: body = [x if not x.startswith('s_mul_i32 s45') else 's_mov_b32 s45, 0' for x in body]
        if 'nodma' in dbg: body = [x if ' lds' not in x else 's_nop 0' for x in body]
        a(body)
    a('s_cbranch_scc1 ' + Lloop)
    a('s_nop 7')
    a(stores(1))
    a('s_waitcnt vmcnt(0) lgkmcnt(0)')
    a('s_barrier')
    if flag:
        a('v_mov_b32 %s, %s' % (V(vFlagVal), S(sN)))
        a('buffer_store_dword %s, %s, s[20:23], 0 offen sc1' % (V(vFlagVal), V(vFlagOff)))
```

```python
from common import *
import pstream as P
from pstream import sTc, sTp1, sTp2, sCnt, sN, sTmp, sScale
WS = 's[20:23]'
KD = 576; NK = 18; ND = 9
L_Q = 4 * 64 * KD
sHm, sKV, sKV2, sKm, sCx, sFch, sSpin, sFq, sNeed, sKVb, sKmb, sCxb = range(52, 64)
vL16, vQw, vQr, vIdx, vZ, vFv, vFo = 1, 2, 3, 12, 13, 14, 15
vPK = 16
vO, vQ, vS, vSm = 64, 96, 112, 120
vL = 124
vK, vV, vM, vC, vB = 128, 160, 192, 208, 216
vOne = 220
MF = 'v_mfma_f32_16x16x32_bf16 %s, %s, %s, %s'

def cross_max(x, t):
    return ['v_mov_b32 %s, %s' % (V(t), V(x)), 's_nop 1', 'v_permlane16_swap_b32 %s, %s' % (V(x), V(t)),
            'v_max_f32 %s, %s, %s' % (V(x), V(x), V(t)), 'v_mov_b32 %s, %s' % (V(t), V(x)), 's_nop 1',
            'v_permlane32_swap_b32 %s, %s' % (V(x), V(t)), 'v_max_f32 %s, %s, %s' % (V(x), V(x), V(t))]

def spin(a, so, need, t):
    L = a.lab('qs'); Lok = a.lab('qsk')
    a(L + ':')
    a('buffer_load_dword %s, %s, %s, %s offen sc1' % (V(t), V(vFo), WS, S(so)))
    a('s_waitcnt vmcnt(0)')
    a('v_cmp_le_u32 vcc, %s, %s' % (need, V(t)))
    a('s_cbranch_vccnz ' + Lok)
    a('s_sub_u32 %s, %s, 1' % (S(sSpin), S(sSpin))); a('s_cbranch_scc0 ' + L)
    a('s_endpgm')
    a(Lok + ':')

def attention(a):
    a('s_nop 3')
    for m in range(2):
        for tt in range(2):
            pk = vPK + 8 * m + 4 * tt
            a(P.pack2(P.acc(0, m, 0, tt), P.acc(0, m, 1, tt), pk, S(sScale)))
            a('ds_write_b128 %s, %s offset:%d' % (V(vQw), V(pk, 4), 8192 * m + 1024 * tt))
    a('v_mov_b64 %s, 0' % V(vSm, 2)); a('v_mov_b64 %s, 0' % V(vSm + 2, 2))
    a('s_waitcnt lgkmcnt(0)')
    a('s_barrier')
    for k in range(4): a('ds_read_b128 %s, %s offset:%d' % (V(vQ + 4 * k, 4), V(vQr), 2048 * k))
    spin(a, sFch, S(sNeed), vPK)
    for i in range(4): a('buffer_load_dwordx4 %s, %s, %s, %s offen offset:%d sc1' % (V(vM + 4 * i, 4), V(vL16), WS, S(sKm), 1024 * i))
    a('s_waitcnt lgkmcnt(0)')
    for k in range(4):
        for tau in range(2):
            d = V(vS + 4 * tau, 4)
            a(MF % (d, V(vK + 4 * (2 * k + tau), 4), V(vQ + 4 * k, 4), d if k else V(vC + 4 * tau, 4)))
    T = vPK + 8
    a('s_nop 7')
    a('v_max3_f32 %s, %s, %s, %s' % (V(T), V(vS), V(vS + 1), V(vS + 2)))
    a('v_max3_f32 %s, %s, %s, %s' % (V(T), V(T), V(vS + 3), V(vS + 4)))
    a('v_max3_f32 %s, %s, %s, %s' % (V(T), V(T), V(vS + 5), V(vS + 6)))
    a('v_max_f32 %s, %s, %s' % (V(T), V(T), V(vS + 7)))
    for tp in range(2):
        a('s_waitcnt vmcnt(%d)' % (2 - 2 * tp))
        for z in range(2): a('v_mov_b64 %s, %s' % (V(vPK + 4 * tp + 2 * z, 2), V(vM + 4 * (2 * tp + z), 2)))
        a('s_nop 1')
        a('v_smfmac_f32_16x16x64_bf16 %s, %s, %s, %s' % (V(vSm, 4), V(vPK + 4 * tp, 4), V(vQ + 8 * tp, 8), V(vIdx)))
    a('s_nop 7')
    for i in range(2): a('v_add_f32 %s, %s, %s' % (V(vSm + i), V(vSm + i), V(vSm + 2 + i)))
    a('v_max3_f32 %s, %s, %s, %s' % (V(T), V(T), V(vSm), V(vSm + 1)))
    a(cross_max(T, T + 1))
    vals = list(range(vS, vS + 10))
    for x in vals: a('v_sub_f32 %s, %s, %s' % (V(x), V(x), V(T)))
    for x in vals[8:] + vals[:8]: a('v_exp_f32 %s, %s' % (V(x), V(x)))
    Px = T + 4
    a('v_cvt_pk_bf16_f32 %s, %s, %s' % (V(vB), V(vSm), V(vSm + 1)))
    a('v_cvt_pk_bf16_f32 %s, %s, %s' % (V(vB + 3), V(vSm), V(vSm + 1)))
    for j, o in enumerate((0, 4, 2, 6)): a('v_cvt_pk_bf16_f32 %s, %s, %s' % (V(Px + j), V(vS + o), V(vS + o + 1)))
    M16 = 'v_mfma_f32_16x16x16_bf16 %s, %s, %s, 0'
    a(M16 % (V(vL, 4), V(vOne, 2), V(vB, 2)))
    for f in range(8): a(M16 % (V(vO + 4 * f, 4), V(vM + 4 * (f // 2) + 2, 2), V(vB + 2 * (f % 2), 2)))
    a(MF % (V(vL, 4), V(vOne, 4), V(Px, 4), V(vL, 4)))
    for f in range(8): a(MF % (V(vO + 4 * f, 4), V(vV + 4 * f, 4), V(Px, 4), V(vO + 4 * f, 4)))
    a('v_rcp_f32 %s, %s' % (V(vL), V(vL)))
    a('s_add_u32 %s, %s, 4096' % (S(sTmp), S(sCx)))
    for k in range(4):
        x = vO + 8 * k; pk = vQ + 4 * k
        for i in range(8): a('v_mul_f32 %s, %s, %s' % (V(x + i), V(x + i), V(vL)))
        for j, o in enumerate((0, 4, 2, 6)): a('v_cvt_pk_bf16_f32 %s, %s, %s' % (V(pk + j), V(x + o), V(x + o + 1)))
        a('buffer_store_dwordx4 %s, %s, %s, %s offen offset:%d sc1' % (V(pk, 4), V(vL16), WS, S(sTmp if k >= 2 else sCx), 2048 * (k % 2)))

def qb(a, nxt, xflags='', wflags='', pre=None, stamp=None):
    st = stamp or (lambda a, i: None)
    P.prologue(a, KD, nxt, xflags, wflags)
    if pre: pre(a)
    a('v_and_b32 v17, 63, v0'); a('v_lshlrev_b32 %s, 4, v17' % V(vL16))
    a('s_lshl_b32 %s, s4, 11' % S(sTmp)); a('s_add_u32 %s, %s, %d' % (S(sTmp), S(sTmp), L_Q))
    a('v_add_u32 %s, %s, %s' % (V(vQw), S(sTmp), V(vL16)))
    a('s_lshr_b32 %s, s4, 1' % S(sKV)); a('s_and_b32 %s, s4, 1' % S(sKV2))
    a('s_add_u32 %s, %s, %s' % (S(sHm), S(sHm), S(sKV)))
    a('s_lshl_b32 %s, %s, 13' % (S(sKV), S(sKV))); a('s_lshl_b32 %s, %s, 10' % (S(sKV2), S(sKV2)))
    a('s_add_u32 %s, %s, %s' % (S(sTmp), S(sKV), S(sKV2))); a('s_add_u32 %s, %s, %d' % (S(sTmp), S(sTmp), L_Q))
    a('v_add_u32 %s, %s, %s' % (V(vQr), S(sTmp), V(vL16)))
    a('s_lshl_b32 %s, %s, 13' % (S(sCxb), S(sHm))); a('s_add_u32 %s, %s, %s' % (S(sCxb), S(sCxb), S(sKV2)))
    a('s_add_u32 %s, %s, 0x%x' % (S(sCxb), S(sCxb), WS_CTXB))
    a('s_lshl_b32 %s, %s, 14' % (S(sKVb), S(sHm))); a('s_add_u32 %s, %s, 0x%x' % (S(sKVb), S(sKVb), WS_KVB))
    a('s_lshl_b32 %s, %s, 12' % (S(sKmb), S(sHm))); a('s_add_u32 %s, %s, 0x%x' % (S(sKmb), S(sKmb), WS_KVM))
    a('s_lshl_b32 %s, %s, 7' % (S(sFch), S(sHm))); a('s_add_u32 %s, %s, 0x%x' % (S(sFch), S(sFch), FLAG(FL_CH)))
    a('s_lshl_b32 %s, s4, 2' % S(sTmp)); a('s_add_u32 %s, %s, %s' % (S(sFq), S(sFq), S(sTmp)))
    a('s_mov_b32 %s, 0x%x' % (S(sSpin), SPIN))
    a('v_mov_b32 %s, 0' % V(vZ)); a('v_mov_b32 %s, 0' % V(vFv))
    a('v_min_u32 %s, 1, v17' % V(vFo)); a('v_lshlrev_b32 %s, 28, %s' % (V(vFo), V(vFo)))
    a('v_mov_b32 v18, 0x44444444'); a('v_mov_b32 v19, 0xeeeeeeee')
    a('v_and_b32 v20, 2, v17'); a('v_cmp_eq_u32 vcc, 0, v20'); a('s_nop 1')
    a('v_cndmask_b32 %s, v19, v18, vcc' % V(vIdx))
    a('v_mov_b32 %s, 0' % V(vB + 1)); a('v_mov_b32 %s, 0' % V(vB + 2))
    for i in range(4): a('v_mov_b32 %s, 0x3f803f80' % V(vOne + i))
    a('v_and_b32 v18, 15, v17'); a('v_lshrrev_b32 v19, 4, v17'); a('v_lshlrev_b32 v19, 2, v19'); a('v_sub_u32 v18, v18, v19')
    a('s_lshr_b32 %s, %s, 6' % (S(sTmp), S(sKV2))); a('v_add_u32 v18, %s, v18' % S(sTmp))
    a('v_mov_b32 v19, 0xff800000')
    for tau in range(2):
        for r in range(4):
            a('v_cmp_le_i32 vcc, %d, v18' % (16 * tau + r)); a('s_nop 1')
            a('v_cndmask_b32 %s, v19, %s, vcc' % (V(vC + 4 * tau + r), V(vZ)))
    spin(a, sFch, '1', vPK)
    st(a, 4)
    a('s_waitcnt vmcnt(0) lgkmcnt(0)')
    a('s_barrier')
    for J in range(2):
        for tt in range(2): a(P.xread(J, tt, NK))
    a('s_waitcnt lgkmcnt(2)')
    Lloop = a.lab('qb_loop')
    a(Lloop + ':')
    for ph in range(2):
        fill = {}
        def put(i, x): fill.setdefault(i, []).extend(x if isinstance(x, list) else [x])
        main = [m.replace('XXX', '') for m in P.tile_mfmas(ph, KD, 'qq', accset=0)]
        P.stream_fill(put, ph, KD, nxt, xflags, ND + 17)
        put(6, ['s_lshl_b32 %s, %s, 19' % (S(sKV), S(sTc)), 's_add_u32 %s, %s, %s' % (S(sKV), S(sKV), S(sKVb))])
        put(14, ['s_lshl_b32 %s, %s, 17' % (S(sKm), S(sTc)), 's_add_u32 %s, %s, %s' % (S(sKm), S(sKm), S(sKmb))])
        put(22, ['s_lshl_b32 %s, %s, 18' % (S(sCx), S(sTc)), 's_add_u32 %s, %s, %s' % (S(sCx), S(sCx), S(sCxb))])
        put(30, 's_add_u32 %s, %s, 1' % (S(sNeed), S(sTc)))
        put(50, ['s_waitcnt vmcnt(%d)' % ND, 'buffer_store_dword %s, %s, %s, %s offen sc1' % (V(vFv), V(vFo), WS, S(sFq))])
        for f in range(16):
            g = 8 * (7 + f // 2) + 2 + 2 * (f % 2)
            if f and f % 4 == 0: put(g - 4, 's_add_u32 %s, %s, 4096' % (S(sKV), S(sKV)))
            put(g, 'buffer_load_dwordx4 %s, %s, %s, %s offen offset:%d sc1' % (V(vK + 4 * f, 4), V(vL16), WS, S(sKV), 1024 * (f % 4)))
        e = 8 * (NK - 1)
        put(e + 3, ['s_mov_b32 %s, %s' % (S(sTc), S(sTp1)), 's_mov_b32 %s, %s' % (S(sTp1), S(sTp2))])
        put(e + 4, ['s_add_u32 %s, %s, 1' % (S(sCnt), S(sCnt)), 'v_mov_b32 %s, %s' % (V(vFv), S(sCnt))])
        a(weave(main, fill))
        attention(a)
    a('s_cmp_lt_u32 %s, %s' % (S(sCnt), S(sN)))
    a('s_cbranch_scc1 ' + Lloop)
    a('s_waitcnt vmcnt(0)')
    a('buffer_store_dword %s, %s, %s, %s offen sc1' % (V(vFv), V(vFo), WS, S(sFq)))
```

```python
import sys, os
from common import *
import pstream as P, chain as C, att as T, qb as Q, ostream as O, hazard

def gen(opt, name):
    a = Asm()
    diag = opt.get('diag')
    def stamp(a, idx, v=20):
        if not diag: return
        a('s_memrealtime s[96:97]'); a('s_memtime s[98:99]'); a('s_waitcnt lgkmcnt(0)')
        a('v_mov_b32 v%d, s98' % v); a('v_mov_b32 v%d, s96' % (v + 1))
        a('s_lshl_b32 s96, s2, 6'); a('s_add_u32 s96, s96, %d' % (WS_STAMP + idx * 8))
        a('v_mov_b32 v%d, 0' % (v + 2))
        a('buffer_store_dwordx2 v[%d:%d], v%d, s[20:23], s96 offen' % (v, v + 1, v + 2))
    def far(cond, lab):
        a('s_cbranch_%s %s' % (cond, lab))
    def flags_ready(a, v=20):
        L = a.lab('fr'); Lok = a.lab('frk')
        a('s_mov_b32 s95, 0x%x' % SPIN)
        a('v_mov_b32 v%d, 0' % (v + 1))
        a(L + ':')
        a('buffer_load_dword v%d, v%d, s[28:31], 0 offen sc1' % (v, v + 1))
        a('s_waitcnt vmcnt(0)')
        a('v_cmp_ne_u32 vcc, 0, v%d' % v)
        a('s_cbranch_vccnz ' + Lok)
        a('s_sub_u32 s95, s95, 1'); a('s_cbranch_scc0 ' + L)
        a('s_endpgm')
        a(Lok + ':')
    def flag_lane(off_code):
        a(off_code)
        a('v_min_u32 v1, 1, v0'); a('v_lshlrev_b32 v1, 28, v1'); a('v_add_u32 %s, s7, v1' % V(P.vFlagOff))
    def ps_pre(a): flags_ready(a); stamp(a, 1)
    xf, wf = opt.get('xf', ''), opt.get('wf', 'nt')
    a('s_cmp_ge_u32 s2, 256'); far('scc1', 'Lend')
    srd(a, 20, 'ws'); srd(a, 28, 'dbg')
    a('v_lshrrev_b32 v1, 6, v0')
    a('s_and_b32 s5, s2, 7'); a('s_lshr_b32 s6, s2, 3')
    a('v_readfirstlane_b32 s4, v1')
    a('s_waitcnt lgkmcnt(0)')
    stamp(a, 0)
    a('s_cmp_eq_u32 s5, 0'); far('scc1', 'Lchain')
    a('s_cmp_eq_u32 s5, 1'); far('scc1', 'Lpb')
    a('s_cmp_lt_u32 s5, 4'); far('scc1', 'Lqa')
    srd(a, 8, 'A_ckv'); srd(a, 12, 'A_wuk'); srd(a, 16, 'A_wuv')
    a('s_sub_u32 s3, s5, 4'); a('s_lshl_b32 s3, s3, 3'); a('s_lshr_b32 s7, s6, 2'); a('s_add_u32 s3, s3, s7')
    a('s_lshl_b32 s32, s3, 8'); a('s_mov_b32 s33, s32')
    a('s_lshl_b32 s34, s3, 14'); a('s_add_u32 s34, s34, 0x%x' % WS_KVA); a('s_add_u32 s35, s34, 8192')
    a('s_mov_b32 s36, 16'); a('s_and_b32 s37, s6, 3')
    flag_lane(['s_lshl_b32 s7, s3, 5', 's_add_u32 s7, s7, s37', 's_lshl_b32 s7, s7, 2', 's_add_u32 s7, s7, 0x%x' % FLAG(FL_PA)])
    a('s_waitcnt lgkmcnt(0)')
    P.pstream(a, 512, 'kv', 16384 * 32, P.default_next(4), xflags=xf, wflags=wf, pre_loop=ps_pre, flag='end')
    stamp(a, 2)
    a('s_mov_b32 s32, s3'); a('s_and_b32 s33, s6, 3'); a('s_sub_u32 s34, 7, s33')
    def att_wait(a):
        L = a.lab('aw'); Lok = a.lab('awk')
        a('s_lshl_b32 s7, s3, 7'); a('s_add_u32 s7, s7, 0x%x' % FLAG(FL_PA))
        a('s_lshr_b32 s94, s3, 1'); a('s_lshl_b32 s94, s94, 7'); a('s_add_u32 s94, s94, 0x%x' % FLAG(FL_QA))
        a('v_mov_b32 v8, 0')
        a(L + ':')
        a('buffer_load_dwordx4 v[16:19], v8, s[20:23], s7 offen sc1')
        a('buffer_load_dwordx4 v[20:23], v8, s[20:23], s94 offen sc1')
        a('s_waitcnt vmcnt(0)')
        a('v_min3_u32 v16, v16, v17, v18'); a('v_min3_u32 v16, v16, v19, v20'); a('v_min3_u32 v16, v16, v21, v22'); a('v_min_u32 v16, v16, v23')
        a('v_cmp_le_u32 vcc, 16, v16')
        a('s_cbranch_vccnz ' + Lok)
        a('s_sleep 2')
        a('s_sub_u32 s95, s95, 1'); a('s_cbranch_scc0 ' + L)
        a('s_endpgm')
        a(Lok + ':')
    T.att(a, att_wait, opt, (lambda a, i: stamp(a, i, 8)))
    stamp(a, 5)
    a('s_cmp_ge_u32 s6, 24'); far('scc1', 'Lfin')
    srd(a, 8, 'A_wo')
    a('s_cmp_ge_u32 s6, 12'); a('s_cselect_b32 s7, 1, 0'); a('s_cselect_b32 s94, 12, 0')
    a('s_sub_u32 %s, s6, s94' % S(O.sCs))
    a('s_sub_u32 s94, s5, 4'); a('s_lshl_b32 s94, s94, 1'); a('s_add_u32 %s, s94, s7' % S(O.sT0))
    a('s_mov_b32 %s, 8' % S(O.sDT)); a('s_mov_b32 %s, 8' % S(O.sN))
    a('s_mov_b32 %s, 0x%x' % (S(O.sCtx), WS_CTXA)); a('s_mov_b32 %s, 0' % S(O.sOcol))
    a('s_lshl_b32 %s, s4, 5' % S(O.sFb)); a('s_add_u32 %s, %s, 0x%x' % (S(O.sFb), S(O.sFb), FLAG(FL_AT)))
    a('s_mov_b32 %s, 1' % S(O.sNeed0)); a('s_mov_b32 %s, 0' % S(O.sDNeed))
    a('s_mov_b32 s93, 0x38'); a('s_mov_b32 s92, 7')
    a('s_branch Los')
    a('Lpb:')
    srd(a, 8, 'B_x'); srd(a, 12, 'B_wk'); srd(a, 16, 'B_wv')
    a('s_lshl_b32 s32, s6, 8'); a('s_mov_b32 s33, s32')
    a('s_lshl_b32 s34, s6, 14'); a('s_add_u32 s34, s34, 0x%x' % WS_KVB); a('s_add_u32 s35, s34, 8192')
    a('s_mov_b32 s36, 64'); a('s_mov_b32 s37, 0')
    flag_lane(['s_lshl_b32 s7, s6, 7', 's_add_u32 s7, s7, 0x%x' % FLAG(FL_PB)])
    a('s_waitcnt lgkmcnt(0)')
    P.pstream(a, 576, 'kv', 16384 * 32, P.default_next(1), xflags=xf, wflags=wf, pre_loop=ps_pre)
    a('s_branch Lfin')
    a('Lqa:')
    srd(a, 8, 'A_x'); srd(a, 12, 'A_wq'); srd(a, 16, 'A_wq')
    a('s_cmp_eq_u32 s2, 251'); a('s_cbranch_scc0 Lqa1')
    for i in range(4): a('v_mov_b32 v%d, 0' % (4 + i))
    a('v_lshlrev_b32 v1, 4, v0')
    for i in range(4):
        a('s_mov_b32 s7, %d' % (WS_FLAGS + 4096 * i))
        a('buffer_store_dwordx4 v[4:7], v1, s[20:23], s7 offen sc1')
    a('v_min_u32 v1, 1, v0'); a('v_lshlrev_b32 v1, 28, v1'); a('v_mov_b32 v2, 1')
    a('s_waitcnt vmcnt(0)'); a('s_barrier')
    a('buffer_store_dword v2, v1, s[28:31], 0 offen sc1')
    a('Lqa1:')
    a('s_sub_u32 s3, s5, 2'); a('s_lshl_b32 s3, s3, 3'); a('s_lshr_b32 s7, s6, 2'); a('s_add_u32 s3, s3, s7')
    a('s_lshl_b32 s32, s3, 9'); a('s_add_u32 s33, s32, 256')
    a('s_lshl_b32 s34, s3, 14'); a('s_add_u32 s34, s34, 0x%x' % WS_QA); a('s_add_u32 s35, s34, 8192')
    a('s_mov_b32 s36, 16'); a('s_and_b32 s37, s6, 3')
    flag_lane(['s_lshl_b32 s7, s3, 5', 's_add_u32 s7, s7, s37', 's_lshl_b32 s7, s7, 2', 's_add_u32 s7, s7, 0x%x' % FLAG(FL_QA)])
    a('s_waitcnt lgkmcnt(0)')
    P.pstream(a, 576, 'qq', 8192 * 32, P.default_next(4), xflags=xf, wflags=wf, pre_loop=ps_pre, flag='end')
    stamp(a, 2)
    a('s_cmp_ge_u32 s6, 28'); far('scc1', 'Lfin')
    a('s_sub_u32 s3, s5, 2')
    a('s_cmp_ge_u32 s6, 16'); far('scc1', 'Lob')
    srd(a, 8, 'B_x'); srd(a, 12, 'B_wq'); srd(a, 16, 'B_wq')
    a('s_lshl_b32 s32, s6, 9'); a('s_add_u32 s33, s32, 256')
    a('s_mov_b32 s36, 32'); a('s_mov_b32 s37, s3')
    a('s_lshl_b32 %s, s6, 1' % S(Q.sHm))
    a('s_lshl_b32 s7, s3, 4'); a('s_add_u32 s7, s7, s6'); a('s_lshl_b32 s7, s7, 4'); a('s_add_u32 %s, s7, 0x%x' % (S(Q.sFq), FLAG(FL_QB)))
    a('s_waitcnt lgkmcnt(0)')
    Q.qb(a, P.default_next(2), xflags=xf, wflags=opt.get('wf2', ''), stamp=stamp)
    a('s_branch Lfin')
    a('Lob:')
    srd(a, 8, 'B_wo')
    a('s_sub_u32 %s, s6, 16' % S(O.sCs))
    a('s_mov_b32 %s, s3' % S(O.sT0)); a('s_mov_b32 %s, 2' % S(O.sDT)); a('s_mov_b32 %s, 32' % S(O.sN))
    a('s_mov_b32 %s, 0x%x' % (S(O.sCtx), WS_CTXB)); a('s_mov_b32 %s, 1152' % S(O.sOcol))
    a('s_lshl_b32 s7, s3, 2'); a('s_add_u32 s7, s7, s4'); a('s_lshl_b32 s7, s7, 6'); a('s_add_u32 %s, s7, 0x%x' % (S(O.sFb), FLAG(FL_QB)))
    a('s_mov_b32 %s, 1' % S(O.sNeed0)); a('s_mov_b32 %s, 1' % S(O.sDNeed))
    a('s_mov_b32 s93, 0'); a('s_mov_b32 s92, 15')
    a('Los:')
    srd(a, 24, 'out')
    a('s_waitcnt lgkmcnt(0)')
    O.ostream(a, lambda d, t: ['s_and_b32 %s, %s, s93' % (S(d), S(t)), 's_lshl_b32 %s, %s, 4' % (S(d), S(d)), 's_add_u32 %s, %s, %s' % (S(d), S(d), S(O.sFb))],
              's92', wflags=opt.get('wf2', ''), stamp=stamp)
    a('s_branch Lfin')
    a('Lchain:')
    C.chain(a, opt, lambda a: flags_ready(a, 30), wflags=wf, stamp_once=(lambda a, i: stamp(a, i, 68)) if diag else None, force_slow=opt.get('slow'))
    a('Lfin:')
    stamp(a, 7)
    a('Lend:')
    a('s_endpgm')
    head = open(os.path.join(os.path.dirname(os.path.abspath(__file__)), 'header.txt')).read()
    t = head + '; @launch grid=(256,1,1) block=(256,1,1) lds=163840\n' + HEAD + kernel_open(name) + a.text() + RODATA + kernel_desc(name)
    assert hazard.check(t) == 0
    return t
if __name__ == '__main__':
    opt = {}
    for x in (sys.argv[1] if len(sys.argv) > 1 else '').split(','):
        if x:
            k, v = x.split('='); opt[k] = int(v) if v.lstrip('-').isdigit() else v
    print(gen(opt, KNAME + '_kernel'), end='')
```

```python
from common import *

L_MEM, L_KX, L_Q, L_KM, L_O, L_F = 0, 9216, 17408, 19456, 21632, 24576
M2SZ = P1_BUF
vT16, vDum, vVa, vL16, vVb, vIdx, vPm, vZero, vXw, vXr, vQw, vQr = range(12)
VX, W0, W1, W2, W3 = 12, 20, 36, 52, 64
WREG = 72
sH = 6
sStep, sKV, sKVM, sP1r, sP1h, sM2a, sM2b, sM2c, sM2w, sM2x = 36, 37, 38, 39, 40, 41, 42, 43, 44, 45
sTmp, sSpin, sC, sFPB, sFCH, sTm2, sVXo = 47, 54, 55, 56, 57, 58, 59
sHf = 48
sTag = 46
sP1w = 60
sM2wh, sM2xh, sKXo, sPF, sXq = 65, 66, 67, 68, 69
sLo = 70
sSel, sOdd, sOne = 24, 32, 34
TOGGLE = (sM2w, sM2x, sM2wh, sM2xh, sM2a, sM2c)
WS = 's[20:23]'

WO_ORDER = [8, 0, 1, 2, 3, 4, 5, 6, 7]
frags = [(m, t, tau) for t in range(9) for m in 'qkv' for tau in range(2)] + [('o', tp, tl) for tl in range(9) for tp in range(2)]
lds_frags = [('k', t, 1) for t in range(9)] + [('o', 1, tl) for tl in WO_ORDER[:8]]
reg_frags = [f for f in frags if f not in lds_frags]
assert len(reg_frags) == 55
regpos = {f: (WREG + 8 * i) for i, f in enumerate(reg_frags)}
def fbase(f):
    off = L_F + 8192 * f
    return (off // 65536) * 65536, off % 65536
def smf(d, a_, b): return 'v_smfmac_f32_16x16x64_bf16 %s, %s, %s, %s' % (V(d, 4), V(a_, 4), U(b, 8), V(vIdx))

def spin_fail(a, lab):
    a('s_sub_u32 %s, %s, 1' % (S(sSpin), S(sSpin)))
    a('s_cbranch_scc0 ' + lab)
    a('s_endpgm')

def setup(a):
    a('v_and_b32 v20, 63, v0')
    a('v_lshlrev_b32 %s, 4, v20' % V(vL16))
    a('v_mov_b32 %s, 0' % V(vZero))
    a('s_mov_b32 %s, 0xcccccccc' % S(sHf)); a('s_mov_b32 %s, 0xcccccccc' % S(sHf + 1))
    a('v_mov_b32 v21, 0x44444444'); a('v_mov_b32 v22, 0xeeeeeeee')
    a('v_cndmask_b32 %s, v21, v22, %s' % (V(vIdx), S(sHf, 2)))
    a('s_mul_i32 %s, s4, 544' % S(sTmp))
    a('v_lshrrev_b32 v21, 4, v20'); a('v_lshlrev_b32 v21, 7, v21')
    a('v_and_b32 v22, 32, v20'); a('v_add3_u32 v21, v21, v22, %s' % S(sTmp))
    a('v_and_b32 v22, 15, v20'); a('v_lshl_add_u32 %s, v22, 3, v21' % V(vXw))
    a('v_lshrrev_b32 v21, 5, v20'); a('v_mul_u32_u24 v21, 544, v21')
    a('v_and_b32 v22, 3, v20'); a('v_lshl_add_u32 v21, v22, 7, v21')
    a('v_and_b32 v22, 2, v20'); a('v_lshl_add_u32 v21, v22, 4, v21')
    a('v_and_b32 v22, 16, v20'); a('v_lshl_add_u32 v21, v22, 2, v21')
    a('v_and_b32 v22, 12, v20'); a('v_lshl_add_u32 %s, v22, 1, v21' % V(vXr))
    a('v_lshrrev_b32 v21, 4, v0'); a('v_lshlrev_b32 v21, 7, v21')
    a('v_and_b32 v22, 14, v20'); a('v_lshl_add_u32 v21, v22, 2, v21')
    a('v_and_b32 v22, 1, v20'); a('v_lshl_add_u32 %s, v22, 1, v21' % V(vQw))
    a('v_and_b32 v21, 12, v20'); a('v_lshlrev_b32 v21, 5, v21')
    a('v_lshl_add_u32 v21, v22, 6, v21')
    a('v_and_b32 v22, 48, v20'); a('v_add_u32 %s, v21, v22' % V(vQr))
    a('s_mov_b32 %s, 0x%x' % (S(sC), QSCALE))
    a('s_mov_b32 %s, 0x%x' % (S(sSpin), SPIN))
    a('s_lshl_b32 %s, %s, 6' % (S(sTmp), S(sH)))
    for r in range(3): a('s_add_u32 %s, %s, 0x%x' % (S(sP1w + r), S(sTmp), WS_P1 + 4096 * r))
    a('s_lshl_b32 %s, %s, 7' % (S(sTmp), S(sH)))
    a('s_add_u32 %s, %s, 0x%x' % (S(sFPB), S(sTmp), FLAG(FL_PB)))
    a('s_add_u32 %s, %s, 0x%x' % (S(sFCH), S(sTmp), FLAG(FL_CH)))
    a('s_mul_i32 %s, %s, %d' % (S(sTmp), S(sH), P1_STRIDE))
    a('s_add_u32 %s, %s, 0x%x' % (S(sP1h), S(sTmp), WS_P1 + 4 * 2048))
    a('s_lshl_b32 %s, s4, 11' % S(sTm2))
    a('s_add_u32 %s, %s, %s' % (S(sTmp), S(sTmp), S(sTm2)))
    a('s_add_u32 %s, %s, 0x%x' % (S(sP1r), S(sTmp), WS_P1))
    a('s_lshl_b32 %s, s4, 11' % S(sM2b))
    a('s_add_u32 %s, %s, 0x%x' % (S(sM2a), S(sM2b), WS_M2 + M2SZ))
    a('s_mov_b32 %s, 0x%x' % (S(sM2c), WS_M2 + M2SZ + 8192))
    a('s_lshr_b32 %s, s4, 1' % S(sXq)); a('s_mul_i32 %s, %s, 1088' % (S(sXq), S(sXq)))
    a('s_and_b32 %s, s4, 1' % S(sTmp)); a('s_lshl_b32 %s, %s, 5' % (S(sTmp), S(sTmp)))
    a('s_add_u32 %s, %s, %s' % (S(sXq), S(sXq), S(sTmp)))
    a('s_lshl_b32 %s, %s, 5' % (S(sTmp), S(sH)))
    a('s_add_u32 %s, %s, 0x%x' % (S(sM2wh), S(sTmp), WS_M2 + M2SZ + 8192))
    a('s_add_u32 %s, %s, 0x%x' % (S(sM2xh), S(sTmp), WS_M2 + 8192))
    a('s_lshr_b32 %s, %s, 3' % (S(sTmp), S(sH))); a('s_lshl_b32 %s, %s, 9' % (S(sTmp), S(sTmp)))
    a('s_and_b32 %s, %s, 1' % (S(sTm2), S(sH))); a('s_lshl_b32 %s, %s, 8' % (S(sTm2), S(sTm2)))
    a('s_add_u32 %s, %s, %s' % (S(sTmp), S(sTmp), S(sTm2)))
    a('s_and_b32 %s, %s, 6' % (S(sTm2), S(sH))); a('s_lshl_b32 %s, %s, 5' % (S(sTm2), S(sTm2)))
    a('s_add_u32 %s, %s, %s' % (S(sTmp), S(sTmp), S(sTm2)))
    a('s_lshl_b32 %s, s4, 11' % S(sTm2))
    a('s_add_u32 %s, %s, %s' % (S(sTmp), S(sTmp), S(sTm2)))
    a('s_add_u32 %s, %s, 0x%x' % (S(sM2w), S(sTmp), WS_M2 + M2SZ))
    a('s_add_u32 %s, %s, 0x%x' % (S(sM2x), S(sTmp), WS_M2))
    a('s_lshl_b32 %s, %s, 14' % (S(sTmp), S(sH)))
    a('s_add_u32 %s, %s, 0x%x' % (S(sKV), S(sTmp), WS_KVB))
    a('s_add_u32 %s, %s, %s' % (S(sKXo), S(sKV), S(sTm2)))
    a('s_add_u32 %s, %s, 8192' % (S(sVXo), S(sKXo)))
    a('s_lshl_b32 %s, %s, 12' % (S(sTmp), S(sH)))
    a('s_add_u32 %s, %s, 0x%x' % (S(sKVM), S(sTmp), WS_KVM - 0x30000))
    a('s_mov_b32 %s, 0' % S(sStep))
    a('s_mov_b32 %s, 0' % S(sTag))

def h_addr(d, t):
    x = V(vL16)
    return ['v_bfe_u32 %s, %s, 8, 1' % (V(d), x), 'v_bfe_u32 %s, %s, 9, 1' % (V(t), x),
            'v_lshl_or_b32 %s, %s, 1, %s' % (V(d), V(d), V(t)), 'v_bfe_u32 %s, %s, 5, 1' % (V(t), x),
            'v_lshl_or_b32 %s, %s, 1, %s' % (V(d), V(d), V(t)), 'v_and_b32 %s, 0xd0, %s' % (V(t), x),
            'v_lshlrev_b32 %s, 24, %s' % (V(t), V(t)), 'v_lshl_or_b32 %s, %s, 2, %s' % (V(d), V(d), V(t))]
def m2_addr(d, t):
    x = V(vL16)
    return ['v_bfe_u32 %s, %s, 8, 2' % (V(d), x), 'v_bfe_u32 %s, %s, 2, 4' % (V(t), x),
            'v_lshl_or_b32 %s, %s, 4, %s' % (V(d), V(d), V(t)), 'v_and_b32 %s, 0xc0, %s' % (V(t), x),
            'v_lshl_or_b32 %s, %s, 24, %s' % (V(d), V(t), V(d))]
def p1w_addr(d, t):
    return ['v_bfe_u32 %s, %s, 7, 5' % (V(d), V(vT16)), 'v_mul_u32_u24 %s, %d, %s' % (V(d), P1_STRIDE, V(d)),
            'v_bfe_u32 %s, %s, 4, 3' % (V(t), V(vL16)), 'v_lshl_add_u32 %s, %s, 3, %s' % (V(d), V(t), V(d))]

def init_handoff(a):
    for i in range(4): a('v_mov_b32 %s, 0' % V(W0 + i))
    a('v_mov_b32 %s, -1' % V(W0 + 7))
    a(h_addr(W0 + 4, W0 + 5)); a(m2_addr(W0 + 6, W0 + 5))
    for s_ in (sP1r, sP1h):
        for m in range(2):
            a('buffer_store_dwordx4 %s, %s, %s, %s offen offset:%d sc1' % (V(W0, 4), V(vL16), WS, S(s_), 1024 * m))
    for s_ in (sM2w, sM2x):
        a('buffer_store_dword %s, %s, %s, %s offen sc1' % (V(W0 + 7), V(W0 + 6), WS, S(s_)))
    for s_ in (sM2wh, sM2xh):
        a('buffer_store_dword %s, %s, %s, %s offen sc1' % (V(W0 + 7), V(W0 + 4), WS, S(s_)))

def load_weights(a, wflags, arrive, lead, mid):
    vA, vB, vR, vWb, T, vC = 12, 14, 16, 60, 40, 56
    a('v_and_b32 v30, 63, v0')
    a('v_bfe_u32 v31, v30, 1, 2'); a('v_lshrrev_b32 v32, 5, v30'); a('v_xor_b32 v31, v31, v32')
    a('v_lshlrev_b32 v31, 5, v31'); a('v_and_b32 v32, 1, v30'); a('v_lshl_add_u32 v31, v32, 4, v31')
    a('v_xor_b32 v33, 64, v31')
    a('v_lshrrev_b32 v32, 3, v30')
    a('s_lshl_b32 %s, s4, 4' % S(sTmp))
    a('v_and_b32 v34, 3, v32'); a('v_lshrrev_b32 v35, 2, v32'); a('v_lshl_add_u32 v34, v34, 1, v35')
    a('v_add_u32 v34, %s, v34' % S(sTmp))
    a('v_lshl_add_u32 %s, v34, 13, v31' % V(vA))
    a('v_add_u32 v34, 8, v34')
    a('v_lshl_add_u32 %s, v34, 13, v33' % V(vA + 1))
    a('v_and_b32 v34, 1, v32'); a('v_lshlrev_b32 v34, 6, v34'); a('v_and_b32 v35, 6, v32')
    a('s_lshl_b32 %s, s4, 3' % S(sTmp))
    a('v_add3_u32 v34, v34, v35, %s' % S(sTmp))
    a('v_lshl_add_u32 %s, v34, 13, v31' % V(vC))
    a('v_add_u32 v34, 1, v34')
    a('v_lshl_add_u32 %s, v34, 13, v33' % V(vC + 1))
    a('v_lshrrev_b32 v34, 3, v0')
    a('v_mul_u32_u24 v34, 1152, v34')
    a('v_add_u32 %s, v34, v31' % V(vB))
    a('v_add_u32 v34, %d, v34' % (64 * 1152))
    a('v_add_u32 %s, v34, v33' % V(vB + 1))
    a('v_bfe_u32 v31, v30, 4, 1'); a('v_bfe_u32 v32, v30, 3, 1')
    a('v_lshl_add_u32 v33, v32, 1, v31'); a('v_xor_b32 v33, s4, v33'); a('v_lshlrev_b32 v33, 5, v33')
    a('v_lshl_add_u32 v33, v31, 9, v33'); a('v_lshl_add_u32 v33, v32, 10, v33')
    a('v_bfe_u32 v31, v30, 2, 1'); a('v_lshl_add_u32 v33, v31, 7, v33')
    a('v_lshrrev_b32 v31, 5, v30'); a('v_lshl_add_u32 v33, v31, 11, v33')
    a('v_and_b32 v31, 3, v30'); a('v_lshl_add_u32 %s, v31, 3, v33' % V(vR))
    a('v_add_u32 %s, 0x10000, %s' % (V(vR + 1), V(vR))); a('v_add_u32 %s, 0x20000, %s' % (V(vR + 2), V(vR)))
    a('v_lshlrev_b32 %s, 4, v0' % V(vWb))
    a('v_add_u32 %s, 0x10000, %s' % (V(vWb + 1), V(vWb))); a('v_add_u32 %s, 0x20000, %s' % (V(vWb + 2), V(vWb)))
    sA, sB, sM = 70, 71, 72
    a('s_lshl_b32 %s, %s, 8' % (S(sA), S(sH)))
    a('s_mul_i32 %s, %s, 147456' % (S(sB), S(sH)))
    a('s_lshl_b32 %s, s4, 11' % S(sM))
    vTx, vTn, vTo, vTd, sGA, sGB = 19, 58, 59, 63, 76, 80
    a('s_lshl_b32 %s, s4, 4' % S(sTmp)); a('v_add_u32 v31, %s, v30' % S(sTmp))
    a('s_lshr_b32 %s, s4, 1' % S(sTmp)); a('s_lshl_b32 %s, %s, 5' % (S(sTmp), S(sTmp))); a('v_add_u32 v32, %s, v31' % S(sTmp))
    a('v_lshrrev_b32 v33, 4, v30'); a('v_lshlrev_b32 v33, 28, v33')
    a('v_lshl_or_b32 %s, v31, 13, v33' % V(vTn)); a('v_lshl_or_b32 %s, v32, 13, v33' % V(vTx))
    a('v_mul_u32_u24 v32, 1152, v32'); a('v_or_b32 %s, v32, v33' % V(vTo))
    def touch(n):
        m, t, tau = seq[n]
        if m == 'o':
            a('s_add_u32 %s, %s, %d' % (S(sTmp), S(sGB), 32 * t * 1152 + 128 * tau))
            a('buffer_load_dword %s, %s, s[24:27], %s offen' % (V(vTd), V(vTo), S(sTmp)))
        else:
            row = 512 if t == 8 else 128 * (t // 2) + 32 * (t % 2)
            a('s_add_u32 %s, %s, %d' % (S(sTmp), S(sGA), row * 8192 + 128 * tau))
            a('buffer_load_dword %s, %s, %s, %s offen' % (V(vTd), V(vTn if t == 8 else vTx), S(8 + 4 * 'qkv'.index(m), 4), S(sTmp)))
    def help_others(first):
        for d in range(1, 4):
            L = a.lab('hlp')
            a('s_add_u32 %s, %s, %d' % (S(sTm2), S(sH), d)); a('s_and_b32 %s, %s, 31' % (S(sTm2), S(sTm2)))
            a('s_bitcmp1_b32 s77, %s' % S(sTm2)); a('s_cbranch_scc1 ' + L)
            a('s_lshl_b32 %s, %s, 8' % (S(sGA), S(sTm2))); a('s_mul_i32 %s, %s, 147456' % (S(sGB), S(sTm2)))
            for n in range(first + d - 1, 72, 3): touch(n)
            a(L + ':')
    seq = list(reg_frags)
    n0 = len(seq)
    seq += [lds_frags[n % 17] for n in range(n0, n0 + 17)]
    D = lead[0]
    q = Seq(a, vm=['init'])
    def dma(n):
        m, t, tau = seq[n]
        for zz in range(2):
            a('s_add_u32 m0, %s, %d' % (S(sM), L_F + 8192 * (n % 17) + 1024 * zz))
            if m == 'o':
                if zz == 0: a('s_add_u32 %s, %s, %d' % (S(sTmp), S(sB), 32 * t * 1152 + 128 * tau))
                else: a('s_nop 0')
                q('buffer_load_dwordx4 %s, s[24:27], %s offen %s lds' % (V(vB + zz), S(sTmp), wflags), n)
            else:
                row = 512 if t == 8 else 128 * (t // 2) + 32 * (t % 2)
                if zz == 0: a('s_add_u32 %s, %s, %d' % (S(sTmp), S(sA), row * 8192 + 128 * tau))
                else: a('s_nop 0')
                q('buffer_load_dwordx4 %s, %s, %s offen %s lds' % (V((vA if t == 8 else vC) + zz), S(8 + 4 * 'qkv'.index(m), 4), S(sTmp), wflags), n)
    def finish(n):
        f = seq[n]; t = T + 8 * (n % 2)
        if f in lds_frags:
            b, o = fbase(n % 17)
            for hf in range(2):
                a('ds_write_b128 %s, %s offset:%d' % (V(vWb + b // 65536), V(t + 4 * hf, 4), o + 4096 * hf))
    for n in range(D): dma(n)
    for n in range(72):
        q.wait(n)
        a('s_waitcnt lgkmcnt(0)')
        a('s_barrier')
        if n == 0: arrive(a, q)
        if n + D < 72: dma(n + D)
        mid(n, q)
        if n == 72 - D and lead[1]: help_others(lead[1])
        if n: finish(n - 1)
        f = seq[n]
        dst = regpos.get(f, T + 8 * (n % 2))
        b, o = fbase(n % 17)
        for y in range(4):
            a('ds_read_b64_tr_b16 %s, %s offset:%d' % (U(dst + 2 * y, 2), V(vR + b // 65536), o + 4096 * (y // 2) + 256 * (y % 2)))
    a('s_waitcnt lgkmcnt(0)')
    a('s_barrier')
    finish(71)

def arrive(a, q):
    L = a.lab('arr')
    a('s_getreg_b32 s73, hwreg(HW_REG_XCC_ID, 0, 3)')
    a('s_lshl_b32 s73, s73, 3')
    a('s_lshl_b64 s[74:75], 1, s73')
    a('v_mov_b32 v64, s74'); a('v_mov_b32 v65, s75')
    a('v_mov_b32 v66, 0x7ff00000'); a('v_cmp_eq_u32 vcc, 0, v0'); a('s_nop 1')
    a('v_cndmask_b32 v66, v66, %s, vcc' % V(vZero))
    q('buffer_atomic_add_x2 v[64:65], v66, s[28:31], 0 offen offset:8', 'arr')

def wait_flag(a, soff, need, lab):
    L = a.lab(lab); Lok = a.lab(lab + 'ok')
    a(L + ':')
    a('buffer_load_dword %s, %s, %s, %s offen sc1' % (V(vDum), V(vZero), WS, soff))
    a('s_waitcnt vmcnt(0)')
    a('v_cmp_le_u32 vcc, %s, %s' % (need, V(vDum)))
    a('s_cbranch_vccnz ' + Lok)
    spin_fail(a, L)
    a(Lok + ':')

def frag_read(q, f, dst, name):
    b, o = fbase(f)
    assert b == q.base, (f, b, q.base)
    return ['ds_read_b128 %s, %s offset:%d' % (V(dst + 4 * hf, 4), V(vT16), o + 4096 * hf) for hf in range(2)]

def early(a, opt):
    M = 20
    def dbg_load(q, name): q('buffer_load_dwordx4 v[68:71], v65, s[28:31], 0 offen sc1', name)
    def mid(n, q):
        if n == opt.get('nm', 4):
            a('v_lshrrev_b32 v68, 4, %s' % V(vL16))
            a('v_bfe_u32 v69, v68, 2, 2'); a('v_and_b32 v70, 1, v68'); a('v_lshl_add_u32 v69, v69, 1, v70')
            a('v_mul_u32_u24 v69, 1152, v69')
            a('v_and_b32 v70, 48, v68'); a('v_and_b32 v71, 2, v68'); a('v_lshl_add_u32 v71, v71, 2, v70')
            a('v_lshl_add_u32 v71, v71, 1, v69'); a('v_add_u32 v69, v70, v69')
            a('s_lshr_b32 %s, s4, 1' % S(sTmp)); a('s_lshl_b32 %s, %s, 8' % (S(sTmp), S(sTmp)))
            a('s_and_b32 %s, s4, 1' % S(sTm2)); a('s_lshl_b32 %s, %s, 6' % (S(sTm2), S(sTm2)))
            a('s_add_u32 %s, %s, %s' % (S(sTmp), S(sTmp), S(sTm2)))
            for m in range(2):
                for tl in range(2):
                    q('buffer_load_dwordx4 %s, v69, s[32:35], %s offen offset:%d' % (V(M + 8 * m + 4 * tl, 4), S(sTmp), 512 * m + 128 * tl), 'm0')
            q('buffer_load_dwordx4 %s, v71, s[32:35], 0 offen offset:1024' % V(M + 16, 4), 'm0')
        if n == opt.get('nm', 4) + 10:
            q.wait('m0')
            a('v_mov_b32 v68, 0x05040100'); a('v_mov_b32 v69, 0x07060302')
            a('v_cndmask_b32 v70, v68, v69, %s' % S(sHf, 2))
            for m in range(2):
                for i in range(4):
                    a('v_perm_b32 %s, %s, %s, v70' % (V(M + 8 * m + i), V(M + 8 * m + 4 + i), V(M + 8 * m + i)))
            for i in range(4):
                a('v_perm_b32 %s, %s, %s, v%d' % (V(M + 4 + i), V(M + 16 + 2 * (i % 2) + 1), V(M + 16 + 2 * (i % 2)), 68 + i // 2))
            a('ds_write_b128 v60, %s' % V(M, 4))
            a('ds_write_b128 v60, %s offset:4096' % V(M + 8, 4))
            a('ds_write_b128 %s, %s offset:8192' % (V(vL16), V(M + 4, 4)))
        if n == 30:
            a('v_min_u32 v65, 16, %s' % V(vL16)); a('v_lshlrev_b32 v65, 24, v65')
            dbg_load(q, 'd0')
        if n == 40:
            L = a.lab('hs'); Lc = a.lab('hsc'); Lok = a.lab('hsok')
            q.wait('d0')
            a('s_branch ' + Lc)
            a(L + ':')
            dbg_load(Seq(a), None); a('s_waitcnt vmcnt(0)')
            a(Lc + ':')
            a('v_sad_u8 v69, v70, 0, 0'); a('v_sad_u8 v69, v71, 0, v69'); a('v_lshrrev_b32 v69, 5, v69'); a('v_min_u32 v68, v68, v69')
            a('v_cmp_ne_u32 vcc, 0, v68')
            a('s_cbranch_vccnz ' + Lok)
            spin_fail(a, L)
            a(Lok + ':')
            a('v_readfirstlane_b32 s74, v70'); a('v_readfirstlane_b32 s75, v71')
            for s_ in (sP1r, sP1h):
                for m in range(2):
                    q('buffer_load_dwordx4 %s, %s, %s, %s offen offset:%d sc1' % (V(M, 4), V(vL16), WS, S(s_), 1024 * m), 'x')
            a('v_lshlrev_b32 v67, 6, v0')
        if n == opt.get('mark', 48):
            a('s_lshl_b32 %s, %s, 2' % (S(sTmp), S(sH))); a('s_add_u32 %s, %s, 0x%x' % (S(sTmp), S(sTmp), FLAG(FL_LD)))
            a('v_mov_b32 v64, 1')
            q('buffer_store_dword v64, v66, %s, %s offen' % (WS, S(sTmp)), 'g')
        if n == opt.get('hm', 55):
            a('v_lshrrev_b32 v68, 2, %s' % V(vL16)); a('s_mov_b32 %s, 0x%x' % (S(sTmp), FLAG(FL_LD)))
            q('buffer_load_dword v68, v68, %s, %s offen sc1' % (WS, S(sTmp)), 'd1')
        if n == 63: q('buffer_load_dword %s, v65, %s, %s offen sc1' % (V(vDum), WS, S(sFPB)), 'pb')
        if n == 64: q.wait('d1'); a('v_cmp_ne_u32 vcc, 0, v68'); a('s_mov_b32 s77, vcc_lo')
        if n == opt.get('gate', 64):
            L = a.lab('gt')
            a('s_and_b32 %s, %s, 29' % (S(sTmp), S(sH))); a('s_cbranch_scc1 ' + L)
            a('buffer_store_dword v64, v66, s[28:31], 0 offen offset:128 sc1')
            a(L + ':')
    return mid

def start(a, st=None):
    a('v_lshlrev_b32 %s, 4, v0' % V(vT16))
    Lok = a.lab('pbk')
    a('s_waitcnt vmcnt(0)')
    a('v_cmp_le_u32 vcc, 2, %s' % V(vDum))
    a('s_cbranch_vccnz ' + Lok)
    wait_flag(a, S(sFPB), '2', 'pb0')
    a(Lok + ':')
    if st: st()
    a('s_lshl_b32 %s, s4, 11' % S(sTmp))
    a('s_add_u32 m0, %s, %d' % (S(sTmp), L_KX))
    a('s_add_u32 %s, %s, 0x80000' % (S(sPF), S(sKV)))
    for tau in range(2):
        a('buffer_load_dwordx4 %s, %s, %s offen offset:%d sc1 lds' % (V(vL16), WS, S(sKXo), 1024 * tau))
    a('buffer_load_dword v68, v67, %s, %s offen sc1' % (WS, S(sKV)))
    a('buffer_load_dword v68, v67, %s, %s offen sc1' % (WS, S(sPF)))
    a('s_add_u32 %s, %s, 0x80000' % (S(sPF), S(sPF)))
    for r in range(4):
        a('s_mov_b32 %s, 0x%x' % (S(sSel + 2 * r), 0x000f000f << (4 * r))); a('s_mov_b32 %s, 0x%x' % (S(sSel + 2 * r + 1), 0x000f000f << (4 * r)))
    a('s_mov_b32 %s, 0xaaaaaaaa' % S(sOdd)); a('s_mov_b32 %s, 0xaaaaaaaa' % S(sOdd + 1))
    a('s_mov_b32 %s, 0x3f803f80' % S(sOne)); a('s_mov_b32 %s, 0x3f803f80' % S(sOne + 1))
    a('s_mov_b32 %s, -1' % S(sLo)); a('s_mov_b32 %s, 0' % S(sLo + 1))
    a('s_lshl_b32 %s, s4, 12' % S(sTmp)); a('s_add_u32 %s, %s, %s' % (S(sPF), S(sPF), S(sTmp)))
    a('v_mov_b32 %s, 0' % V(vVa)); a('v_mov_b32 %s, 0' % V(vVb))
    q = Seq(a); q.base = 0
    a('s_waitcnt lgkmcnt(0)')
    a(frag_read(q, 0, W0, None)); a(frag_read(q, 1, W0 + 8, None))
    for i in range(8): a('v_mov_b64 %s, 0' % V(W1 + 2 * i, 2))
    a(step_addrs())
    for s_ in TOGGLE:
        a('s_xor_b32 %s, %s, 0x%x' % (S(s_), S(s_), P1_BUF))
    a('s_lshr_b64 s[74:75], s[74:75], s73')
    a('s_and_b32 s74, s74, 0xff')
    a('s_cmp_eq_u32 s74, 32')
    a('s_waitcnt vmcnt(2)')

def step_addrs():
    return ['v_lshl_add_u32 %s, %s, 3, %s' % (V(vDum), V(vL16), S(sPF)), 'v_mov_b32 %s, %s' % (V(vPm), S(sFPB)),
            'v_cndmask_b32 %s, %s, %s, %s' % (V(vDum), V(vPm), V(vDum), S(sLo, 2))]

def kvm_stores(q, a, tmp, addr):
    return [lambda: a('v_add_u32 %s, %s, %s' % (V(addr), S(sXq), V(vXr))),
            lambda: q('ds_read_b64_tr_b16 %s, %s offset:%d' % (V(tmp, 2), V(addr), L_KM), 'kmr'),
            lambda: a('v_mov_b32 %s, %s' % (V(tmp + 2), V(vVa))),
            lambda: a('v_mov_b32 %s, %s' % (V(tmp + 3), V(vVb))),
            lambda: (q.wait('kmr'), q('buffer_store_dwordx4 %s, %s, %s, %s offen sc1' % (V(tmp, 4), V(vT16), WS, S(sKVM)), 'kvs'))]

def step_loop(a, sf, Lexit, opt, stamp=None):
    def add(d, x, y): return 'v_add_f32 %s, %s, %s' % (V(d), V(x), V(y))
    def add2(d, x): return [add(d, x, x + 2), add(d + 1, x + 1, x + 3)]
    def cvt(d, x, y): return 'v_cvt_pk_bf16_f32 %s, %s, %s' % (V(d), V(x), V(y))
    def cnd(d, x, y, m=sHf): return 'v_cndmask_b32 %s, %s, %s, %s' % (V(d), x, y, S(m, 2))
    def mov2(d, x): return 'v_mov_b64 %s, %s' % (V(d, 2), x)
    def sadd(d, x):
        if opt.get('nopf') and d in (sVXo, sKXo): x = 0
        return 's_add_u32 %s, %s, 0x%x' % (S(d), S(d), x)
    def sxor(d, x=P1_BUF): return 's_xor_b32 %s, %s, 0x%x' % (S(d), S(d), x)
    def delay(n):
        while n > 0: a('s_nop %d' % (min(n, 16) - 1)); n -= 16
    st = stamp or (lambda i: None)
    Lstep = a.lab('step'); Lfail = a.lab('fail')
    Sx = [W0, W0 + 4]; Sm = W0 + 8; R0 = W0 + 12; R1 = W2 + 8
    kxr = {(0, 0): Sx[0], (0, 1): Sx[1], (1, 0): R0, (1, 1): R0, (2, 0): W1, (2, 1): W1 + 4, (3, 0): R0, (3, 1): R1}
    qa, qb, ka, kb = W1, W1 + 4, W1 + 8, W1 + 12
    va, vb = W3, W3 + 4
    KQ, YH = W3, W3 + 4
    tails = []
    def mem(u): return W2 + 4 * (u % 3 if u < 12 else u % 2)
    def mu3(d, x, y, z): return 'v_max3_u32 %s, %s, %s, %s' % (V(d), V(x), V(y), V(z))
    def ldi(x, so, n=2):
        return ['buffer_load_dwordx4 %s, %s, %s, %s offen offset:%d sc1' % (V(x + 4 * m, 4), V(vL16), WS, S(so), 1024 * m) for m in range(n)]
    def chk(quads, C, x=''):
        regs = [r + i for r in quads for i in range(4)]
        o = [mu3(C, *regs[:3])]; regs = regs[3:]
        while len(regs) > 1: o.append(mu3(C, C, regs[0], regs[1])); regs = regs[2:]
        o.append('v_max_u32 %s, %s, %s' % (V(C), V(C), V(regs[0])))
        return o + ['v_cmp%s_eq_u32 vcc, -1, %s' % (x, V(C))]
    def retry(L, loads, check, cnt, first=None):
        L1 = a.lab('rt'); Le = a.lab('rte')
        a(L + ':')
        a('s_mov_b64 exec, vcc')
        a(L1 + ':')
        for u in range(3):
            a(loads)
            if stamp: a('s_add_u32 s%d, s%d, %d' % (cnt[0], cnt[0], cnt[1]))
            a('s_waitcnt vmcnt(%d)' % (len(loads) * (opt.get('dep', 2) - 1)))
            a(check)
            a('s_cbranch_execz ' + Le)
        a('s_sub_u32 %s, %s, 1' % (S(sSpin), S(sSpin))); a('s_cbranch_scc0 ' + L1)
        a('s_endpgm')
        a(Le + ':')
        a('s_mov_b64 exec, -1')
    a('.p2align 3')
    a(Lstep + ':')
    q = Seq(a, vm=['pre']); q.base = 0
    def mread(u): q('ds_read_b128 %s, %s offset:%d' % (V(mem(u), 4), V(vL16), L_MEM + 1024 * (u % 9)), ('m', u))
    def kxread(kap, tau): q('ds_read_b128 %s, %s offset:%d' % (V(kxr[kap, tau], 4), V(vL16), L_KX + 2048 * kap + 1024 * tau), ('kx', kap, tau))
    a('s_mov_b64 exec, -1')
    q.drain(vm=False)
    a('s_barrier')
    st('B0')
    for u in range(3): mread(u)
    st('B0x')
    ex = {}
    def at(g, f, name='x'):
        l = ex.setdefault(g, [])
        fn = f if callable(f) else (lambda: q(f, name))
        if not callable(f) and f.startswith('v_'): l.append(fn)
        else: l.insert(0, fn)
    def gap(g):
        for f in ex.pop(g, []): f()
    kv = kvm_stores(q, a, KQ, vPm)
    q(ldi(VX, sVXo)[0], 'vx'); at(1, ldi(VX, sVXo)[1], 'vx')
    if not opt.get('nopf'): at(opt.get('gpf', 7), 'buffer_load_dword %s, %s, %s, 0 offen sc1' % (V(vDum), V(vDum), WS))
    at(15, kv[4])
    at(8, 's_max_u32 %s, %s, 1' % (S(sTmp), S(sStep))); at(9, 's_sub_u32 %s, %s, 1' % (S(sTmp), S(sTmp)))
    at(12, 'v_min_u32 %s, 16, %s' % (V(vPm), V(vT16)))
    at(13, 'v_lshlrev_b32 %s, 24, %s' % (V(vPm), V(vPm)))
    at(20, 'v_mov_b32 %s, %s' % (V(KQ), S(sTmp)))
    at(23, 'buffer_store_dword %s, %s, %s, %s offen sc1' % (V(KQ), V(vPm), WS, S(sFCH)))
    at(27, lambda: q.wait('pre'))
    for i in range(4): at(28 + i, mov2(W3 + 2 * i, '0'))
    at(32, mov2(Sm, '0')); at(33, mov2(Sm + 2, '0'))
    at(32, lambda: kxread(1, 0))
    q.wait(('m', 0))
    st('m0')
    for t in range(9):
        rd = []
        if 1 <= t <= 7:
            rd = [(x, ('kb', t + 1)) for x in frag_read(q, t + 1, W0 + 8 * ((t + 1) % 2), None)]
        a(smf(qa, mem(t), regpos[('q', t, 0)]))
        if rd: q(*rd[0])
        gap(4 * t)
        a(smf(qb, mem(t), regpos[('q', t, 1)]))
        if rd: q(*rd[1])
        gap(4 * t + 1)
        a(smf(ka, mem(t), regpos[('k', t, 0)]))
        if t: mread(t + 2)
        q.wait(('kb', t), ('m', t + 1))
        if t < 7 and fbase(t + 2)[0] != q.base:
            a('v_add_u32 %s, 0x10000, %s' % (V(vT16), V(vT16))); q.base += 65536
        gap(4 * t + 2)
        if t == 8: a(add(qa, qa, qa + 2))
        a(smf(kb, mem(t), W0 + 8 * (t % 2)))
        gap(4 * t + 3)
    assert not ex, ex
    st('p1e')
    vsm = [(t, tau) for t in range(9) for tau in range(2)]
    wb = [W1, W1 + 8]
    wl = [(p, hf) for p in range(2) for hf in range(2)]; wl_on = []
    def wo_read(p, hf):
        if fbase(9 + p)[0] != q.base:
            a('v_add_u32 %s, 0x10000, %s' % (V(vT16), V(vT16))); q.base += 65536
        q(frag_read(q, 9 + p, wb[p % 2], None)[hf], ('wo', p))
    def vstep(n=1, feed=True):
        for _ in range(n):
            t, tau = vsm.pop(0)
            q.wait(('m', 9 + t))
            a(smf(va + 4 * tau, mem(9 + t), regpos[('v', t, tau)]))
            k = 0
            nx = {0: 3, 1: 4, 2: 99}.get(t, t + 2)
            if tau == 1 and nx < 9 and feed: mread(9 + nx); k = 1
            while k < 2 and wl and wl_on: wo_read(*wl.pop(0)); k += 1
    def qw(x, off, hi): q('ds_write_b16%s %s, %s offset:%d' % ('_d16_hi' if hi else '', V(vQw), V(x), L_Q + off + 64 * hi), 'w')
    mread(11)
    kxread(0, 0)
    a(add(qa + 1, qa + 1, qa + 3))
    a(cvt(qa, qa, qa + 1))
    vstep(1)
    qw(qa, 0, 0); qw(qa, 0, 1)
    a(add2(qb, qb)); a(cvt(qb, qb, qb + 1))
    vstep(1, False)
    qw(qb, 4, 0); qw(qb, 4, 1)
    a(add2(ka, ka)); a(add2(kb, kb))
    a(cvt(ka, ka, ka + 1)); a(cvt(ka + 1, kb, kb + 1))
    q('ds_write_b64 %s, %s offset:%d' % (V(vXw), V(ka, 2), L_KM), 'w')
    vstep(1)
    mread(12); kxread(0, 1)
    vstep(3)
    q.wait('w')
    a('s_barrier')
    st('B1')
    def qread(k): q('ds_read_b128 %s, %s offset:%d' % (V(W1 + 4 * k, 4), V(vQr), L_Q + 512 * k), ('q', k))
    def xrd(base, dst, tp, z, name):
        q('ds_read_b64_tr_b16 %s, %s offset:%d' % (V(dst + 2 * z, 2), V(vXr), base + 1088 * tp + 32 * z), name)
    def kmread(tp): xrd(L_KM, R1, tp, 0, ('km', tp)); xrd(L_KM, R1, tp, 1, ('km', tp))
    qread(0); qread(1)
    vstep(); kmread(0)
    vstep(); qread(2)
    vstep(); qread(3)
    vstep()
    def sx(k, tau):
        q.wait(('q', k), ('kx', k, tau))
        a('v_mfma_f32_16x16x32_bf16 %s, %s, %s, %s' % (V(Sx[tau], 4), V(kxr[k, tau], 4), V(W1 + 4 * k, 4), V(Sx[tau], 4) if k else '0'))
    def sm(tp):
        q.wait(('km', tp), ('q', 2 * tp + 1))
        a(smf(Sm, R1, W1 + 8 * tp))
    T0, T1, T2, T3, ONE = Sm + 2, Sm + 3, Sm + 1, vPm, R0
    sx(0, 0); sx(0, 1); sx(1, 0); kxread(1, 1)
    sm(0); kmread(1); kxread(2, 0)
    vstep(2)
    sx(1, 1); kxread(2, 1); kxread(3, 0)
    sm(1); kxread(3, 1)
    sx(2, 0)
    vstep(2)
    a(add(Sm, Sm, Sm + 2))
    sx(2, 1)
    a(add(Sm + 1, Sm + 1, Sm + 3)); a('v_max_f32 %s, %s, %s' % (V(T0), V(Sm), V(Sm + 1)))
    sx(3, 0)
    a(cnd(Sm, V(Sm), V(Sm + 1)))
    sx(3, 1)
    st('Se')
    def mx3(d, x, y, z): return 'v_max3_f32 %s, %s, %s, %s' % (V(d), V(x), V(y), V(z))
    a(mov2(ONE, S(sOne, 2))); a(mov2(ONE + 2, S(sOne, 2)))
    wl_on.append(1)
    vstep(1)
    a(mx3(T0, T0, Sx[0], Sx[0] + 1))
    vstep(1)
    a(mx3(T0, T0, Sx[0] + 2, Sx[0] + 3))
    a(mx3(T0, T0, Sx[1], Sx[1] + 1))
    a(mx3(T1, T0, Sx[1] + 2, Sx[1] + 3)); a(mx3(T2, T0, Sx[1] + 2, Sx[1] + 3))
    cn = [cnd(Sx[0] + r, V(Sx[0] + r), V(Sx[1] + r)) for r in range(4)]
    vstep(1); a(cn[0]); vstep(1); a(cn[1])
    a('v_permlane16_swap_b32 %s, %s' % (V(T1), V(T2)))
    a('v_max_f32 %s, %s, %s' % (V(T0), V(T1), V(T2)))
    a('v_max_f32 %s, %s, %s' % (V(T3), V(T1), V(T2)))
    a(cn[2:])
    assert not vsm and not wl
    st('max')
    a('v_permlane32_swap_b32 %s, %s' % (V(T0), V(T3)))
    a('v_max_f32 %s, %s, %s' % (V(T0), V(T0), V(T3)))
    a('v_mul_f32 %s, -%s, %s' % (V(T0), S(sC), V(T0)))
    for x in [Sm] + [Sx[0] + r for r in range(4)]: a('v_fma_f32 %s, %s, %s, %s' % (V(x), V(x), S(sC), V(T0)))
    a('v_exp_f32 %s, %s' % (V(Sm), V(Sm)))
    a(add2(va, va))
    a(cnd(Sm + 1, '0', V(Sm))); a(cnd(Sm, V(Sm), '0'))
    a(cvt(vPm, Sm, Sm + 1))
    a(add2(vb, vb))
    oa, ob, LL = W2, W2 + 4, W2 + 8
    a('v_mfma_f32_16x16x16_bf16 %s, %s, %s, 0' % (V(LL, 4), V(vPm, 2), V(ONE, 2)))
    a(cvt(vVa, va, va + 1)); a(cvt(vVb, vb, vb + 1))
    for r in range(2): a('v_exp_f32 %s, %s' % (V(Sx[0] + r), V(Sx[0] + r)))
    a('v_mfma_f32_16x16x16_bf16 %s, %s, %s, 0' % (V(oa, 4), V(vPm, 2), V(vVa, 2)))
    q.wait('vx')
    a('v_exp_f32 %s, %s' % (V(Sx[0] + 2), V(Sx[0] + 2)))
    a('v_mfma_f32_16x16x16_bf16 %s, %s, %s, 0' % (V(ob, 4), V(vPm, 2), V(vVb, 2)))
    a('s_cmp_eq_u32 %s, 63' % S(sStep))
    a('v_exp_f32 %s, %s' % (V(Sx[0] + 3), V(Sx[0] + 3)))
    a(cvt(T0, Sx[0], Sx[0] + 1)); a(cvt(T1, Sx[0] + 2, Sx[0] + 3))
    def sm32(d, b): a('v_smfmac_f32_16x16x32_bf16 %s, %s, %s, %s' % (V(d, 4), V(T0, 2), V(b, 4), V(vIdx)))
    wacc = [W3, W3 + 4, W0, W0 + 4, W0 + 8, W0 + 12, VX, VX + 4, W2 + 8]
    zer = [mov2(x + 2 * i, '0') for x in wacc for i in range(2)]
    a(zer.pop(0)); a(zer.pop(0))
    st('pv')
    for d, b in ((LL, ONE), (oa, VX), (ob, VX + 4)):
        sm32(d, b)
        if d == ob: a('s_nop 0')
        else: a(zer.pop(0)); a(zer.pop(0))
    a(add2(LL, LL))
    for i in range(2): a('v_rcp_f32 %s, %s' % (V(LL + i), V(LL + i)))
    a(add2(oa, oa))
    for i in range(2): a('v_mul_f32 %s, %s, %s' % (V(oa + i), V(oa + i), V(LL + i)))
    a(add2(ob, ob))
    for i in range(2): a('v_mul_f32 %s, %s, %s' % (V(ob + i), V(ob + i), V(LL + i)))
    a(cvt(oa, oa, oa + 1)); a(cvt(oa + 1, ob, ob + 1))
    q('ds_write_b64 %s, %s offset:%d' % (V(vXw), V(oa, 2), L_O), 'ow')
    st('ow')
    a('s_cbranch_scc1 ' + Lexit)
    PW = vPm
    a(p1w_addr(PW, LL))
    sal = [sxor(sTag, 1), sadd(sKXo, 0x80000), sadd(sVXo, 0x80000), sadd(sKVM, 0x20000),
           's_cmp_lt_u32 %s, 61' % S(sStep), 's_cselect_b32 %s, 0x80000, 0' % S(sTmp), 's_add_u32 %s, %s, %s' % (S(sPF), S(sPF), S(sTmp)),
           's_add_u32 %s, %s, 1' % (S(sStep), S(sStep)), 's_add_u32 %s, %s, 2' % (S(sTm2), S(sStep)), 's_min_u32 %s, %s, 64' % (S(sTm2), S(sTm2))] + [sxor(x) for x in TOGGLE]
    for i in range(opt.get('k1', 4)): a(sal.pop(0)); a(zer.pop(0))
    q.wait('ow')
    a('s_barrier')
    st('B2')
    for tp in range(2):
        for z in range(2): xrd(L_O, W2 + 4 * tp, tp, z, ('oa', tp))
        a(zer.pop(0))
    nlate = opt.get('k2', 2)
    while len(zer) > nlate:
        if sal: a(sal.pop(0))
        a(zer.pop(0))
    def fin(p):
        x = wacc[p]
        def tag(d): return 'v_and_or_b32 %s, %s, -2, %s' % (V(d), V(d), S(sTag))
        if p == 0:
            return add2(x, x) + [cvt(x + 1, x + 1, x + 1), cvt(x, x, x), tag(x + 1),
                    'buffer_store_dwordx2 %s, %s, %s, %s offen %s' % (V(x, 2), V(PW), WS, S(sP1w + 2), sf)]
        if p % 2: return add2(x, x)
        y = wacc[p - 1]; r = p // 2 - 1
        return add2(x, x) + [cvt(y + 1, y + 1, x + 1), cvt(y, y, x), tag(y + 1),
                'buffer_store_dwordx2 %s, %s, %s, %s offen offset:%d %s' % (V(y, 2), V(PW), WS, S(sP1w + r // 2), 2048 * (r % 2), sf)]
    order = [(0, 0)]
    for p in range(1, 9): order += [(p, 0), (p - 1, 1)]
    order += [(8, 1)]
    pend = []; ready = {}
    side = {1: 0, 3: 1}
    q.wait(('oa', 0))
    st('wo0')
    for n, (p, tp) in enumerate(order):
        tl = WO_ORDER[p]
        k = 0
        if tp == 0: a(smf(wacc[p], W2, regpos[('o', 0, tl)]))
        else:
            a(smf(wacc[p], W2 + 4, wb[p % 2] if p < 8 else regpos[('o', 1, tl)]))
            ready[n + 2] = p
            if p < 6: wo_read(p + 2, 0); wo_read(p + 2, 1); k = 2
        if k == 0 and pend and pend[0].startswith('buffer'): q(pend.pop(0), 'p1'); k += 2
        if n in side:
            q('buffer_load_dwordx4 %s, %s, %s offen offset:%d sc1 lds' % (V(vL16), WS, S(sKXo), 1024 * side[n]), 'kxd'); k += 2
        while k < 2 and sal: a(sal.pop(0)); k += 1
        if zer: a(zer.pop(0))
        if n in ready:
            if k == 0 and not pend: a('s_nop 0')
            pend += fin(ready[n])
        for _ in range(2):
            if pend and not pend[0].startswith('buffer'): a(pend.pop(0))
        if n + 1 < len(order) and order[n + 1][1] == 1: q.wait(('oa', 1), ('wo', order[n + 1][0]))
        if n == 5:
            a('v_add_u32 %s, 0x10000, %s' % (V(vT16), V(vT16))); q.base += 65536
    a(sal)
    SEL, X, D, XH, DH = W1 + 8, W1, W1 + 12, W0, W0 + 8
    MA, HA, LA, C, TT, NEG = W2, W2 + 1, W2 + 2, W2 + 3, W2 + 6, W2 + 7
    a(pend)
    a(fin(7))
    a('s_cmp_eq_u32 s4, 0')
    a('s_nop 0')
    a(fin(8))
    st('Woe')
    def red(d, x, m): return 'v_mfma_f32_16x16x32_bf16 %s, %s, %s, %s' % (V(d, 4), V(SEL, 4), V(x + 4 * m, 4), V(d, 4) if m else '0')
    def tchk(quads, x=''):
        o = []
        for i, r in enumerate(quads):
            o.append('v_bitop3_b32 %s, %s, %s, %s bitop3:0x7e' % (V(C + min(i, 1) + (i == 2)), V(r + 1), V(r + 3), S(sTag)))
            if i == 2: o.append('v_or3_b32 %s, %s, %s, %s' % (V(C), V(C), V(C + 1), V(C + 2)))
        return o + ['v_bitop3_b32 %s, %s, 1, %s bitop3:0xc8' % (V(C), V(C), V(C + 1)), 'v_cmp%s_ne_u32 vcc, 0, %s' % (x, V(C))]
    def ror(d, n): return 'v_add_f32_dpp %s, %s, %s row_ror:%d row_mask:0xf bank_mask:0xf' % (V(d), V(d), V(d), n)
    def pub(d, ad, so): return [cvt(d, d, d + 1), 'buffer_store_dword %s, %s, %s, %s offen %s' % (V(d), V(ad), WS, S(so), sf)]
    lates = []
    def misc():
        a('v_mov_b32 %s, 0x3f80' % V(SEL + 3))
        a(cnd(SEL + 3, V(SEL + 3), '1.0', sOdd))
        a([cnd(SEL + r, '0', V(SEL + 3), sSel + 2 * r) for r in range(4)])
        a(m2_addr(MA, TT))
        a('v_subrev_u32 %s, 0x20000, %s' % (V(vT16), V(vT16)))
        a('v_mov_b32 %s, -1' % V(NEG))
        a('v_add_u32 %s, %s, %s' % (V(LA), S(sM2b), V(vL16)))
        for f in kvm_stores(Seq(a), a, KQ, TT)[:4]: f()
    def kb01():
        qq = Seq(a); qq.base = 0
        a(frag_read(qq, 0, W0, None)); a(frag_read(qq, 1, W0 + 8, None))
    def hop2(hx):
        quads = [VX, VX + 4, YH][:2 + hx]
        lds = ldi(VX, sM2a) + ldi(YH, sM2c, hx)
        a('buffer_store_dword %s, %s, %s, %s offen %s' % (V(NEG), V(MA), WS, S(sM2x), sf))
        if hx: a('buffer_store_dword %s, %s, %s, %s offen %s' % (V(NEG), V(HA), WS, S(sM2xh), sf))
        a('v_cmp_gt_u32 vcc, %s, %s' % (S(sTm2), V(vDum)))
        if hx: kb01()
        for i in range(8): a(mov2(W1 + 2 * i, '0'))
        Lf = a.lab('fok'); Lfw = a.lab('fw'); L2 = a.lab('p2')
        a('s_cmp_lg_u32 vcc_hi, 0')
        a('s_cbranch_scc1 ' + Lfw)
        a(Lf + ':')
        lates.append((Lfw, Lf))
        a(step_addrs())
        delay(opt.get('d2', 20) - 6 * hx + hx * opt.get('d2h', 0))
        a(lds)
        delay(opt.get('sp2', 24))
        a(L2 + ':')
        for u in range(3):
            a(lds)
            if stamp: a('s_add_u32 s17, s17, 1')
            a('s_waitcnt vmcnt(%d)' % len(lds))
            c = chk(quads, C, 'x')
            a(c[:-1])
            for m in range(2 + hx): a('ds_write_b128 %s, %s offset:%d' % (V(LA), V(quads[m], 4), L_MEM + (0, 1024, 8192)[m]))
            a(c[-1])
            st('h2e')
            a('s_cbranch_execz ' + Lstep)
        a('s_sub_u32 %s, %s, 1' % (S(sSpin), S(sSpin)))
        a('s_cbranch_scc0 ' + L2)
        a('s_endpgm')
    def reduce1(ins):
        Lr = a.lab('r1'); Lr2 = a.lab('r2'); Lb = a.lab('b1')
        def attempt(x, young, L):
            a('s_waitcnt vmcnt(%d)' % (young + 1)); a(red(D, x, 0))
            a('s_waitcnt vmcnt(%d)' % young); a(red(D, x, 1))
            st('got1')
            a(tchk([x, x + 4]))
            a('s_nop 3')
            a(ror(D, 4)); a(ror(D + 1, 4))
            a('s_cbranch_vccnz ' + L)
            a(ror(D, 8)); a(ror(D + 1, 8))
            a(pub(D, MA, sM2w))
        attempt(X, 2 * ins, Lr2 if ins else Lr)
        a(Lb + ':')
        st('pub')
        def tail():
            x = VX if ins else X
            if ins:
                a(Lr2 + ':')
                if stamp: a('s_add_u32 s17, s17, 0x100')
                attempt(VX, 0, Lr)
                a('s_branch ' + Lb)
            retry(Lr, ldi(x, sP1r), tchk([x, x + 4], 'x'), (16, 1))
            a('s_nop 2')
            a(red(D, x, 0)); a(red(D, x, 1)); a('s_nop 7')
            a(ror(D, 4)); a(ror(D + 1, 4)); a('s_nop 0'); a(ror(D, 8)); a(ror(D + 1, 8))
            a(pub(D, MA, sM2w))
            if not ins: a('s_waitcnt vmcnt(1)')
            a('s_branch ' + Lb)
        tails.append(tail)
    LH = a.lab('wH'); Lq = a.lab('q1')
    a('s_cbranch_scc1 ' + LH)
    misc(); kb01()
    st('pre1')
    for w in (1, 2):
        a('s_cmp_eq_u32 s4, %d' % w); a('s_waitcnt vmcnt(%d)' % (3 - w + opt.get('e1', 0))); a('s_cbranch_scc1 ' + Lq)
    a('s_waitcnt vmcnt(%d)' % opt.get('e1', 0))
    a(Lq + ':')
    st('ack1')
    delay(opt.get('d1', 0))
    a(ldi(X, sP1r))
    if opt.get('sp1', 28): delay(opt.get('sp1', 28)); a(ldi(VX, sP1r))
    reduce1(1 if opt.get('sp1', 28) else 0)
    hop2(0)
    a(LH + ':')
    st('pre1')
    a(h_addr(HA, TT))
    a('s_waitcnt vmcnt(%d)' % opt.get('a0', 2))
    st('ack1')
    ld3 = ldi(XH, sP1h) + ldi(X, sP1r)
    a(ld3)
    misc()
    Lr = a.lab('r1'); Lb = a.lab('b1')
    quads = [X, X + 4, XH, XH + 4]
    a('s_waitcnt vmcnt(2)'); a(red(DH, XH, 0)); a(red(DH, XH, 1))
    a('s_waitcnt vmcnt(1)'); a(red(D, X, 0))
    a('s_waitcnt vmcnt(0)'); a(red(D, X, 1))
    st('got1')
    a(tchk(quads))
    def fin3(br):
        a(ror(DH + 1, 4)); a(ror(D, 4)); a(ror(D + 1, 4))
        a(ror(DH + 1, 8)); a(ror(D, 8)); a(ror(D + 1, 8))
        if br: a('s_cbranch_vccnz ' + Lr)
        a(pub(D, MA, sM2w))
        a('v_mov_b32_dpp %s, %s quad_perm:[1,0,3,2] row_mask:0xf bank_mask:0xf' % (V(DH + 2), V(DH + 1)))
        a(pub(DH + 1, HA, sM2wh))
    fin3(1)
    a(Lb + ':')
    st('pub')
    hop2(1)
    retry(Lr, ld3, tchk(quads, 'x'), (16, 1))
    a('s_nop 2')
    a(red(DH, XH, 0)); a(red(DH, XH, 1)); a(red(D, X, 0)); a(red(D, X, 1)); a('s_nop 6')
    fin3(0)
    a('s_waitcnt vmcnt(2)')
    a('s_branch ' + Lb)
    for t_ in tails: t_()
    for Lfw, Lf in lates:
        a(Lfw + ':')
        wait_flag(a, S(sFPB), S(sTm2), 'pb')
        a('s_branch ' + Lf)
    a(Lfail + ':')
    a('s_endpgm')

def chain(a, opt, flags_ready, wflags='nt', stamp=None, stamp_once=None, force_slow=False):
    srd(a, 8, 'B_wq'); srd(a, 12, 'B_wk'); srd(a, 16, 'B_wv'); srd(a, 24, 'B_wo'); srd(a, 28, 'dbg'); srd(a, 32, 'B_mem0')
    setup(a)
    a('s_waitcnt lgkmcnt(0)')
    init_handoff(a)
    load_weights(a, wflags, arrive, (8, opt.get('cL', 57)), early(a, opt))
    if stamp_once: stamp_once(a, 1)
    start(a, (lambda: stamp_once(a, 2)) if stamp_once else None)
    Lslow = a.lab('slow'); Lexit = a.lab('chexit')
    if force_slow: a('s_branch ' + Lslow)
    a('s_cbranch_scc0 ' + Lslow)
    step_loop(a, '', Lexit, opt, stamp)
    a(Lslow + ':')
    step_loop(a, 'sc1', Lexit, opt, stamp)
    a(Lexit + ':')
    q = Seq(a)
    a('s_add_u32 %s, %s, 0x20000' % (S(sKVM), S(sKVM)))
    for f in kvm_stores(q, a, W3, vPm): f()
    a('s_waitcnt vmcnt(0) lgkmcnt(0)')
    a('s_barrier')
    a('v_subrev_u32 %s, 0x10000, %s' % (V(vT16), V(vT16)))
    a('v_min_u32 %s, 16, %s' % (V(vT16), V(vT16))); a('v_lshlrev_b32 %s, 24, %s' % (V(vT16), V(vT16)))
    a('v_mov_b32 %s, 64' % V(vPm))
    a('buffer_store_dword %s, %s, %s, %s offen sc1' % (V(vPm), V(vT16), WS, S(sFCH)))
```

```python
from common import *
WS = 's[20:23]'
sCs, sT0, sDT, sN, sCtx, sOcol, sFb, sDX, sRot0 = range(32, 41)
sT, sTn, sCnt, sRot, sTmp, sA, sB, sNb, sLb, sSpin, sNeed, sHh, sFo, sOo = range(41, 55)
vL16, vFl, vFa, vRa, vWa, vOa, vRb, vPk = 1, 2, 3, 4, 5, 6, 7, 8
vW2 = 14
vWb = 16
vX, vAcc = 32, 96
WAVE = 40960
def wreg(j, ct, z=None):
    i = (3 * j + ct) * 4
    i = 256 + i if i < 256 else 128 + i - 256
    return U(i, 4) if z is None else U(i + 2 * z, 2)

def load_weights(a, wflags):
    vD, vR = 8, 10
    a('v_bfe_u32 v14, v15, 5, 1'); a('v_bfe_u32 v16, v15, 3, 1'); a('v_lshl_add_u32 v14, v14, 1, v16')
    a('v_bfe_u32 v16, v15, 4, 1'); a('v_lshl_add_u32 v14, v16, 6, v14'); a('v_mul_u32_u24 v14, 1152, v14')
    a('v_bfe_u32 v17, v15, 1, 2'); a('v_xor_b32 v17, v17, v16'); a('v_lshlrev_b32 v17, 5, v17')
    a('v_and_b32 v16, 1, v15'); a('v_lshl_add_u32 v17, v16, 4, v17')
    a('v_add_u32 %s, v14, v17' % V(vD))
    a('v_xor_b32 v17, 64, v17'); a('v_add_u32 %s, v14, v17' % V(vD + 1))
    a('v_lshrrev_b32 v14, 4, v15'); a('v_bfe_u32 v16, v15, 2, 2'); a('v_lshl_add_u32 v14, v14, 3, v16'); a('v_lshlrev_b32 v14, 7, v14')
    a('v_bfe_u32 v16, v15, 3, 2'); a('v_lshl_add_u32 v14, v16, 5, v14')
    a('v_and_b32 v16, 3, v15'); a('v_lshl_add_u32 v14, v16, 3, v14')
    for ct in range(4):
        a('v_xor_b32 v16, %d, v14' % (32 * ct)); a('v_add_u32 %s, %s, v16' % (V(vR + ct), S(sLb)))
    a('s_lshl_b32 %s, %s, 7' % (S(sB), S(sCs)))
    D = 6
    def slot(j): return 8192 + 4096 * (j % 8)
    def dma(j):
        if j % 4 == 0:
            a('s_add_u32 %s, %s, %d' % (S(sA), S(sRot), j // 4)); a('s_and_b32 %s, %s, 7' % (S(sA), S(sA)))
            a('s_lshl_b32 %s, s4, 3' % S(sTmp)); a('s_add_u32 %s, %s, %s' % (S(sA), S(sA), S(sTmp)))
            a('s_mul_i32 %s, %s, 147456' % (S(sA), S(sA))); a('s_add_u32 %s, %s, %s' % (S(sA), S(sA), S(sB)))
        for y in range(4):
            a('s_add_u32 m0, %s, %d' % (S(sLb), slot(j) + 1024 * y))
            a('s_add_u32 %s, %s, %d' % (S(sTmp), S(sA), (16 * (j % 4) + 4 * y) * 1152))
            a('buffer_load_dwordx4 %s, s[8:11], %s offen %s lds' % (V(vD + y % 2), S(sTmp), wflags))
    def held(j): return vWb + 4 * (j % 2) if j < 8 else vX + 4 * (j - 8)
    for j in range(D): dma(j)
    for j in range(32):
        a('s_waitcnt vmcnt(%d) lgkmcnt(0)' % (4 * min(D - 1, 31 - j)))
        if j + D < 32: dma(j + D)
        if 1 <= j <= 8: a('ds_write_b128 %s, %s offset:%d' % (V(vWa), V(held(j - 1), 4), 1024 * (j - 1)))
        for ct in range(4):
            for z in range(2):
                dst = wreg(j, ct, z) if ct < 3 else V(held(j) + 2 * z, 2)
                a('ds_read_b64_tr_b16 %s, %s offset:%d' % (dst, V(vR + ct), slot(j) + 512 * z))
    a('s_waitcnt lgkmcnt(0)')
    for j in range(8, 32): a('ds_write_b128 %s, %s offset:%d' % (V(vWa), V(held(j), 4), 1024 * j))
    a('s_waitcnt lgkmcnt(0)')

def ostream(a, flag_off, fcnt, wflags='', pre=None, stamp=None, slp=4, oflags=''):
    st = stamp or (lambda a, i: None)
    a('v_and_b32 v15, 63, v0'); a('v_lshlrev_b32 %s, 4, v15' % V(vL16))
    a('v_and_b32 %s, %s, v15' % (V(vFa), fcnt)); a('v_lshlrev_b32 %s, 2, %s' % (V(vFa), V(vFa)))
    a('v_lshrrev_b32 v14, 4, v15'); a('v_min_u32 v14, 1, v14'); a('v_lshl_or_b32 %s, v14, 28, %s' % (V(vFa), V(vFa)))
    a('s_add_u32 %s, %s, %s' % (S(sRot), S(sCs), S(sRot0))); a('s_and_b32 %s, %s, 7' % (S(sRot), S(sRot)))
    a('s_mov_b32 %s, 0x%x' % (S(sSpin), SPIN))
    a('s_mul_i32 %s, s4, %d' % (S(sLb), WAVE))
    a('v_add_u32 %s, %s, %s' % (V(vWa), S(sLb), V(vL16)))
    load_weights(a, wflags)
    a('v_lshrrev_b32 v13, 2, v15'); a('v_and_b32 v14, 3, v15')
    a('s_lshr_b32 %s, s4, 1' % S(sTmp)); a('s_mul_i32 %s, %s, %d' % (S(sTmp), S(sTmp), 16 * 2304))
    a('s_and_b32 %s, s4, 1' % S(sA)); a('s_lshl_b32 %s, %s, 6' % (S(sA), S(sA))); a('s_add_u32 %s, %s, %s' % (S(sTmp), S(sTmp), S(sA)))
    a('s_add_u32 %s, %s, %s' % (S(sOcol), S(sOcol), S(sTmp)))
    a('v_mul_u32_u24 %s, 2304, v13' % V(vOa)); a('v_lshl_add_u32 %s, v14, 4, %s' % (V(vOa), V(vOa)))
    a('v_lshl_add_u32 v13, v14, 2, v13'); a('v_and_b32 v13, 15, v13'); a('v_lshlrev_b32 v13, 4, v13')
    a('s_lshl_b32 %s, s4, 11' % S(sTmp))
    a('v_lshl_add_u32 v12, v14, 9, v13'); a('v_add_u32 v12, %s, v12' % S(sTmp))
    a('v_lshrrev_b32 v13, 5, v15'); a('v_lshl_add_u32 v13, v13, 2, v15'); a('v_and_b32 v13, 15, v13')
    a('v_and_or_b32 v13, v15, 48, v13'); a('v_lshlrev_b32 v13, 4, v13')
    a('v_xor_b32 v14, 0x80, v13')
    a('v_add_u32 %s, %s, v14' % (V(vW2 + 1), S(sLb))); a('v_add_u32 %s, %s, v13' % (V(vW2), S(sLb)))
    a('v_add_u32 %s, %d, v12' % (V(vRa), 32768)); a('v_add_u32 %s, %d, v12' % (V(vRb), 32768 + 2 * WAVE))
    a('s_lshl_b32 %s, %s, 7' % (S(sTmp), S(sCs))); a('s_add_u32 %s, %s, %s' % (S(sOcol), S(sOcol), S(sTmp)))
    a('s_lshl_b32 %s, s4, 16' % S(sTmp)); a('s_add_u32 %s, %s, %s' % (S(sCtx), S(sCtx), S(sTmp)))
    a('s_mov_b32 %s, %s' % (S(sTn), S(sT0)))
    a('s_mov_b32 %s, 0' % S(sCnt))
    if pre: pre(a)
    st(a, 6)
    FL = 'buffer_load_dword %s, %s, %s, %s offen sc1' % (V(vFl), V(vFa), WS, S(sFo))
    CK = ['v_cmp_gt_u32 vcc, %s, %s' % (S(sNeed), V(vFl)), 's_and_b32 %s, vcc_lo, 0xffff' % S(sHh)]
    def spin(L, Lok):
        a(L + ':'); a(FL)
        a('s_waitcnt vmcnt(0)')
        a(CK)
        a('s_cbranch_scc0 ' + Lok)
        a('s_sleep %d' % slp)
        a('s_sub_u32 %s, %s, 1' % (S(sSpin), S(sSpin))); a('s_cbranch_scc0 ' + L)
        a('s_endpgm')
    def head_off(hh):
        return ['s_add_u32 %s, %s, %d' % (S(sHh), S(sRot), hh), 's_and_b32 %s, %s, 7' % (S(sHh), S(sHh)),
                's_lshl_b32 %s, %s, 13' % (S(sHh), S(sHh)), 's_add_u32 %s, %s, %s' % (S(sA), S(sNb), S(sHh)),
                's_add_u32 %s, %s, 4096' % (S(sB), S(sA))]
    def xload(j, tt):
        b = 2 * (j % 4) + tt
        return 'buffer_load_dwordx4 %s, %s, %s, %s offen offset:%d sc1' % (V(vX + 8 * (j % 8) + 4 * tt, 4), V(vL16), WS, S(sB if b >= 4 else sA), 1024 * (b % 4))
    def wread(j): return 'ds_read_b128 %s, %s offset:%d' % (V(vWb + 4 * (j % 4), 4), V(vWa), 1024 * (j % 32))
    NB = ['s_lshl_b32 %s, %s, 18' % (S(sNb), S(sTn)), 's_add_u32 %s, %s, %s' % (S(sNb), S(sNb), S(sCtx))]
    L0 = a.lab('os0'); L0k = a.lab('os0k')
    a(flag_off(sFo, sTn))
    a(wread(0)); a(wread(1))
    spin(L0, L0k)
    a(L0k + ':')
    a(NB)
    for j in range(8):
        if j % 4 == 0: a(head_off(j // 4))
        a(xload(j, 0)); a(xload(j, 1))
    Lloop = a.lab('osl'); Lw = a.lab('osw'); Lwk = a.lab('oswk'); Lend = a.lab('ose')
    a('.p2align 3'); a(Lloop + ':')
    for j in range(32):
        sal = []
        if j == 1:
            sal = ['s_mov_b32 %s, %s' % (S(sT), S(sTn)), 's_add_u32 %s, %s, 1' % (S(sCnt), S(sCnt)), 's_cmp_lt_u32 %s, %s' % (S(sCnt), S(sN)),
                   's_cselect_b32 %s, %s, 0' % (S(sTmp), S(sDT)), 's_xor_b32 %s, %s, %s' % (S(sDT), S(sDT), S(sDX)),
                   's_add_u32 %s, %s, %s' % (S(sTn), S(sTn), S(sTmp))]
        if j == 2: sal = flag_off(sFo, sTn)
        if j == 3: sal = ['s_mul_i32 %s, %s, %d' % (S(sOo), S(sT), 32 * 2304), 's_add_u32 %s, %s, %s' % (S(sOo), S(sOo), S(sOcol))]
        if j == 10: sal = ['s_barrier']
        if j == 13: sal = [FL]
        if j == 22: sal = CK[:1]
        if j == 23: sal = CK[1:] + [['s_cbranch_scc1 ' + Lw, Lwk + ':']] + NB
        if j % 4 == 0: sal = head_off((j // 4 + 2) % 8)
        a('s_waitcnt vmcnt(14) lgkmcnt(1)')
        for tt in range(2):
            for ct in range(4):
                d = V(vAcc + 16 * tt + 4 * ct, 4)
                w = wreg(j, ct) if ct < 3 else V(vWb + 4 * (j % 4), 4)
                a('v_mfma_f32_16x16x32_bf16 %s, %s, %s, %s' % (d, w, V(vX + 8 * (j % 8) + 4 * tt, 4), d if j else '0'))
                if ct == 3: a(xload(j + 8, tt))
                elif tt == 0: a(sal[2 * ct:2 * ct + 2])
                elif ct == 0: a(wread(j + 2))
    a('s_cmp_lt_u32 %s, %s' % (S(sCnt), S(sN)))
    for t in range(8): a('ds_write_b128 %s, %s offset:%d' % (V(vW2 + t % 2), V(vAcc + 4 * t, 4), 32768 + 1024 * t))
    a('s_waitcnt lgkmcnt(0)')
    a('s_barrier')
    for w in range(4):
        for gg in range(2): a('ds_read_b128 %s, %s offset:%d' % (V(vAcc + 8 * w + 4 * gg, 4), V(vRb if w >= 2 else vRa), WAVE * (w % 2) + 256 * gg))
    for w in range(1, 4):
        a('s_waitcnt lgkmcnt(%d)' % (6 - 2 * w))
        for i in range(4): a('v_pk_add_f32 %s, %s, %s' % (V(vAcc + 2 * i, 2), V(vAcc + 2 * i, 2), V(vAcc + 8 * w + 2 * i, 2)))
    for i in range(4): a('v_cvt_pk_bf16_f32 %s, %s, %s' % (V(vPk + i), V(vAcc + 2 * i), V(vAcc + 2 * i + 1)))
    a('buffer_store_dwordx4 %s, %s, s[24:27], %s offen %s' % (V(vPk, 4), V(vOa), S(sOo), oflags))
    a('s_cbranch_scc1 ' + Lloop)
    a('s_branch ' + Lend)
    spin(Lw, Lwk)
    a(Lend + ':')
    a('s_waitcnt vmcnt(0)')
```

```python
from common import *

sW0, sW1, sO0, sO1, sN, sT0 = 32, 33, 34, 35, 36, 37
sTc, sTp1, sTp2, sCnt, sSlotR, sSlotW, sTmp, sXo, sSt0, sSt1, sM0, sScale = 39, 40, 41, 42, 43, 44, 45, 46, 47, 48, 49, 50

vXb, vXr, vWr = 4, 6, 8
vOffX, vOffW, vOffO, vFlagOff, vFlagVal = 10, 11, 12, 13, 14
vPK = 16
vXF = 32
vACC = 64
def wreg(m, tau, j, NK, z=None):
    i = ((m * 2 + tau) * NK + j) * 4
    i = 256 + i if i < 256 else 224 + i - 256
    return U(i, 4) if z is None else U(i + 2 * z, 2)
def acc(P, m, tau, tt): return vACC + 32 * P + 16 * m + 8 * tau + 4 * tt

def setup_lanes(a, KD):
    PX = KD * 2
    XS = 32 * PX
    a('v_and_b32 v1, 63, v0')
    a('v_lshrrev_b32 v2, 3, v0')
    a('v_mul_u32_u24 %s, %d, v2' % (V(vOffX), PX))
    a('v_lshrrev_b32 v2, 4, v0')
    a('v_xor_b32 v2, v2, v0')
    a('v_and_b32 v2, 7, v2')
    a('v_lshl_add_u32 %s, v2, 4, %s' % (V(vOffX), V(vOffX)))
    a('v_lshrrev_b32 v2, 4, v1')
    a('v_bfe_u32 v3, v1, 1, 3')
    a('v_xor_b32 v2, v2, v3')
    a('v_and_b32 v3, 15, v1')
    a('v_lshlrev_b32 v3, 7, v3')
    a('v_lshl_add_u32 %s, v2, 4, v3' % V(vXb))
    a('v_xor_b32 %s, 64, %s' % (V(vXb + 1), V(vXb)))
    a('v_lshrrev_b32 v2, 4, v0')
    a('v_lshlrev_b32 %s, 13, v2' % V(vOffW))
    a('v_lshrrev_b32 v2, 7, v0')
    a('v_lshrrev_b32 v3, 4, v1')
    a('v_lshl_add_u32 v3, v2, 2, v3')
    a('v_bfe_u32 v2, v1, 1, 3')
    a('v_xor_b32 v2, v2, v3')
    a('v_lshl_add_u32 %s, v2, 5, %s' % (V(vOffW), V(vOffW)))
    a('v_and_b32 v2, 1, v1')
    a('v_lshl_add_u32 %s, v2, 4, %s' % (V(vOffW), V(vOffW)))
    a('v_bfe_u32 v2, v1, 2, 3')
    a('v_xor_b32 v3, s4, v2')
    a('v_lshlrev_b32 v3, 5, v3')
    a('v_and_b32 v2, 3, v2')
    a('v_lshl_add_u32 v3, v2, 8, v3')
    a('v_lshrrev_b32 v2, 4, v1')
    a('v_lshl_add_u32 v3, v2, 11, v3')
    a('v_and_b32 v2, 3, v1')
    a('v_lshl_add_u32 v3, v2, 3, v3')
    a('v_add_u32 %s, %d, v3' % (V(vWr), 2 * XS))
    a('v_xor_b32 v3, 0x80, v3')
    a('v_add_u32 %s, %d, v3' % (V(vWr + 1), 2 * XS))
    a('s_lshl_b32 %s, s4, 11' % S(sTmp))
    a('v_lshl_add_u32 %s, v1, 4, %s' % (V(vOffO), S(sTmp)))

def x_dma(KD, xflags):
    return [('s_add_u32 m0, %s, %d' % (S(sM0), 3968 * kb),
             'buffer_load_dwordx4 %s, s[8:11], %s offen offset:%d %s lds' % (V(vOffX), S(sXo), 128 * kb, xflags))
            for kb in range(KD // 64)]

def default_next(dt):
    def f(dst, src): return ['s_add_u32 %s, %s, %d' % (S(dst), S(src), dt)]
    return f

def pack2(t0, t1, pk, scale=None):
    ins = []
    if scale:
        for t in (t0, t1):
            for i in range(4): ins.append('v_mul_f32 %s, %s, %s' % (V(t + i), scale, V(t + i)))
    for j, (t, hf) in enumerate([(t0, 0), (t1, 0), (t0, 1), (t1, 1)]):
        ins.append('v_cvt_pk_bf16_f32 %s, %s, %s' % (V(pk + j), V(t + 2 * hf), V(t + 2 * hf + 1)))
    return ins

def load_weights(a, KD, wflags):
    NK = KD // 32; XS = 64 * KD; STG = 2 * XS
    def dma(u):
        o = []
        for m in range(2):
            for pp in range(2):
                o.append('s_add_u32 m0, %s, %d' % (S(sM0), STG + (u % 4) * 16384 + m * 8192 + pp * 4096))
                o.append('s_add_u32 %s, %s, %d' % (S(sTmp), S(sW0 + m), (32 * u + 16 * pp) * 8192))
                o.append('buffer_load_dwordx4 %s, %s, %s offen %s lds' % (V(vOffW), S(12 + 4 * m, 4), S(sTmp), wflags))
        return o
    a('s_lshl_b32 %s, s4, 10' % S(sM0))
    for u in range(3): a(dma(u))
    for u in range(NK):
        left = min(2, NK - 1 - u)
        a('s_waitcnt vmcnt(%d) lgkmcnt(0)' % (4 * left))
        a('s_barrier')
        if u + 3 < NK: a(dma(u + 3))
        for m in range(2):
            for tau in range(2):
                for z in range(2):
                    a('ds_read_b64_tr_b16 %s, %s offset:%d' % (wreg(m, tau, u, NK, z), V(vWr + tau),
                      (u % 4) * 16384 + m * 8192 + z * 1024))

def prologue(a, KD, nxt, xflags, wflags):
    XS = 64 * KD
    setup_lanes(a, KD)
    a('s_mov_b32 %s, %s' % (S(sTc), S(sT0)))
    a(nxt(sTp1, sTc))
    for slot, t in ((0, sTc), (1, sTp1)):
        a('s_lshl_b32 %s, s4, 10' % S(sM0))
        if slot: a('s_add_u32 %s, %s, %d' % (S(sM0), S(sM0), XS))
        a('s_mul_i32 %s, %s, %d' % (S(sXo), S(t), XS))
        for s_, d in x_dma(KD, xflags): a([s_, 's_nop 0', d])
    load_weights(a, KD, wflags)
    a('s_mov_b32 %s, 0x%x' % (S(sScale), QSCALE))
    a('s_mov_b32 %s, 0' % S(sCnt))
    a('s_mov_b32 %s, 0' % S(sSlotR))
    a('s_mov_b32 %s, %d' % (S(sSlotW), 2 * XS))
    for s in range(2): a('v_mov_b32 %s, %s' % (V(vXr + s), V(vXb + s)))

def xfrag(J, tt): return V(vXF + 8 * (J % 4) + 4 * tt, 4)
def xread(J, tt, NK):
    j = J % NK
    return 'ds_read_b128 %s, %s offset:%d' % (xfrag(J, tt), V(vXr + j % 2), 4096 * (j // 2) + 2048 * tt)

def tile_mfmas(P, KD, mode, accset=None):
    NK = KD // 32
    main = []
    for j in range(NK):
        for tt in range(2):
            for m in range(2):
                for tau in range(2):
                    d = V(acc(P if accset is None else accset, m, tau, tt), 4)
                    c = d if j else '0'
                    w = wreg(m, tau, j, NK); xf = xfrag(P * NK + j, tt)
                    if m == 1 and mode == 'kv': main.append('v_mfma_f32_16x16x32_bf16 %s, %s, %s, %s' % (d, xf, w, c))
                    else: main.append('v_mfma_f32_16x16x32_bf16 %s, %s, %s, %s' % (d, w, xf, c))
    return main

def stream_fill(put, P, KD, nxt, xflags, vm, after_bar=None, d0=1):
    NK = KD // 32; XS = 64 * KD
    for j in range(NK):
        if j == NK - 2:
            put(8 * j, ['s_waitcnt vmcnt(%d)' % vm, 's_barrier'])
        put(8 * j, xread(P * NK + j + 2, 0, NK))
        put(8 * j + 1, xread(P * NK + j + 2, 1, NK))
        if j == NK - 2 and after_bar: put(8 * j + 2, after_bar)
        put(8 * j + 7, 's_waitcnt lgkmcnt(2)')
    put(2, nxt(sTp2, sTp1))
    put(3, ['s_add_u32 %s, %s, 2' % (S(sTmp), S(sCnt)), 's_mul_i32 %s, %s, %d' % (S(sXo), S(sTp2), XS)])
    put(4, ['s_cmp_lt_u32 %s, %s' % (S(sTmp), S(sN)), 's_cselect_b32 %s, %s, 0' % (S(sXo), S(sXo))])
    put(5, ['s_lshl_b32 %s, s4, 10' % S(sM0), 's_add_u32 %s, %s, %s' % (S(sM0), S(sM0), S(sSlotW))])
    for kb, (s_, d) in enumerate(x_dma(KD, xflags)):
        b = 8 * (d0 + kb // 2) + 2 + 2 * (kb % 2)
        put(b, s_); put(b + 1, d)
    b = 8 * (NK - 5)
    put(b + 2, ['s_add_u32 %s, %s, %d' % (S(sSlotR), S(sSlotR), XS), 's_cmp_eq_u32 %s, %d' % (S(sSlotR), 4 * XS)])
    put(b + 3, ['s_cselect_b32 %s, 0, %s' % (S(sSlotR), S(sSlotR)), 's_add_u32 %s, %s, %d' % (S(sSlotW), S(sSlotW), XS)])
    put(b + 4, ['s_cmp_eq_u32 %s, %d' % (S(sSlotW), 4 * XS), 's_cselect_b32 %s, 0, %s' % (S(sSlotW), S(sSlotW))])
    for s in range(2):
        put(8 * (NK - 4 + s) + 2, 'v_add_u32 %s, %s, %s' % (V(vXr + s), S(sSlotR), V(vXb + s)))

def spread(put, fill, ins, lo, hi, cap=2):
    free = [g for g in range(lo, hi) for _ in range(max(0, cap - len(fill.get(g, []))))]
    assert len(free) >= len(ins), (len(free), len(ins))
    for i, x in enumerate(ins): put(free[(i * len(free)) // len(ins)], x)

def pstream(a, KD, mode, ostride, nxt, flag=True, xflags='', wflags='', stflags='sc1', pre_loop=None, dbg='', xpf=0, soon=0):
    NK = KD // 32; ND = KD // 64
    prologue(a, KD, nxt, xflags, wflags)
    if pre_loop: pre_loop(a)
    scale = S(sScale) if mode == 'qq' else None
    a('s_lshl_b32 %s, s2, 13' % S(sSt0))
    a('s_add_u32 %s, %s, 0x%x' % (S(sSt0), S(sSt0), WS_DUMP))
    a('s_mov_b32 %s, %s' % (S(sSt1), S(sSt0)))
    a('v_mov_b32 %s, 0' % V(vFlagVal))
    a('s_waitcnt vmcnt(0) lgkmcnt(0)')
    a('s_barrier')
    for J in range(2):
        for tt in range(2): a(xread(J, tt, NK))
    if xpf:
        a('v_lshlrev_b32 v1, 12, v0'); a('s_lshl_b32 %s, s6, 7' % S(sTmp))
        for i in range((2048 * KD * 2 + 0xfffff) >> 20):
            a('buffer_load_dword v15, v1, s[8:11], %s offen %s' % (S(sTmp), xflags))
            a('v_add_u32 v1, 0x100000, v1')
    a('s_waitcnt lgkmcnt(2)')
    def stores(P):
        ins = []
        for m in range(2):
            for b in range(2):
                if m == 1 and mode == 'kv': t0, t1 = acc(P, m, b, 0), acc(P, m, b, 1)
                else: t0, t1 = acc(P, m, 0, b), acc(P, m, 1, b)
                pk = vPK + 8 * m + 4 * b
                ins += pack2(t0, t1, pk, scale)
                ins.append('buffer_store_dwordx4 %s, %s, s[20:23], %s offen offset:%d %s' %
                           (V(pk, 4), V(vOffO), S(sSt0 + m), 1024 * b, stflags))
        return ins
    Lloop = a.lab('ps_loop')
    a(Lloop + ':')
    for P in range(2):
        fill = {}
        def put(i, x): fill.setdefault(i, []).extend(x if isinstance(x, list) else [x])
        main = tile_mfmas(P, KD, mode)
        fl = 'buffer_store_dword %s, %s, s[20:23], 0 offen sc1' % (V(vFlagVal), V(vFlagOff)) if flag is True else None
        stream_fill(put, P, KD, nxt, xflags, ND if soon else ND + 4, fl, 5 if soon else 1)
        e = 8 * (NK - 1)
        put(e + 2, ['s_mul_i32 %s, %s, %d' % (S(sTmp), S(sTc), ostride), 's_add_u32 %s, %s, %s' % (S(sSt0), S(sO0), S(sTmp))])
        put(e + 3, ['s_add_u32 %s, %s, %s' % (S(sSt1), S(sO1), S(sTmp)), ('v_add_u32 %s, 1, %s' % (V(vFlagVal), V(vFlagVal))) if soon else 'v_mov_b32 %s, %s' % (V(vFlagVal), S(sCnt))])
        put(e + 4, ['s_mov_b32 %s, %s' % (S(sTc), S(sTp1)), 's_mov_b32 %s, %s' % (S(sTp1), S(sTp2))])
        put(e + 5, ['s_add_u32 %s, %s, 1' % (S(sCnt), S(sCnt))] + (['s_cmp_lt_u32 %s, %s' % (S(sCnt), S(sN))] if P else []))
        if soon: spread(put, fill, stores(1 - P), 6, 40, cap=1)
        else: spread(put, fill, stores(1 - P), 8 * (2 + ND // 2), 8 * (NK - 2), cap=1 if mode == 'kv' else 2)
        body = weave(main, fill)
        if 'nost' in dbg: body = [x if 'buffer_store_dwordx4' not in x else 's_nop 0' for x in body]
        if 'x0' in dbg: body = [x if not x.startswith('s_cselect_b32 s46') else 's_mov_b32 s46, 0' for x in body]
        if 'st0' in dbg: body = [x if not x.startswith('s_mul_i32 s45') else 's_mov_b32 s45, 0' for x in body]
        if 'nodma' in dbg: body = [x if ' lds' not in x else 's_nop 0' for x in body]
        a(body)
    a('s_cbranch_scc1 ' + Lloop)
    a('s_nop 7')
    a(stores(1))
    a('s_waitcnt vmcnt(0) lgkmcnt(0)')
    a('s_barrier')
    if flag:
        a('v_mov_b32 %s, %s' % (V(vFlagVal), S(sN)))
        a('buffer_store_dword %s, %s, s[20:23], 0 offen sc1' % (V(vFlagVal), V(vFlagOff)))
```

```python
from common import *
import pstream as P
from pstream import sTc, sTp1, sTp2, sCnt, sN, sTmp, sScale
WS = 's[20:23]'
KD = 576; NK = 18; ND = 9
L_Q = 4 * 64 * KD
sHm, sKV, sKV2, sKm, sCx, sFch, sSpin, sFq, sNeed, sKVb, sKmb, sCxb, sOk = range(52, 65)
vL16, vQw, vQr, vIdx, vZ, vFv, vFo = 1, 2, 3, 12, 13, 14, 15
vPK = 16
vF0 = 8
vTo = 11
vO, vQ, vS, vSm = 64, 96, 112, 120
vL = 124
vK, vV, vM, vC, vB = 128, 160, 192, 208, 216
vOne = 220
MF = 'v_mfma_f32_16x16x32_bf16 %s, %s, %s, %s'

KML = ['buffer_load_dwordx4 %s, %s, %s, %s offen offset:%d sc1' % (V(vM + 4 * i, 4), V(vL16), WS, S(sKm), 1024 * i) for i in range(4)]

TOUCH = 'buffer_load_dword %s, %s, %s, %s offen sc1' % (V(vPK + 1), V(vTo), WS, S(sCx))

FLST = 'buffer_store_dword %s, %s, %s, %s offen sc1' % (V(vFv), V(vF0), WS, S(sFq))

def cross_max(x, t):
    return ['v_mov_b32 %s, %s' % (V(t), V(x)), 's_nop 1', 'v_permlane16_swap_b32 %s, %s' % (V(x), V(t)),
            'v_max_f32 %s, %s, %s' % (V(x), V(x), V(t)), 'v_mov_b32 %s, %s' % (V(t), V(x)), 's_nop 1',
            'v_permlane32_swap_b32 %s, %s' % (V(x), V(t)), 'v_max_f32 %s, %s, %s' % (V(x), V(x), V(t))]

def spin(a, so, need, t):
    L = a.lab('qs'); Lok = a.lab('qsk')
    a(L + ':')
    a('buffer_load_dword %s, %s, %s, %s offen sc1' % (V(t), V(vFo), WS, S(so)))
    a('s_waitcnt vmcnt(0)')
    a('v_cmp_le_u32 vcc, %s, %s' % (need, V(t)))
    a('s_cbranch_vccnz ' + Lok)
    a('s_sleep 2')
    a('s_sub_u32 %s, %s, 1' % (S(sSpin), S(sSpin))); a('s_cbranch_scc0 ' + L)
    a('s_endpgm')
    a(Lok + ':')

def attention(a):
    a('s_nop 7')
    for m in range(2):
        for tt in range(2):
            pk = vPK + 8 * m + 4 * tt
            a(P.pack2(P.acc(0, m, 0, tt), P.acc(0, m, 1, tt), pk, None, True))
            a('ds_write_b128 %s, %s offset:%d' % (V(vQw), V(pk, 4), 8192 * m + 1024 * tt))
    a('v_mov_b64 %s, 0' % V(vSm, 2)); a('v_mov_b64 %s, 0' % V(vSm + 2, 2))
    a('s_waitcnt lgkmcnt(0)')
    a('s_barrier')
    for k in range(4): a('ds_read_b128 %s, %s offset:%d' % (V(vQ + 4 * k, 4), V(vQr), 2048 * k))
    Lpre = a.lab('qpre')
    a('s_cmp_lg_u32 %s, 0' % S(sOk)); a('s_cbranch_scc1 ' + Lpre)
    spin(a, sFch, S(sNeed), vPK)
    a(KML)
    a(Lpre + ':')
    a('s_waitcnt vmcnt(4) lgkmcnt(0)')
    for k in range(4):
        for tau in range(2):
            d = V(vS + 4 * tau, 4)
            a(MF % (d, V(vK + 4 * (2 * k + tau), 4), V(vQ + 4 * k, 4), d if k else V(vC + 4 * tau, 4)))
    T = vPK + 8
    a('s_nop 7')
    a('v_max3_f32 %s, %s, %s, %s' % (V(T), V(vS), V(vS + 1), V(vS + 2)))
    a('v_max3_f32 %s, %s, %s, %s' % (V(T), V(T), V(vS + 3), V(vS + 4)))
    a('v_max3_f32 %s, %s, %s, %s' % (V(T), V(T), V(vS + 5), V(vS + 6)))
    a('v_max_f32 %s, %s, %s' % (V(T), V(T), V(vS + 7)))
    for tp in range(2):
        a('s_waitcnt vmcnt(%d)' % (2 - 2 * tp))
        for z in range(2): a('v_mov_b64 %s, %s' % (V(vPK + 4 * tp + 2 * z, 2), V(vM + 4 * (2 * tp + z), 2)))
        a('s_nop 1')
        a('v_smfmac_f32_16x16x64_bf16 %s, %s, %s, %s' % (V(vSm, 4), V(vPK + 4 * tp, 4), V(vQ + 8 * tp, 8), V(vIdx)))
    a('s_nop 7')
    for i in range(2): a('v_add_f32 %s, %s, %s' % (V(vSm + i), V(vSm + i), V(vSm + 2 + i)))
    for i in range(2): a('v_mul_f32 %s, %s, %s' % (V(vSm + i), S(sScale), V(vSm + i)))
    a('v_max3_f32 %s, %s, %s, %s' % (V(T), V(T), V(vSm), V(vSm + 1)))
    a(cross_max(T, T + 1))
    vals = list(range(vS, vS + 10))
    for x in vals: a('v_sub_f32 %s, %s, %s' % (V(x), V(x), V(T)))
    for x in vals[8:] + vals[:8]: a('v_exp_f32 %s, %s' % (V(x), V(x)))
    Px = T + 4
    a('v_cvt_pk_bf16_f32 %s, %s, %s' % (V(vB), V(vSm), V(vSm + 1)))
    a('v_cvt_pk_bf16_f32 %s, %s, %s' % (V(vB + 3), V(vSm), V(vSm + 1)))
    for j, o in enumerate((0, 4, 2, 6)): a('v_cvt_pk_bf16_f32 %s, %s, %s' % (V(Px + j), V(vS + o), V(vS + o + 1)))
    M16 = 'v_mfma_f32_16x16x16_bf16 %s, %s, %s, 0'
    a(M16 % (V(vL, 4), V(vOne, 2), V(vB, 2)))
    for f in range(8): a(M16 % (V(vO + 4 * f, 4), V(vM + 4 * (f // 2) + 2, 2), V(vB + 2 * (f % 2), 2)))
    a(MF % (V(vL, 4), V(vOne, 4), V(Px, 4), V(vL, 4)))
    for f in range(8): a(MF % (V(vO + 4 * f, 4), V(vV + 4 * f, 4), V(Px, 4), V(vO + 4 * f, 4)))
    a('v_rcp_f32 %s, %s' % (V(vL), V(vL)))
    a('s_add_u32 %s, %s, 4096' % (S(sTmp), S(sCx)))
    for k in range(4):
        x = vO + 8 * k; pk = vQ + 4 * k
        for i in range(8): a('v_mul_f32 %s, %s, %s' % (V(x + i), V(x + i), V(vL)))
        for j, o in enumerate((0, 4, 2, 6)): a('v_cvt_pk_bf16_f32 %s, %s, %s' % (V(pk + j), V(x + o), V(x + o + 1)))
        a('buffer_store_dwordx4 %s, %s, %s, %s offen offset:%d sc1' % (V(pk, 4), V(vL16), WS, S(sTmp if k >= 2 else sCx), 2048 * (k % 2)))

def qb(a, nxt, xflags='', wflags='', pre=None, stamp=None):
    st = stamp or (lambda a, i: None)
    P.prologue(a, KD, nxt, xflags, wflags)
    if pre: pre(a)
    a('v_and_b32 v17, 63, v0'); a('v_lshlrev_b32 %s, 4, v17' % V(vL16))
    a('s_lshl_b32 %s, s4, 11' % S(sTmp)); a('s_add_u32 %s, %s, %d' % (S(sTmp), S(sTmp), L_Q))
    a('v_add_u32 %s, %s, %s' % (V(vQw), S(sTmp), V(vL16)))
    a('s_lshr_b32 %s, s4, 1' % S(sKV)); a('s_and_b32 %s, s4, 1' % S(sKV2))
    a('s_add_u32 %s, %s, %s' % (S(sHm), S(sHm), S(sKV)))
    a('s_lshl_b32 %s, %s, 13' % (S(sKV), S(sKV))); a('s_lshl_b32 %s, %s, 10' % (S(sKV2), S(sKV2)))
    a('s_add_u32 %s, %s, %s' % (S(sTmp), S(sKV), S(sKV2))); a('s_add_u32 %s, %s, %d' % (S(sTmp), S(sTmp), L_Q))
    a('v_add_u32 %s, %s, %s' % (V(vQr), S(sTmp), V(vL16)))
    a('s_lshl_b32 %s, %s, 13' % (S(sCxb), S(sHm))); a('s_add_u32 %s, %s, %s' % (S(sCxb), S(sCxb), S(sKV2)))
    a('s_add_u32 %s, %s, 0x%x' % (S(sCxb), S(sCxb), WS_CTXB))
    a('s_lshl_b32 %s, %s, 14' % (S(sKVb), S(sHm))); a('s_add_u32 %s, %s, 0x%x' % (S(sKVb), S(sKVb), WS_KVB))
    a('s_lshl_b32 %s, %s, 12' % (S(sKmb), S(sHm))); a('s_add_u32 %s, %s, 0x%x' % (S(sKmb), S(sKmb), WS_KVM))
    a('s_lshl_b32 %s, %s, 7' % (S(sFch), S(sHm))); a('s_add_u32 %s, %s, 0x%x' % (S(sFch), S(sFch), FLAG(FL_CH)))
    a('s_waitcnt lgkmcnt(0)')
    a('v_min_u32 %s, 1, v0' % V(vF0)); a('v_lshlrev_b32 %s, 28, %s' % (V(vF0), V(vF0)))
    a('s_mov_b32 %s, 0x%x' % (S(sSpin), SPIN))
    a('v_mov_b32 %s, 0' % V(vZ)); a('v_mov_b32 %s, 0' % V(vFv))
    a('v_min_u32 %s, 1, v17' % V(vFo)); a('v_lshlrev_b32 %s, 28, %s' % (V(vFo), V(vFo)))
    a('v_bfe_u32 v18, v17, 3, 2'); a('v_and_b32 v19, 7, v17'); a('v_lshlrev_b32 v19, 7, v19'); a('v_lshl_add_u32 v18, v18, 11, v19')
    a('v_lshrrev_b32 v19, 5, v17'); a('v_lshl_or_b32 %s, v19, 28, v18' % V(vTo))
    a('s_mov_b32 %s, %s' % (S(sCx), S(sKVb)))
    a('v_mov_b32 v18, 0x44444444'); a('v_mov_b32 v19, 0xeeeeeeee')
    a('v_and_b32 v20, 2, v17'); a('v_cmp_eq_u32 vcc, 0, v20'); a('s_nop 1')
    a('v_cndmask_b32 %s, v19, v18, vcc' % V(vIdx))
    a('v_mov_b32 %s, 0' % V(vB + 1)); a('v_mov_b32 %s, 0' % V(vB + 2))
    for i in range(4): a('v_mov_b32 %s, 0x3f803f80' % V(vOne + i))
    a('v_and_b32 v18, 15, v17'); a('v_lshrrev_b32 v19, 4, v17'); a('v_lshlrev_b32 v19, 2, v19'); a('v_sub_u32 v18, v18, v19')
    a('s_lshr_b32 %s, %s, 6' % (S(sTmp), S(sKV2))); a('v_add_u32 v18, %s, v18' % S(sTmp))
    a('v_mov_b32 v19, 0xff800000')
    for tau in range(2):
        for r in range(4):
            a('v_cmp_le_i32 vcc, %d, v18' % (16 * tau + r)); a('s_nop 1')
            a('v_cndmask_b32 %s, v19, %s, vcc' % (V(vC + 4 * tau + r), V(vZ)))
    spin(a, sFch, '1', vPK)
    st(a, 4)
    a('s_waitcnt vmcnt(0) lgkmcnt(0)')
    a('s_barrier')
    for J in range(2):
        for tt in range(2): a(P.xread(J, tt, NK))
    a('s_waitcnt lgkmcnt(2)')
    Lloop = a.lab('qb_loop')
    a(Lloop + ':')
    for ph in range(2):
        fill = {}
        def put(i, x): fill.setdefault(i, []).extend(x if isinstance(x, list) else [x])
        main = [m.replace('XXX', '') for m in P.tile_mfmas(ph, KD, 'qq', accset=0)]
        P.stream_fill(put, ph, KD, nxt, xflags, ND + 19)
        put(6, ['s_lshl_b32 %s, %s, 19' % (S(sKV), S(sTc)), 's_add_u32 %s, %s, %s' % (S(sKV), S(sKV), S(sKVb))])
        put(14, ['s_lshl_b32 %s, %s, 17' % (S(sKm), S(sTc)), 's_add_u32 %s, %s, %s' % (S(sKm), S(sKm), S(sKmb))])
        put(54, ['s_lshl_b32 %s, %s, 18' % (S(sCx), S(sTc)), 's_add_u32 %s, %s, %s' % (S(sCx), S(sCx), S(sCxb))])
        put(30, 's_add_u32 %s, %s, 1' % (S(sNeed), S(sTc)))
        put(50, ['s_waitcnt vmcnt(%d)' % ND, TOUCH])
        put(51, ['s_barrier', FLST])
        for f in range(16):
            g = 8 * (7 + f // 2) + 2 + 2 * (f % 2)
            if f and f % 4 == 0: put(g - 4, 's_add_u32 %s, %s, 4096' % (S(sKV), S(sKV)))
            put(g, 'buffer_load_dwordx4 %s, %s, %s, %s offen offset:%d sc1' % (V(vK + 4 * f, 4), V(vL16), WS, S(sKV), 1024 * (f % 4)))
        Lsk = a.lab('qsk')
        put(52, 'buffer_load_dword %s, %s, %s, %s offen sc1' % (V(vPK), V(vFo), WS, S(sFch)))
        put(131, ['s_waitcnt vmcnt(16)', 'v_cmp_le_u32 vcc, %s, %s' % (S(sNeed), V(vPK))])
        put(133, ['s_and_b32 %s, vcc_lo, 1' % S(sOk), 's_cbranch_scc0 ' + Lsk] + KML + [Lsk + ':'])
        e = 8 * (NK - 1)
        put(e + 3, ['s_mov_b32 %s, %s' % (S(sTc), S(sTp1)), 's_mov_b32 %s, %s' % (S(sTp1), S(sTp2))])
        put(e + 4, ['s_add_u32 %s, %s, 1' % (S(sCnt), S(sCnt)), 'v_mov_b32 %s, %s' % (V(vFv), S(sCnt))])
        a(weave(main, fill))
        attention(a)
    a('s_cmp_lt_u32 %s, %s' % (S(sCnt), S(sN)))
    a('s_cbranch_scc1 ' + Lloop)
    a('s_waitcnt vmcnt(0)')
    a(TOUCH)
    a('s_barrier')
    a(FLST)
```

```python
import sys, os
from common import *
import pstream as P, chain as C, att as T, qb as Q, ostream as O, hazard

def gen(opt, name):
    a = Asm()
    diag = opt.get('diag')
    perm = [int(c) for c in str(opt.get('perm', 'p02145673'))[1:]]
    ROLE = sum(r << (4 * i) for i, r in enumerate(perm))
    def stamp(a, idx, v=20):
        if not diag: return
        a('s_memrealtime s[96:97]'); a('s_memtime s[98:99]'); a('s_waitcnt lgkmcnt(0)')
        a('v_mov_b32 v%d, s98' % v); a('v_mov_b32 v%d, s96' % (v + 1))
        a('s_lshl_b32 s96, s2, 6'); a('s_add_u32 s96, s96, %d' % (WS_STAMP + idx * 8))
        a('v_mov_b32 v%d, 0' % (v + 2))
        a('buffer_store_dwordx2 v[%d:%d], v%d, s[20:23], s96 offen' % (v, v + 1, v + 2))
    def far(cond, lab):
        a('s_cbranch_%s %s' % (cond, lab))
    def flags_ready(a, v=20, gate=False):
        L = a.lab('fr'); Lok = a.lab('frk')
        a('s_mov_b32 s95, 0x%x' % SPIN)
        a('s_cmp_lg_u32 s4, 0'); a('s_cbranch_scc1 ' + Lok)
        a('v_min_u32 v%d, 1, v0' % (v + 1)); a('v_lshlrev_b32 v%d, 28, v%d' % (v + 1, v + 1))
        a(L + ':')
        a('buffer_load_dword v%d, v%d, s[28:31], 0 offen offset:%d sc1' % (v, v + 1, 128 if gate else 0))
        a('s_waitcnt vmcnt(0)')
        a('v_cmp_eq_u32 vcc, %d, v%d' % (1, v))
        a('s_cbranch_vccnz ' + Lok)
        if gate: a('s_sleep 12')
        a('s_sub_u32 s95, s95, 1'); a('s_cbranch_scc0 ' + L)
        a('s_endpgm')
        a(Lok + ':')
    def flag_lane(off_code):
        a(off_code)
        a('v_min_u32 v1, 1, v0'); a('v_lshlrev_b32 v1, 28, v1'); a('v_add_u32 %s, s7, v1' % V(P.vFlagOff))
    def ps_pre(a): flags_ready(a); stamp(a, 1)
    def ps_gate(a): flags_ready(a, gate=not opt.get('nogate')); stamp(a, 1)
    xf, wf = opt.get('xf', ''), opt.get('wf', 'nt')
    a('s_cmp_ge_u32 s2, 256'); far('scc1', 'Lend')
    srd(a, 20, 'ws'); srd(a, 28, 'dbg')
    a('v_lshrrev_b32 v1, 6, v0')
    a('s_and_b32 s5, s2, 7'); a('s_lshr_b32 s6, s2, 3')
    a('v_readfirstlane_b32 s4, v1')
    a('s_lshl_b32 s5, s5, 2'); a('s_lshr_b32 s5, 0x%x, s5' % ROLE); a('s_and_b32 s5, s5, 7')
    a('s_waitcnt lgkmcnt(0)')
    stamp(a, 0)
    a('s_cmp_eq_u32 s5, 0'); far('scc1', 'Lchain')
    a('s_cmp_eq_u32 s5, 1'); far('scc1', 'Lpb')
    a('s_cmp_lt_u32 s5, 4'); far('scc1', 'Lqa')
    srd(a, 8, 'A_ckv'); srd(a, 12, 'A_wuk'); srd(a, 16, 'A_wuv')
    a('s_sub_u32 s3, s5, 4'); a('s_lshl_b32 s3, s3, 3'); a('s_lshr_b32 s7, s6, 2'); a('s_add_u32 s3, s3, s7')
    a('s_lshl_b32 s32, s3, 8'); a('s_mov_b32 s33, s32')
    a('s_lshl_b32 s34, s3, 14'); a('s_add_u32 s34, s34, 0x%x' % WS_KVA); a('s_add_u32 s35, s34, 8192')
    a('s_mov_b32 s36, 16'); a('s_and_b32 s37, s6, 3')
    flag_lane(['s_lshl_b32 s7, s3, 5', 's_add_u32 s7, s7, s37', 's_lshl_b32 s7, s7, 2', 's_add_u32 s7, s7, 0x%x' % FLAG(FL_PA)])
    a('s_waitcnt lgkmcnt(0)')
    P.pstream(a, 512, 'kv', 16384 * 32, P.default_next(4), xflags=xf, wflags=wf, pre_loop=ps_gate, xpf=opt.get('xpf', 1), flag='end')
    stamp(a, 2)
    a('s_mov_b32 s32, s3'); a('s_and_b32 s33, s6, 3'); a('s_sub_u32 s34, 7, s33')
    def att_wait(a):
        L = a.lab('aw'); Lok = a.lab('awk')
        a('s_lshl_b32 s7, s3, 7'); a('s_add_u32 s7, s7, 0x%x' % FLAG(FL_PA))
        a('s_lshr_b32 s94, s3, 1'); a('s_lshl_b32 s94, s94, 7'); a('s_add_u32 s94, s94, 0x%x' % FLAG(FL_QA))
        a('v_mov_b32 v8, 0')
        a(L + ':')
        a('buffer_load_dwordx4 v[16:19], v8, s[20:23], s7 offen sc1')
        a('buffer_load_dwordx4 v[20:23], v8, s[20:23], s94 offen sc1')
        a('s_waitcnt vmcnt(0)')
        a('v_min3_u32 v16, v16, v17, v18'); a('v_min3_u32 v16, v16, v19, v20'); a('v_min3_u32 v16, v16, v21, v22'); a('v_min_u32 v16, v16, v23')
        a('v_cmp_le_u32 vcc, 16, v16')
        a('s_cbranch_vccnz ' + Lok)
        a('s_sleep 2')
        a('s_sub_u32 s95, s95, 1'); a('s_cbranch_scc0 ' + L)
        a('s_endpgm')
        a(Lok + ':')
    T.att(a, att_wait, opt, (lambda a, i: stamp(a, i, 8)))
    stamp(a, 5)
    a('s_cmp_ge_u32 s6, 27'); far('scc1', 'Lfin')
    srd(a, 8, 'A_wo')
    a('s_mul_i32 s7, s6, 29'); a('s_lshr_b32 s7, s7, 8'); a('s_mul_i32 s94, s7, 9')
    a('s_sub_u32 %s, s6, s94' % S(O.sCs))
    a('s_mul_i32 %s, s7, 3' % S(O.sRot0))
    a('s_lshl_b32 s7, s7, 2'); a('s_add_u32 s7, s7, s5'); a('s_sub_u32 %s, s7, 4' % S(O.sT0))
    a('s_mov_b32 %s, 12' % S(O.sDT)); a('s_cmp_lt_u32 %s, 4' % S(O.sT0)); a('s_cselect_b32 %s, 6, 5' % S(O.sN))
    a('s_mov_b32 %s, 0x%x' % (S(O.sCtx), WS_CTXA)); a('s_mov_b32 %s, 0' % S(O.sOcol))
    a('s_lshl_b32 %s, s4, 5' % S(O.sFb)); a('s_add_u32 %s, %s, 0x%x' % (S(O.sFb), S(O.sFb), FLAG(FL_AT)))
    a('s_mov_b32 %s, 0' % S(O.sDX))
    a('s_mov_b32 s93, 0x38'); a('s_mov_b32 s92, 7'); a('s_mov_b32 s91, 4'); a('s_mov_b32 s90, 31')
    a('s_branch Los')
    a('Lpb:')
    srd(a, 8, 'B_x'); srd(a, 12, 'B_wk'); srd(a, 16, 'B_wv')
    a('s_lshl_b32 s32, s6, 8'); a('s_mov_b32 s33, s32')
    a('s_lshl_b32 s34, s6, 14'); a('s_add_u32 s34, s34, 0x%x' % WS_KVB); a('s_add_u32 s35, s34, 8192')
    a('s_mov_b32 s36, 64'); a('s_mov_b32 s37, 0')
    flag_lane(['s_lshl_b32 s7, s6, 7', 's_add_u32 s7, s7, 0x%x' % FLAG(FL_PB)])
    a('s_waitcnt lgkmcnt(0)')
    P.pstream(a, 576, 'kv', 16384 * 32, P.default_next(1), xflags=xf, wflags=wf, pre_loop=ps_pre, xpf=opt.get('xpf', 1), soon=opt.get('soon', 1))
    a('s_branch Lfin')
    a('Lqa:')
    srd(a, 8, 'A_x'); srd(a, 12, 'A_wq'); srd(a, 16, 'A_wq')
    a('s_cmp_eq_u32 s2, %d' % (248 + perm.index(3))); a('s_cbranch_scc0 Lqa1')
    for i in range(4): a('v_mov_b32 v%d, 0' % (4 + i))
    a('v_lshlrev_b32 v1, 4, v0')
    for i in range(5):
        a('s_mov_b32 s7, %d' % (WS_FLAGS + 4096 * i))
        a('buffer_store_dwordx4 v[4:7], v1, s[20:23], s7 offen sc1')
    a('v_min_u32 v1, 1, v0'); a('v_lshlrev_b32 v1, 28, v1'); a('v_mov_b32 v2, 1')
    a('s_waitcnt vmcnt(0)'); a('s_barrier')
    a('buffer_store_dword v2, v1, s[28:31], 0 offen sc1')
    a('Lqa1:')
    a('s_sub_u32 s3, s5, 2'); a('s_lshl_b32 s3, s3, 3'); a('s_lshr_b32 s7, s6, 2'); a('s_add_u32 s3, s3, s7')
    a('s_lshl_b32 s32, s3, 9'); a('s_add_u32 s33, s32, 256')
    a('s_lshl_b32 s34, s3, 14'); a('s_add_u32 s34, s34, 0x%x' % WS_QA); a('s_add_u32 s35, s34, 8192')
    a('s_mov_b32 s36, 16'); a('s_and_b32 s37, s6, 3')
    flag_lane(['s_lshl_b32 s7, s3, 5', 's_add_u32 s7, s7, s37', 's_lshl_b32 s7, s7, 2', 's_add_u32 s7, s7, 0x%x' % FLAG(FL_QA)])
    a('s_waitcnt lgkmcnt(0)')
    P.pstream(a, 576, 'qq', 8192 * 32, P.default_next(4), xflags=xf, wflags=wf, pre_loop=ps_gate, xpf=opt.get('xpf', 1), flag='end')
    stamp(a, 2)
    a('s_sub_u32 s3, s5, 2')
    a('s_add_u32 s7, s6, s3'); a('s_cmp_ge_u32 s7, 30'); far('scc1', 'Lfin')
    a('s_cmp_ge_u32 s6, 16'); far('scc1', 'Lob')
    srd(a, 8, 'B_x'); srd(a, 12, 'B_wq'); srd(a, 16, 'B_wq')
    a('s_lshl_b32 s32, s6, 9'); a('s_add_u32 s33, s32, 256')
    a('s_mov_b32 s36, 32'); a('s_mov_b32 s37, s3')
    a('s_lshl_b32 %s, s6, 1' % S(Q.sHm))
    a('s_lshl_b32 s7, s3, 4'); a('s_add_u32 s7, s7, s6'); a('s_and_b32 s94, s7, 3'); a('s_lshr_b32 s7, s7, 2'); a('s_lshl_b32 s7, s7, 5')
    a('s_add_u32 s7, s7, s94'); a('s_lshl_b32 s7, s7, 2'); a('s_add_u32 %s, s7, 0x%x' % (S(Q.sFq), FLAG(FL_QB)))
    a('s_waitcnt lgkmcnt(0)')
    Q.qb(a, P.default_next(2), xflags=xf, wflags=opt.get('wf2', ''), stamp=stamp)
    a('s_branch Lfin')
    a('Lob:')
    srd(a, 8, 'B_wo')
    a('s_sub_u32 %s, s6, 16' % S(O.sCs))
    a('s_mul_i32 s7, s3, 5'); a('s_add_u32 s7, s7, s6'); a('s_sub_u32 s7, s7, 25')
    a('s_cmp_lt_u32 s6, 25')
    a('s_cselect_b32 %s, %s, s7' % (S(O.sCs), S(O.sCs)))
    a('s_cselect_b32 %s, s3, 4' % S(O.sT0)); a('s_cselect_b32 %s, 2, 1' % S(O.sDT)); a('s_cselect_b32 %s, 6, 4' % S(O.sDX))
    a('s_cselect_b32 %s, 22, 20' % S(O.sN)); a('s_cselect_b32 %s, 0, 4' % S(O.sRot0))
    a('s_mov_b32 %s, 0x%x' % (S(O.sCtx), WS_CTXB)); a('s_mov_b32 %s, 1152' % S(O.sOcol))
    a('s_lshl_b32 s7, s4, 7'); a('s_add_u32 %s, s7, 0x%x' % (S(O.sFb), FLAG(FL_QB)))
    a('s_mov_b32 s93, 1'); a('s_mov_b32 s92, 3'); a('s_mov_b32 s91, 9'); a('s_mov_b32 s90, 1')
    a('Los:')
    srd(a, 24, 'out')
    a('s_waitcnt lgkmcnt(0)')
    O.ostream(a, lambda d, t: ['s_and_b32 %s, %s, s93' % (S(d), S(t)), 's_lshl_b32 %s, %s, s91' % (S(d), S(d)), 's_add_u32 %s, %s, %s' % (S(d), S(d), S(O.sFb)),
                               's_lshr_b32 %s, %s, s90' % (S(O.sNeed), S(t)), 's_add_u32 %s, %s, 1' % (S(O.sNeed), S(O.sNeed))],
              's92', wflags=opt.get('wf2', ''), stamp=stamp, slp=opt.get('slp', 4))
    a('s_branch Lfin')
    a('Lchain:')
    C.chain(a, opt, lambda a: flags_ready(a, 30), wflags=wf, stamp_once=(lambda a, i: stamp(a, i, 20)) if diag else None, force_slow=opt.get('slow'))
    a('Lfin:')
    stamp(a, 7)
    a('Lend:')
    a('s_endpgm')
    head = open(os.path.join(os.path.dirname(os.path.abspath(__file__)), 'header.txt')).read()
    t = head + '; @launch grid=(256,1,1) block=(256,1,1) lds=163840\n' + HEAD + kernel_open(name) + a.text() + RODATA + kernel_desc(name)
    assert hazard.check(t) == 0
    return t
if __name__ == '__main__':
    opt = {}
    for x in (sys.argv[1] if len(sys.argv) > 1 else '').split(','):
        if x:
            k, v = x.split('='); opt[k] = int(v) if v.lstrip('-').isdigit() else v
    print(gen(opt, KNAME + '_kernel'), end='')
```

```python
import sys, os
from common import *
import pstream as P, chain as C, att as T, qb as Q, ostream as O, hazard

def gen(opt, name):
    a = Asm()
    diag = opt.get('diag')
    perm = [int(c) for c in str(opt.get('perm', 'p02145673'))[1:]]
    ROLE = sum(r << (4 * i) for i, r in enumerate(perm))
    def stamp(a, idx, v=20):
        if not diag: return
        a('s_memrealtime s[96:97]'); a('s_memtime s[98:99]'); a('s_waitcnt lgkmcnt(0)')
        a('v_mov_b32 v%d, s98' % v); a('v_mov_b32 v%d, s96' % (v + 1))
        a('s_lshl_b32 s96, s2, 6'); a('s_add_u32 s96, s96, %d' % (WS_STAMP + idx * 8))
        a('v_mov_b32 v%d, 0' % (v + 2))
        a('buffer_store_dwordx2 v[%d:%d], v%d, s[20:23], s96 offen' % (v, v + 1, v + 2))
    def far(cond, lab):
        a('s_cbranch_%s %s' % (cond, lab))
    def flags_ready(a, v=20, gate=False):
        L = a.lab('fr'); Lok = a.lab('frk')
        a('s_mov_b32 s95, 0x%x' % SPIN)
        a('s_cmp_lg_u32 s4, 0'); a('s_cbranch_scc1 ' + Lok)
        a('v_min_u32 v%d, 1, v0' % (v + 1)); a('v_lshlrev_b32 v%d, 28, v%d' % (v + 1, v + 1))
        a(L + ':')
        a('buffer_load_dword v%d, v%d, s[28:31], 0 offen offset:%d sc1' % (v, v + 1, 128 if gate else 0))
        a('s_waitcnt vmcnt(0)')
        a('v_cmp_eq_u32 vcc, %d, v%d' % (1, v))
        a('s_cbranch_vccnz ' + Lok)
        if gate: a('s_sleep 12')
        a('s_sub_u32 s95, s95, 1'); a('s_cbranch_scc0 ' + L)
        a('s_endpgm')
        a(Lok + ':')
    def flag_lane(off_code):
        a(off_code)
        a('v_min_u32 v1, 1, v0'); a('v_lshlrev_b32 v1, 28, v1'); a('v_add_u32 %s, s7, v1' % V(P.vFlagOff))
    def ps_pre(a): flags_ready(a); stamp(a, 1)
    def ps_gate(a): flags_ready(a, gate=opt.get('usegate')); stamp(a, 1)
    xf, wf = opt.get('xf', ''), opt.get('wf', '')
    a('s_cmp_ge_u32 s2, 256'); far('scc1', 'Lend')
    srd(a, 20, 'ws'); srd(a, 28, 'dbg')
    a('v_lshrrev_b32 v1, 6, v0')
    a('s_and_b32 s5, s2, 7'); a('s_lshr_b32 s6, s2, 3')
    a('v_readfirstlane_b32 s4, v1')
    a('s_lshl_b32 s5, s5, 2'); a('s_lshr_b32 s5, 0x%x, s5' % ROLE); a('s_and_b32 s5, s5, 7')
    a('s_waitcnt lgkmcnt(0)')
    stamp(a, 0)
    if opt.get('cpf', 0):
        a('s_getpc_b64 s[8:9]'); a('Lpc:')
        a('s_lshl_b32 s7, s6, 13'); a('s_cmp_le_u32 s7, Lend - Lpc'); a('s_cselect_b32 s3, s4, 1')
        a('s_cmp_eq_u32 s3, 0'); a('s_cbranch_scc0 Lcpf')
        a('v_lshl_add_u32 v1, v0, 7, s7'); a('v_min_u32 v1, Lend - Lpc, v1')
        a('global_load_dword v255, v1, s[8:9]')
        a('Lcpf:')
    a('s_cmp_eq_u32 s5, 0'); far('scc1', 'Lchain')
    a('s_cmp_eq_u32 s5, 1'); far('scc1', 'Lpb')
    a('s_cmp_lt_u32 s5, 4'); far('scc1', 'Lqa')
    srd(a, 8, 'A_ckv'); srd(a, 12, 'A_wuk'); srd(a, 16, 'A_wuv')
    a('s_sub_u32 s3, s5, 4'); a('s_lshl_b32 s3, s3, 3'); a('s_lshr_b32 s7, s6, 2'); a('s_add_u32 s3, s3, s7')
    a('s_lshl_b32 s32, s3, 8'); a('s_mov_b32 s33, s32')
    a('s_lshl_b32 s34, s3, 14'); a('s_add_u32 s34, s34, 0x%x' % WS_KVA); a('s_add_u32 s35, s34, 8192')
    a('s_mov_b32 s36, 16'); a('s_and_b32 s37, s6, 3')
    flag_lane(['s_lshl_b32 s7, s3, 5', 's_add_u32 s7, s7, s37', 's_lshl_b32 s7, s7, 2', 's_add_u32 s7, s7, 0x%x' % FLAG(FL_PA)])
    a('s_waitcnt lgkmcnt(0)')
    P.pstream(a, 512, 'kv', 16384 * 32, P.default_next(4), xflags=xf, wflags=wf, pre_loop=ps_gate, xpf=opt.get('xpf', 1), flag='end')
    stamp(a, 2)
    a('s_mov_b32 s32, s3'); a('s_and_b32 s33, s6, 3'); a('s_sub_u32 s34, 7, s33')
    def att_wait(a):
        L = a.lab('aw'); Lok = a.lab('awk')
        a('s_lshl_b32 s7, s3, 7'); a('s_add_u32 s7, s7, 0x%x' % FLAG(FL_PA))
        a('s_lshr_b32 s94, s3, 1'); a('s_lshl_b32 s94, s94, 7'); a('s_add_u32 s94, s94, 0x%x' % FLAG(FL_QA))
        a('v_mov_b32 v8, 0')
        a(L + ':')
        a('buffer_load_dwordx4 v[16:19], v8, s[20:23], s7 offen sc1')
        a('buffer_load_dwordx4 v[20:23], v8, s[20:23], s94 offen sc1')
        a('s_waitcnt vmcnt(0)')
        a('v_min3_u32 v16, v16, v17, v18'); a('v_min3_u32 v16, v16, v19, v20'); a('v_min3_u32 v16, v16, v21, v22'); a('v_min_u32 v16, v16, v23')
        a('v_cmp_le_u32 vcc, 16, v16')
        a('s_cbranch_vccnz ' + Lok)
        a('s_sleep 2')
        a('s_sub_u32 s95, s95, 1'); a('s_cbranch_scc0 ' + L)
        a('s_endpgm')
        a(Lok + ':')
    T.att(a, att_wait, opt, (lambda a, i: stamp(a, i, 8)))
    stamp(a, 5)
    a('s_cmp_ge_u32 s6, 27'); far('scc1', 'Lfin')
    srd(a, 8, 'A_wo')
    a('s_mul_i32 s7, s6, 29'); a('s_lshr_b32 s7, s7, 8'); a('s_mul_i32 s94, s7, 9')
    a('s_sub_u32 %s, s6, s94' % S(O.sCs))
    a('s_mul_i32 %s, s7, 3' % S(O.sRot0))
    a('s_lshl_b32 s7, s7, 2'); a('s_add_u32 s7, s7, s5'); a('s_sub_u32 %s, s7, 4' % S(O.sT0))
    a('s_mov_b32 %s, 12' % S(O.sDT)); a('s_cmp_lt_u32 %s, 4' % S(O.sT0)); a('s_cselect_b32 %s, 6, 5' % S(O.sN))
    a('s_mov_b32 %s, 0x%x' % (S(O.sCtx), WS_CTXA)); a('s_mov_b32 %s, 0' % S(O.sOcol))
    a('s_lshl_b32 %s, s4, 5' % S(O.sFb)); a('s_add_u32 %s, %s, 0x%x' % (S(O.sFb), S(O.sFb), FLAG(FL_AT)))
    a('s_mov_b32 %s, 0' % S(O.sDX))
    a('s_mov_b32 s93, 0x38'); a('s_mov_b32 s92, 7'); a('s_mov_b32 s91, 4'); a('s_mov_b32 s90, 31')
    a('s_branch Los')
    a('Lpb:')
    srd(a, 8, 'B_x'); srd(a, 12, 'B_wk'); srd(a, 16, 'B_wv')
    a('s_lshl_b32 s32, s6, 8'); a('s_mov_b32 s33, s32')
    a('s_lshl_b32 s34, s6, 14'); a('s_add_u32 s34, s34, 0x%x' % WS_KVB); a('s_add_u32 s35, s34, 8192')
    a('s_mov_b32 s36, 64'); a('s_mov_b32 s37, 0')
    flag_lane(['s_lshl_b32 s7, s6, 7', 's_add_u32 s7, s7, 0x%x' % FLAG(FL_PB)])
    a('s_waitcnt lgkmcnt(0)')
    P.pstream(a, 576, 'kv', 16384 * 32, P.default_next(1), xflags=xf, wflags=wf, pre_loop=ps_pre, xpf=opt.get('xpf', 1), soon=opt.get('soon', 1), kscale=1)
    a('s_branch Lfin')
    a('Lqa:')
    srd(a, 8, 'A_x'); srd(a, 12, 'A_wq'); srd(a, 16, 'A_wq')
    a('s_cmp_eq_u32 s2, %d' % (248 + perm.index(3))); a('s_cbranch_scc0 Lqa1')
    for i in range(4): a('v_mov_b32 v%d, 0' % (4 + i))
    a('v_lshlrev_b32 v1, 4, v0')
    for i in range(5):
        a('s_mov_b32 s7, %d' % (WS_FLAGS + 4096 * i))
        a('buffer_store_dwordx4 v[4:7], v1, s[20:23], s7 offen sc1')
    a('v_min_u32 v1, 1, v0'); a('v_lshlrev_b32 v1, 28, v1'); a('v_mov_b32 v2, 1')
    a('s_waitcnt vmcnt(0)'); a('s_barrier')
    a('buffer_store_dword v2, v1, s[28:31], 0 offen sc1')
    a('Lqa1:')
    a('s_sub_u32 s3, s5, 2'); a('s_lshl_b32 s3, s3, 3'); a('s_lshr_b32 s7, s6, 2'); a('s_add_u32 s3, s3, s7')
    a('s_lshl_b32 s32, s3, 9'); a('s_add_u32 s33, s32, 256')
    a('s_lshl_b32 s34, s3, 14'); a('s_add_u32 s34, s34, 0x%x' % WS_QA); a('s_add_u32 s35, s34, 8192')
    a('s_mov_b32 s36, 16'); a('s_and_b32 s37, s6, 3')
    flag_lane(['s_lshl_b32 s7, s3, 5', 's_add_u32 s7, s7, s37', 's_lshl_b32 s7, s7, 2', 's_add_u32 s7, s7, 0x%x' % FLAG(FL_QA)])
    a('s_waitcnt lgkmcnt(0)')
    P.pstream(a, 576, 'qq', 8192 * 32, P.default_next(4), xflags=xf, wflags=wf, pre_loop=ps_gate, xpf=opt.get('xpf', 1), flag='end')
    stamp(a, 2)
    a('s_sub_u32 s3, s5, 2')
    a('s_add_u32 s7, s6, s3'); a('s_cmp_ge_u32 s7, 30'); far('scc1', 'Lfin')
    a('s_cmp_ge_u32 s6, 16'); far('scc1', 'Lob')
    srd(a, 8, 'B_x'); srd(a, 12, 'B_wq'); srd(a, 16, 'B_wq')
    a('s_lshl_b32 s32, s6, 9'); a('s_add_u32 s33, s32, 256')
    a('s_mov_b32 s36, 32'); a('s_mov_b32 s37, s3')
    a('s_lshl_b32 %s, s6, 1' % S(Q.sHm))
    a('s_lshl_b32 s7, s3, 4'); a('s_add_u32 s7, s7, s6'); a('s_and_b32 s94, s7, 3'); a('s_lshr_b32 s7, s7, 2'); a('s_lshl_b32 s7, s7, 5')
    a('s_add_u32 s7, s7, s94'); a('s_lshl_b32 s7, s7, 2'); a('s_add_u32 %s, s7, 0x%x' % (S(Q.sFq), FLAG(FL_QB)))
    a('s_waitcnt lgkmcnt(0)')
    Q.qb(a, P.default_next(2), xflags=xf, wflags=opt.get('wf2', ''), stamp=stamp)
    a('s_branch Lfin')
    a('Lob:')
    srd(a, 8, 'B_wo')
    a('s_sub_u32 %s, s6, 16' % S(O.sCs))
    a('s_mul_i32 s7, s3, 5'); a('s_add_u32 s7, s7, s6'); a('s_sub_u32 s7, s7, 25')
    a('s_cmp_lt_u32 s6, 25')
    a('s_cselect_b32 %s, %s, s7' % (S(O.sCs), S(O.sCs)))
    a('s_cselect_b32 %s, s3, 4' % S(O.sT0)); a('s_cselect_b32 %s, 2, 1' % S(O.sDT)); a('s_cselect_b32 %s, 6, 4' % S(O.sDX))
    a('s_cselect_b32 %s, 22, 20' % S(O.sN)); a('s_cselect_b32 %s, 0, 4' % S(O.sRot0))
    a('s_mov_b32 %s, 0x%x' % (S(O.sCtx), WS_CTXB)); a('s_mov_b32 %s, 1152' % S(O.sOcol))
    a('s_lshl_b32 s7, s4, 7'); a('s_add_u32 %s, s7, 0x%x' % (S(O.sFb), FLAG(FL_QB)))
    a('s_mov_b32 s93, 1'); a('s_mov_b32 s92, 3'); a('s_mov_b32 s91, 9'); a('s_mov_b32 s90, 1')
    a('Los:')
    srd(a, 24, 'out')
    a('s_waitcnt lgkmcnt(0)')
    O.ostream(a, lambda d, t: ['s_and_b32 %s, %s, s93' % (S(d), S(t)), 's_lshl_b32 %s, %s, s91' % (S(d), S(d)), 's_add_u32 %s, %s, %s' % (S(d), S(d), S(O.sFb)),
                               's_lshr_b32 %s, %s, s90' % (S(O.sNeed), S(t)), 's_add_u32 %s, %s, 1' % (S(O.sNeed), S(O.sNeed))],
              's92', wflags=opt.get('wf2', ''), stamp=stamp, slp=opt.get('slp', 4), oflags=opt.get('of', ''))
    a('s_branch Lfin')
    a('Lchain:')
    C.chain(a, opt, lambda a: flags_ready(a, 30), wflags=wf, stamp_once=(lambda a, i: stamp(a, i, 20)) if diag else None, force_slow=opt.get('slow'))
    a('Lfin:')
    stamp(a, 7)
    a('Lend:')
    a('s_endpgm')
    head = open(os.path.join(os.path.dirname(os.path.abspath(__file__)), 'header.txt')).read()
    t = head + '; @launch grid=(256,1,1) block=(256,1,1) lds=163840\n' + HEAD + kernel_open(name) + a.text() + RODATA + kernel_desc(name)
    assert hazard.check(t) == 0
    return t
if __name__ == '__main__':
    opt = {}
    for x in (sys.argv[1] if len(sys.argv) > 1 else '').split(','):
        if x:
            k, v = x.split('='); opt[k] = int(v) if v.lstrip('-').isdigit() else v
    print(gen(opt, KNAME + '_kernel'), end='')
```

```python
from common import *

L_MEM, L_KX, L_Q, L_KM, L_O, L_F = 0, 9216, 17408, 19456, 21632, 24576
M2SZ = P1_BUF
vT16, vDum, vVa, vL16, vVb, vIdx, vPm, vZero, vXw, vXr, vQw, vQr = range(12)
VX, W0, W1, W2, W3 = 12, 20, 36, 52, 64
WREG = 72
sH = 6
sStep, sKV, sKVM, sP1r, sP1h, sM2a, sM2b, sM2c, sM2w, sM2x = 36, 37, 38, 39, 40, 41, 42, 43, 44, 45
sTmp, sSpin, sC, sFPB, sFCH, sTm2, sVXo = 47, 54, 55, 56, 57, 58, 59
sHf = 48
sTag = 46
sP1w = 60
sM2wh, sM2xh, sKXo, sPF, sXq = 65, 66, 67, 68, 69
sLo = 70
sSel, sOdd, sOne = 24, 32, 34
TOGGLE = (sM2w, sM2x, sM2wh, sM2xh, sM2a, sM2c)
WS = 's[20:23]'

WO_ORDER = [8, 0, 1, 2, 3, 4, 5, 6, 7]
frags = [(m, t, tau) for t in range(9) for m in 'qkv' for tau in range(2)] + [('o', tp, tl) for tl in range(9) for tp in range(2)]
lds_frags = [('k', t, 1) for t in range(9)] + [('o', 1, tl) for tl in WO_ORDER[:8]]
reg_frags = [f for f in frags if f not in lds_frags]
assert len(reg_frags) == 55
regpos = {f: (WREG + 8 * i) for i, f in enumerate(reg_frags)}
def fbase(f):
    off = L_F + 8192 * f
    return (off // 65536) * 65536, off % 65536
def smf(d, a_, b): return 'v_smfmac_f32_16x16x64_bf16 %s, %s, %s, %s' % (V(d, 4), V(a_, 4), U(b, 8), V(vIdx))

def spin_fail(a, lab):
    a('s_sub_u32 %s, %s, 1' % (S(sSpin), S(sSpin)))
    a('s_cbranch_scc0 ' + lab)
    a('s_endpgm')

def setup(a):
    a('v_and_b32 v20, 63, v0')
    a('v_lshlrev_b32 %s, 4, v20' % V(vL16))
    a('v_mov_b32 %s, 0' % V(vZero))
    a('s_mov_b32 %s, 0xcccccccc' % S(sHf)); a('s_mov_b32 %s, 0xcccccccc' % S(sHf + 1))
    a('v_mov_b32 v21, 0x44444444'); a('v_mov_b32 v22, 0xeeeeeeee')
    a('v_cndmask_b32 %s, v21, v22, %s' % (V(vIdx), S(sHf, 2)))
    a('s_mul_i32 %s, s4, 544' % S(sTmp))
    a('v_lshrrev_b32 v21, 4, v20'); a('v_lshlrev_b32 v21, 7, v21')
    a('v_and_b32 v22, 32, v20'); a('v_add3_u32 v21, v21, v22, %s' % S(sTmp))
    a('v_and_b32 v22, 15, v20'); a('v_lshl_add_u32 %s, v22, 3, v21' % V(vXw))
    a('v_lshrrev_b32 v21, 5, v20'); a('v_mul_u32_u24 v21, 544, v21')
    a('v_and_b32 v22, 3, v20'); a('v_lshl_add_u32 v21, v22, 7, v21')
    a('v_and_b32 v22, 2, v20'); a('v_lshl_add_u32 v21, v22, 4, v21')
    a('v_and_b32 v22, 16, v20'); a('v_lshl_add_u32 v21, v22, 2, v21')
    a('v_and_b32 v22, 12, v20'); a('v_lshl_add_u32 %s, v22, 1, v21' % V(vXr))
    a('v_lshrrev_b32 v21, 4, v0'); a('v_lshlrev_b32 v21, 7, v21')
    a('v_and_b32 v22, 14, v20'); a('v_lshl_add_u32 v21, v22, 2, v21')
    a('v_and_b32 v22, 1, v20'); a('v_lshl_add_u32 %s, v22, 1, v21' % V(vQw))
    a('v_and_b32 v21, 12, v20'); a('v_lshlrev_b32 v21, 5, v21')
    a('v_lshl_add_u32 v21, v22, 6, v21')
    a('v_and_b32 v22, 48, v20'); a('v_add_u32 %s, v21, v22' % V(vQr))
    a('s_mov_b32 %s, 0x%x' % (S(sC), QSCALE))
    a('s_mov_b32 %s, 0x%x' % (S(sSpin), SPIN))
    a('s_lshl_b32 %s, %s, 6' % (S(sTmp), S(sH)))
    for r in range(3): a('s_add_u32 %s, %s, 0x%x' % (S(sP1w + r), S(sTmp), WS_P1 + 4096 * r))
    a('s_lshl_b32 %s, %s, 7' % (S(sTmp), S(sH)))
    a('s_add_u32 %s, %s, 0x%x' % (S(sFPB), S(sTmp), FLAG(FL_PB)))
    a('s_add_u32 %s, %s, 0x%x' % (S(sFCH), S(sTmp), FLAG(FL_CH)))
    a('s_mul_i32 %s, %s, %d' % (S(sTmp), S(sH), P1_STRIDE))
    a('s_add_u32 %s, %s, 0x%x' % (S(sP1h), S(sTmp), WS_P1 + 4 * 2048))
    a('s_lshl_b32 %s, s4, 11' % S(sTm2))
    a('s_add_u32 %s, %s, %s' % (S(sTmp), S(sTmp), S(sTm2)))
    a('s_add_u32 %s, %s, 0x%x' % (S(sP1r), S(sTmp), WS_P1))
    a('s_lshl_b32 %s, s4, 11' % S(sM2b))
    a('s_add_u32 %s, %s, 0x%x' % (S(sM2a), S(sM2b), WS_M2 + M2SZ))
    a('s_mov_b32 %s, 0x%x' % (S(sM2c), WS_M2 + M2SZ + 8192))
    a('s_lshr_b32 %s, s4, 1' % S(sXq)); a('s_mul_i32 %s, %s, 1088' % (S(sXq), S(sXq)))
    a('s_and_b32 %s, s4, 1' % S(sTmp)); a('s_lshl_b32 %s, %s, 5' % (S(sTmp), S(sTmp)))
    a('s_add_u32 %s, %s, %s' % (S(sXq), S(sXq), S(sTmp)))
    a('s_lshl_b32 %s, %s, 5' % (S(sTmp), S(sH)))
    a('s_add_u32 %s, %s, 0x%x' % (S(sM2wh), S(sTmp), WS_M2 + M2SZ + 8192))
    a('s_add_u32 %s, %s, 0x%x' % (S(sM2xh), S(sTmp), WS_M2 + 8192))
    a('s_lshr_b32 %s, %s, 3' % (S(sTmp), S(sH))); a('s_lshl_b32 %s, %s, 9' % (S(sTmp), S(sTmp)))
    a('s_and_b32 %s, %s, 1' % (S(sTm2), S(sH))); a('s_lshl_b32 %s, %s, 8' % (S(sTm2), S(sTm2)))
    a('s_add_u32 %s, %s, %s' % (S(sTmp), S(sTmp), S(sTm2)))
    a('s_and_b32 %s, %s, 6' % (S(sTm2), S(sH))); a('s_lshl_b32 %s, %s, 5' % (S(sTm2), S(sTm2)))
    a('s_add_u32 %s, %s, %s' % (S(sTmp), S(sTmp), S(sTm2)))
    a('s_lshl_b32 %s, s4, 11' % S(sTm2))
    a('s_add_u32 %s, %s, %s' % (S(sTmp), S(sTmp), S(sTm2)))
    a('s_add_u32 %s, %s, 0x%x' % (S(sM2w), S(sTmp), WS_M2 + M2SZ))
    a('s_add_u32 %s, %s, 0x%x' % (S(sM2x), S(sTmp), WS_M2))
    a('s_lshl_b32 %s, %s, 14' % (S(sTmp), S(sH)))
    a('s_add_u32 %s, %s, 0x%x' % (S(sKV), S(sTmp), WS_KVB))
    a('s_add_u32 %s, %s, %s' % (S(sKXo), S(sKV), S(sTm2)))
    a('s_add_u32 %s, %s, 8192' % (S(sVXo), S(sKXo)))
    a('s_lshl_b32 %s, %s, 12' % (S(sTmp), S(sH)))
    a('s_add_u32 %s, %s, 0x%x' % (S(sKVM), S(sTmp), WS_KVM - 0x20000))
    a('s_mov_b32 %s, 0' % S(sStep))
    a('s_mov_b32 %s, 0' % S(sTag))

def h_addr(d, t):
    x = V(vL16)
    return ['v_bfe_u32 %s, %s, 8, 1' % (V(d), x), 'v_bfe_u32 %s, %s, 9, 1' % (V(t), x),
            'v_lshl_or_b32 %s, %s, 1, %s' % (V(d), V(d), V(t)), 'v_bfe_u32 %s, %s, 5, 1' % (V(t), x),
            'v_lshl_or_b32 %s, %s, 1, %s' % (V(d), V(d), V(t)), 'v_and_b32 %s, 0xd0, %s' % (V(t), x),
            'v_lshlrev_b32 %s, 24, %s' % (V(t), V(t)), 'v_lshl_or_b32 %s, %s, 2, %s' % (V(d), V(d), V(t))]
def m2_addr(d, t):
    x = V(vL16)
    return ['v_bfe_u32 %s, %s, 8, 2' % (V(d), x), 'v_bfe_u32 %s, %s, 2, 4' % (V(t), x),
            'v_lshl_or_b32 %s, %s, 4, %s' % (V(d), V(d), V(t)), 'v_and_b32 %s, 0xc0, %s' % (V(t), x),
            'v_lshl_or_b32 %s, %s, 24, %s' % (V(d), V(t), V(d))]
def p1w_addr(d, t):
    return ['v_bfe_u32 %s, %s, 7, 5' % (V(d), V(vT16)), 'v_mul_u32_u24 %s, %d, %s' % (V(d), P1_STRIDE, V(d)),
            'v_bfe_u32 %s, %s, 4, 3' % (V(t), V(vL16)), 'v_lshl_add_u32 %s, %s, 3, %s' % (V(d), V(t), V(d))]

def init_handoff(a):
    for i in range(4): a('v_mov_b32 %s, 0' % V(W0 + i))
    a('v_mov_b32 %s, -1' % V(W0 + 7))
    a(h_addr(W0 + 4, W0 + 5)); a(m2_addr(W0 + 6, W0 + 5))
    for s_ in (sP1r, sP1h):
        for m in range(2):
            a('buffer_store_dwordx4 %s, %s, %s, %s offen offset:%d sc1' % (V(W0, 4), V(vL16), WS, S(s_), 1024 * m))
    for s_ in (sM2w, sM2x):
        a('buffer_store_dword %s, %s, %s, %s offen sc1' % (V(W0 + 7), V(W0 + 6), WS, S(s_)))
    for s_ in (sM2wh, sM2xh):
        a('buffer_store_dword %s, %s, %s, %s offen sc1' % (V(W0 + 7), V(W0 + 4), WS, S(s_)))

def load_weights(a, wflags, arrive, lead, mid):
    vA, vB, vR, vWb, T, vC = 12, 14, 16, 60, 40, 56
    a('v_and_b32 v30, 63, v0')
    a('v_bfe_u32 v31, v30, 1, 2'); a('v_lshrrev_b32 v32, 5, v30'); a('v_xor_b32 v31, v31, v32')
    a('v_lshlrev_b32 v31, 5, v31'); a('v_and_b32 v32, 1, v30'); a('v_lshl_add_u32 v31, v32, 4, v31')
    a('v_xor_b32 v33, 64, v31')
    a('v_lshrrev_b32 v32, 3, v30')
    a('s_lshl_b32 %s, s4, 4' % S(sTmp))
    a('v_and_b32 v34, 3, v32'); a('v_lshrrev_b32 v35, 2, v32'); a('v_lshl_add_u32 v34, v34, 1, v35')
    a('v_add_u32 v34, %s, v34' % S(sTmp))
    a('v_lshl_add_u32 %s, v34, 13, v31' % V(vA))
    a('v_add_u32 v34, 8, v34')
    a('v_lshl_add_u32 %s, v34, 13, v33' % V(vA + 1))
    a('v_and_b32 v34, 1, v32'); a('v_lshlrev_b32 v34, 6, v34'); a('v_and_b32 v35, 6, v32')
    a('s_lshl_b32 %s, s4, 3' % S(sTmp))
    a('v_add3_u32 v34, v34, v35, %s' % S(sTmp))
    a('v_lshl_add_u32 %s, v34, 13, v31' % V(vC))
    a('v_add_u32 v34, 1, v34')
    a('v_lshl_add_u32 %s, v34, 13, v33' % V(vC + 1))
    a('v_lshrrev_b32 v34, 3, v0')
    a('v_mul_u32_u24 v34, 1152, v34')
    a('v_add_u32 %s, v34, v31' % V(vB))
    a('v_add_u32 v34, %d, v34' % (64 * 1152))
    a('v_add_u32 %s, v34, v33' % V(vB + 1))
    a('v_bfe_u32 v31, v30, 4, 1'); a('v_bfe_u32 v32, v30, 3, 1')
    a('v_lshl_add_u32 v33, v32, 1, v31'); a('v_xor_b32 v33, s4, v33'); a('v_lshlrev_b32 v33, 5, v33')
    a('v_lshl_add_u32 v33, v31, 9, v33'); a('v_lshl_add_u32 v33, v32, 10, v33')
    a('v_bfe_u32 v31, v30, 2, 1'); a('v_lshl_add_u32 v33, v31, 7, v33')
    a('v_lshrrev_b32 v31, 5, v30'); a('v_lshl_add_u32 v33, v31, 11, v33')
    a('v_and_b32 v31, 3, v30'); a('v_lshl_add_u32 %s, v31, 3, v33' % V(vR))
    a('v_add_u32 %s, 0x10000, %s' % (V(vR + 1), V(vR))); a('v_add_u32 %s, 0x20000, %s' % (V(vR + 2), V(vR)))
    a('v_lshlrev_b32 %s, 4, v0' % V(vWb))
    a('v_add_u32 %s, 0x10000, %s' % (V(vWb + 1), V(vWb))); a('v_add_u32 %s, 0x20000, %s' % (V(vWb + 2), V(vWb)))
    sA, sB, sM = 70, 71, 72
    a('s_lshl_b32 %s, %s, 8' % (S(sA), S(sH)))
    a('s_mul_i32 %s, %s, 147456' % (S(sB), S(sH)))
    a('s_lshl_b32 %s, s4, 11' % S(sM))
    vTx, vTn, vTo, vTd, sGA, sGB = 19, 58, 59, 63, 76, 80
    a('s_lshl_b32 %s, s4, 4' % S(sTmp)); a('v_add_u32 v31, %s, v30' % S(sTmp))
    a('s_lshr_b32 %s, s4, 1' % S(sTmp)); a('s_lshl_b32 %s, %s, 5' % (S(sTmp), S(sTmp))); a('v_add_u32 v32, %s, v31' % S(sTmp))
    a('v_lshrrev_b32 v33, 4, v30'); a('v_lshlrev_b32 v33, 28, v33')
    a('v_lshl_or_b32 %s, v31, 13, v33' % V(vTn)); a('v_lshl_or_b32 %s, v32, 13, v33' % V(vTx))
    a('v_mul_u32_u24 v32, 1152, v32'); a('v_or_b32 %s, v32, v33' % V(vTo))
    def touch(n):
        m, t, tau = seq[n]
        if m == 'o':
            a('s_add_u32 %s, %s, %d' % (S(sTmp), S(sGB), 32 * t * 1152 + 128 * tau))
            a('buffer_load_dword %s, %s, s[24:27], %s offen' % (V(vTd), V(vTo), S(sTmp)))
        else:
            row = 512 if t == 8 else 128 * (t // 2) + 32 * (t % 2)
            a('s_add_u32 %s, %s, %d' % (S(sTmp), S(sGA), row * 8192 + 128 * tau))
            a('buffer_load_dword %s, %s, %s, %s offen' % (V(vTd), V(vTn if t == 8 else vTx), S(8 + 4 * 'qkv'.index(m), 4), S(sTmp)))
    def help_others(first):
        for d in range(1, 4):
            L = a.lab('hlp')
            a('s_add_u32 %s, %s, %d' % (S(sTm2), S(sH), d)); a('s_and_b32 %s, %s, 31' % (S(sTm2), S(sTm2)))
            a('s_bitcmp1_b32 s77, %s' % S(sTm2)); a('s_cbranch_scc1 ' + L)
            a('s_lshl_b32 %s, %s, 8' % (S(sGA), S(sTm2))); a('s_mul_i32 %s, %s, 147456' % (S(sGB), S(sTm2)))
            for n in range(first + d - 1, 72, 3): touch(n)
            a(L + ':')
    seq = list(reg_frags)
    n0 = len(seq)
    seq += [lds_frags[n % 17] for n in range(n0, n0 + 17)]
    D = lead[0]
    q = Seq(a, vm=['init'])
    def dma(n):
        m, t, tau = seq[n]
        for zz in range(2):
            a('s_add_u32 m0, %s, %d' % (S(sM), L_F + 8192 * (n % 17) + 1024 * zz))
            if m == 'o':
                if zz == 0: a('s_add_u32 %s, %s, %d' % (S(sTmp), S(sB), 32 * t * 1152 + 128 * tau))
                else: a('s_nop 0')
                q('buffer_load_dwordx4 %s, s[24:27], %s offen %s lds' % (V(vB + zz), S(sTmp), wflags), n)
            else:
                row = 512 if t == 8 else 128 * (t // 2) + 32 * (t % 2)
                if zz == 0: a('s_add_u32 %s, %s, %d' % (S(sTmp), S(sA), row * 8192 + 128 * tau))
                else: a('s_nop 0')
                q('buffer_load_dwordx4 %s, %s, %s offen %s lds' % (V((vA if t == 8 else vC) + zz), S(8 + 4 * 'qkv'.index(m), 4), S(sTmp), wflags), n)
    def finish(n):
        f = seq[n]; t = T + 8 * (n % 2)
        if f in lds_frags:
            b, o = fbase(n % 17)
            for hf in range(2):
                a('ds_write_b128 %s, %s offset:%d' % (V(vWb + b // 65536), V(t + 4 * hf, 4), o + 4096 * hf))
    for n in range(D): dma(n)
    for n in range(72):
        q.wait(n)
        a('s_waitcnt lgkmcnt(0)')
        a('s_barrier')
        if n == 0: arrive(a, q)
        if n + D < 72: dma(n + D)
        mid(n, q)
        if n == 72 - D and lead[1]: help_others(lead[1])
        if n: finish(n - 1)
        f = seq[n]
        dst = regpos.get(f, T + 8 * (n % 2))
        b, o = fbase(n % 17)
        for y in range(4):
            a('ds_read_b64_tr_b16 %s, %s offset:%d' % (U(dst + 2 * y, 2), V(vR + b // 65536), o + 4096 * (y // 2) + 256 * (y % 2)))
    a('s_waitcnt lgkmcnt(0)')
    a('s_barrier')
    finish(71)

def arrive(a, q):
    L = a.lab('arr')
    a('s_getreg_b32 s73, hwreg(HW_REG_XCC_ID, 0, 3)')
    a('s_lshl_b32 s73, s73, 3')
    a('s_lshl_b64 s[74:75], 1, s73')
    a('v_mov_b32 v64, s74'); a('v_mov_b32 v65, s75')
    a('v_mov_b32 v66, 0x7ff00000'); a('v_cmp_eq_u32 vcc, 0, v0'); a('s_nop 1')
    a('v_cndmask_b32 v66, v66, %s, vcc' % V(vZero))
    q('buffer_atomic_add_x2 v[64:65], v66, s[28:31], 0 offen offset:8', 'arr')

def wait_flag(a, soff, need, lab):
    L = a.lab(lab); Lok = a.lab(lab + 'ok')
    a(L + ':')
    a('buffer_load_dword %s, %s, %s, %s offen sc1' % (V(vDum), V(vZero), WS, soff))
    a('s_waitcnt vmcnt(0)')
    a('v_cmp_le_u32 vcc, %s, %s' % (need, V(vDum)))
    a('s_cbranch_vccnz ' + Lok)
    spin_fail(a, L)
    a(Lok + ':')

def frag_read(q, f, dst, name):
    b, o = fbase(f)
    assert b == q.base, (f, b, q.base)
    return ['ds_read_b128 %s, %s offset:%d' % (V(dst + 4 * hf, 4), V(vT16), o + 4096 * hf) for hf in range(2)]

def early(a, opt):
    M = 20
    def dbg_load(q, name): q('buffer_load_dwordx4 v[68:71], v65, s[28:31], 0 offen sc1', name)
    def mid(n, q):
        if n == opt.get('nm', 4):
            a('v_lshrrev_b32 v68, 4, %s' % V(vL16))
            a('v_bfe_u32 v69, v68, 2, 2'); a('v_and_b32 v70, 1, v68'); a('v_lshl_add_u32 v69, v69, 1, v70')
            a('v_mul_u32_u24 v69, 1152, v69')
            a('v_and_b32 v70, 48, v68'); a('v_and_b32 v71, 2, v68'); a('v_lshl_add_u32 v71, v71, 2, v70')
            a('v_lshl_add_u32 v71, v71, 1, v69'); a('v_add_u32 v69, v70, v69')
            a('s_lshr_b32 %s, s4, 1' % S(sTmp)); a('s_lshl_b32 %s, %s, 8' % (S(sTmp), S(sTmp)))
            a('s_and_b32 %s, s4, 1' % S(sTm2)); a('s_lshl_b32 %s, %s, 6' % (S(sTm2), S(sTm2)))
            a('s_add_u32 %s, %s, %s' % (S(sTmp), S(sTmp), S(sTm2)))
            for m in range(2):
                for tl in range(2):
                    q('buffer_load_dwordx4 %s, v69, s[32:35], %s offen offset:%d' % (V(M + 8 * m + 4 * tl, 4), S(sTmp), 512 * m + 128 * tl), 'm0')
            q('buffer_load_dwordx4 %s, v71, s[32:35], 0 offen offset:1024' % V(M + 16, 4), 'm0')
        if n == opt.get('nm', 4) + 10:
            q.wait('m0')
            a('v_mov_b32 v68, 0x05040100'); a('v_mov_b32 v69, 0x07060302')
            a('v_cndmask_b32 v70, v68, v69, %s' % S(sHf, 2))
            for m in range(2):
                for i in range(4):
                    a('v_perm_b32 %s, %s, %s, v70' % (V(M + 8 * m + i), V(M + 8 * m + 4 + i), V(M + 8 * m + i)))
            for i in range(4):
                a('v_perm_b32 %s, %s, %s, v%d' % (V(M + 4 + i), V(M + 16 + 2 * (i % 2) + 1), V(M + 16 + 2 * (i % 2)), 68 + i // 2))
            a('ds_write_b128 v60, %s' % V(M, 4))
            a('ds_write_b128 v60, %s offset:4096' % V(M + 8, 4))
            a('ds_write_b128 %s, %s offset:8192' % (V(vL16), V(M + 4, 4)))
        if n == 30:
            a('v_min_u32 v65, 16, %s' % V(vL16)); a('v_lshlrev_b32 v65, 24, v65')
            dbg_load(q, 'd0')
        if n == 40:
            L = a.lab('hs'); Lc = a.lab('hsc'); Lok = a.lab('hsok')
            q.wait('d0')
            a('s_branch ' + Lc)
            a(L + ':')
            dbg_load(Seq(a), None); a('s_waitcnt vmcnt(0)')
            a(Lc + ':')
            a('v_sad_u8 v69, v70, 0, 0'); a('v_sad_u8 v69, v71, 0, v69'); a('v_lshrrev_b32 v69, 5, v69'); a('v_min_u32 v68, v68, v69')
            a('v_cmp_ne_u32 vcc, 0, v68')
            a('s_cbranch_vccnz ' + Lok)
            spin_fail(a, L)
            a(Lok + ':')
            a('v_readfirstlane_b32 s74, v70'); a('v_readfirstlane_b32 s75, v71')
            for s_ in (sP1r, sP1h):
                for m in range(2):
                    q('buffer_load_dwordx4 %s, %s, %s, %s offen offset:%d sc1' % (V(M, 4), V(vL16), WS, S(s_), 1024 * m), 'x')
            a('v_lshlrev_b32 v67, 6, v0')
        if n == opt.get('mark', 48):
            a('s_lshl_b32 %s, %s, 2' % (S(sTmp), S(sH))); a('s_add_u32 %s, %s, 0x%x' % (S(sTmp), S(sTmp), FLAG(FL_LD)))
            a('v_mov_b32 v64, 1')
            q('buffer_store_dword v64, v66, %s, %s offen' % (WS, S(sTmp)), 'g')
        if n == opt.get('hm', 55):
            a('v_lshrrev_b32 v68, 2, %s' % V(vL16)); a('s_mov_b32 %s, 0x%x' % (S(sTmp), FLAG(FL_LD)))
            q('buffer_load_dword v68, v68, %s, %s offen sc1' % (WS, S(sTmp)), 'd1')
        if n == 63: q('buffer_load_dword %s, v65, %s, %s offen sc1' % (V(vDum), WS, S(sFPB)), 'pb')
        if n == 64: q.wait('d1'); a('v_cmp_ne_u32 vcc, 0, v68'); a('s_mov_b32 s77, vcc_lo')
        if n == opt.get('gate', 64):
            L = a.lab('gt')
            a('s_and_b32 %s, %s, 29' % (S(sTmp), S(sH))); a('s_cbranch_scc1 ' + L)
            a('buffer_store_dword v64, v66, s[28:31], 0 offen offset:128 sc1')
            a(L + ':')
    return mid

def start(a, st=None):
    a('v_lshlrev_b32 %s, 4, v0' % V(vT16))
    Lok = a.lab('pbk')
    a('s_waitcnt vmcnt(0)')
    a('v_cmp_le_u32 vcc, 2, %s' % V(vDum))
    a('s_cbranch_vccnz ' + Lok)
    wait_flag(a, S(sFPB), '2', 'pb0')
    a(Lok + ':')
    if st: st()
    a('s_lshl_b32 %s, s4, 11' % S(sTmp))
    a('s_add_u32 m0, %s, %d' % (S(sTmp), L_KX))
    a('s_add_u32 %s, %s, 0x80000' % (S(sPF), S(sKV)))
    for tau in range(2):
        a('buffer_load_dwordx4 %s, %s, %s offen offset:%d sc1 lds' % (V(vL16), WS, S(sKXo), 1024 * tau))
    a('buffer_load_dword v68, v67, %s, %s offen sc1' % (WS, S(sKV)))
    a('buffer_load_dword v68, v67, %s, %s offen sc1' % (WS, S(sPF)))
    a('s_add_u32 %s, %s, 0x80000' % (S(sPF), S(sPF)))
    for r in range(4):
        a('s_mov_b32 %s, 0x%x' % (S(sSel + 2 * r), 0x000f000f << (4 * r))); a('s_mov_b32 %s, 0x%x' % (S(sSel + 2 * r + 1), 0x000f000f << (4 * r)))
    a('s_mov_b32 %s, 0xaaaaaaaa' % S(sOdd)); a('s_mov_b32 %s, 0xaaaaaaaa' % S(sOdd + 1))
    a('s_mov_b32 %s, 0x3f803f80' % S(sOne)); a('s_mov_b32 %s, 0x3f803f80' % S(sOne + 1))
    a('s_mov_b32 %s, -1' % S(sLo)); a('s_mov_b32 %s, 0' % S(sLo + 1))
    a('s_lshl_b32 %s, s4, 12' % S(sTmp)); a('s_add_u32 %s, %s, %s' % (S(sPF), S(sPF), S(sTmp)))
    a('v_mov_b32 %s, 0' % V(vVa)); a('v_mov_b32 %s, 0' % V(vVb))
    q = Seq(a); q.base = 0
    a('s_waitcnt lgkmcnt(0)')
    a(frag_read(q, 0, W0, None)); a(frag_read(q, 1, W0 + 8, None))
    for i in range(8): a('v_mov_b64 %s, 0' % V(W1 + 2 * i, 2))
    a(step_addrs())
    for s_ in TOGGLE:
        a('s_xor_b32 %s, %s, 0x%x' % (S(s_), S(s_), P1_BUF))
    a('s_lshr_b64 s[74:75], s[74:75], s73')
    a('s_and_b32 s74, s74, 0xff')
    a('s_cmp_eq_u32 s74, 32')
    a('s_waitcnt vmcnt(2)')

def step_addrs():
    return ['v_lshl_add_u32 %s, %s, 3, %s' % (V(vDum), V(vL16), S(sPF)), 'v_mov_b32 %s, %s' % (V(vPm), S(sFPB)),
            'v_cndmask_b32 %s, %s, %s, %s' % (V(vDum), V(vPm), V(vDum), S(sLo, 2)),
            'v_min_u32 %s, 16, %s' % (V(vPm), V(vT16)), 'v_lshlrev_b32 %s, 24, %s' % (V(vPm), V(vPm)),
            's_max_u32 %s, %s, 1' % (S(sTmp), S(sStep)), 'v_add_u32 %s, -1, %s' % (V(vVa), S(sTmp))]

def kvm_stores(q, a, tmp, addr):
    return [lambda: a('v_add_u32 %s, %s, %s' % (V(addr), S(sXq), V(vXr))),
            lambda: q('ds_read_b64_tr_b16 %s, %s offset:%d' % (V(tmp, 2), V(addr), L_KM), 'kmr'),
            lambda: a('v_mov_b32 %s, %s' % (V(tmp + 2), V(vVa))),
            lambda: a('v_mov_b32 %s, %s' % (V(tmp + 3), V(vVb))),
            lambda: (q.wait('kmr'), q('buffer_store_dwordx4 %s, %s, %s, %s offen sc1' % (V(tmp, 4), V(vT16), WS, S(sKVM)), 'kvs'))]

def step_loop(a, sf, Lexit, opt, stamp=None):
    def add(d, x, y): return 'v_add_f32 %s, %s, %s' % (V(d), V(x), V(y))
    def add2(d, x): return [add(d, x, x + 2), add(d + 1, x + 1, x + 3)]
    def cvt(d, x, y): return 'v_cvt_pk_bf16_f32 %s, %s, %s' % (V(d), V(x), V(y))
    def cnd(d, x, y, m=sHf): return 'v_cndmask_b32 %s, %s, %s, %s' % (V(d), x, y, S(m, 2))
    def mov2(d, x): return 'v_mov_b64 %s, %s' % (V(d, 2), x)
    def sadd(d, x):
        if opt.get('nopf') and d in (sVXo, sKXo): x = 0
        return 's_add_u32 %s, %s, 0x%x' % (S(d), S(d), x)
    def sxor(d, x=P1_BUF): return 's_xor_b32 %s, %s, 0x%x' % (S(d), S(d), x)
    def delay(n):
        while n > 0: a('s_nop %d' % (min(n, 16) - 1)); n -= 16
    st = stamp or (lambda i: None)
    Lstep = a.lab('step'); Lfail = a.lab('fail')
    Sx = [W0, W0 + 4]; Sm = W0 + 8; R0 = W0 + 12; R1 = W2 + 8
    kxr = {(0, 0): Sx[0], (0, 1): Sx[1], (1, 0): R0, (1, 1): R0, (2, 0): W1, (2, 1): W1 + 4, (3, 0): R0, (3, 1): R1}
    qa, qb, ka, kb = W1, W1 + 4, W1 + 8, W1 + 12
    va, vb = W3, W3 + 4
    KQ, YH, FV = W3, W3 + 4, vVa
    tails = []
    def mem(u): return W2 + 4 * (u % 3 if u < 12 else u % 2)
    def mu3(d, x, y, z): return 'v_max3_u32 %s, %s, %s, %s' % (V(d), V(x), V(y), V(z))
    def ldi(x, so, n=2):
        return ['buffer_load_dwordx4 %s, %s, %s, %s offen offset:%d sc1' % (V(x + 4 * m, 4), V(vL16), WS, S(so), 1024 * m) for m in range(n)]
    def chk(quads, C, x=''):
        regs = [r + i for r in quads for i in range(4)]
        o = [mu3(C, *regs[:3])]; regs = regs[3:]
        while len(regs) > 1: o.append(mu3(C, C, regs[0], regs[1])); regs = regs[2:]
        o.append('v_max_u32 %s, %s, %s' % (V(C), V(C), V(regs[0])))
        return o + ['v_cmp%s_eq_u32 vcc, -1, %s' % (x, V(C))]
    def retry(L, loads, check, cnt, first=None):
        L1 = a.lab('rt'); Le = a.lab('rte')
        a(L + ':')
        a('s_mov_b64 exec, vcc')
        a(L1 + ':')
        for u in range(3):
            a(loads)
            if stamp: a('s_add_u32 s%d, s%d, %d' % (cnt[0], cnt[0], cnt[1]))
            a('s_waitcnt vmcnt(%d)' % (len(loads) * (opt.get('dep', 2) - 1)))
            a(check)
            a('s_cbranch_execz ' + Le)
        a('s_sub_u32 %s, %s, 1' % (S(sSpin), S(sSpin))); a('s_cbranch_scc0 ' + L1)
        a('s_endpgm')
        a(Le + ':')
        a('s_mov_b64 exec, -1')
    a('.p2align 3')
    a(Lstep + ':')
    q = Seq(a, vm=['pre']); q.base = 0
    def mread(u): q('ds_read_b128 %s, %s offset:%d' % (V(mem(u), 4), V(vL16), L_MEM + 1024 * (u % 9)), ('m', u))
    def kxread(kap, tau): q('ds_read_b128 %s, %s offset:%d' % (V(kxr[kap, tau], 4), V(vL16), L_KX + 2048 * kap + 1024 * tau), ('kx', kap, tau))
    a('s_mov_b64 exec, -1')
    q.drain(vm=False)
    lay = opt.get('lay', 1)
    if lay == 1: q(ldi(VX, sVXo), 'vx')
    a('s_barrier')
    st('B0')
    for u in range(3): mread(u)
    st('B0x')
    ex = {}
    def at(g, f, name='x'):
        l = ex.setdefault(g, [])
        fn = f if callable(f) else (lambda: q(f, name))
        if not callable(f) and f.startswith('v_'): l.append(fn)
        else: l.insert(0, fn)
    def gap(g):
        for f in ex.pop(g, []): f()
    PF = 'buffer_load_dword %s, %s, %s, 0 offen sc1' % (V(vDum), V(vDum), WS)
    FS = 'buffer_store_dword %s, %s, %s, %s offen sc1' % (V(FV), V(vPm), WS, S(sFCH))
    if lay == 1:
        kvm_stores(q, a, KQ, vPm)[4](); at(1, PF); at(3, FS)
    else:
        q(ldi(VX, sVXo)[0], 'vx'); at(1, ldi(VX, sVXo)[1], 'vx')
        at(7, PF); at(11, kvm_stores(q, a, KQ, vPm)[4]); at(15, FS)
    at(23, lambda: q.wait('pre'))
    for i in range(4): at(24 + i, mov2(W3 + 2 * i, '0'))
    q.wait(('m', 0))
    st('m0')
    for t in range(7):
        rd = []
        if t:
            rd = [(x, ('kb', t + 1)) for x in frag_read(q, t + 1, W0 + 8 * ((t + 1) % 2), None)]
        a(smf(qa, mem(t), regpos[('q', t, 0)]))
        if rd: q(*rd[0])
        gap(4 * t)
        a(smf(qb, mem(t), regpos[('q', t, 1)]))
        if rd: q(*rd[1])
        gap(4 * t + 1)
        a(smf(ka, mem(t), regpos[('k', t, 0)]))
        if t: mread(t + 2)
        q.wait(('kb', t), ('m', t + 1))
        if t < 7 and fbase(t + 2)[0] != q.base:
            a('v_add_u32 %s, 0x10000, %s' % (V(vT16), V(vT16))); q.base += 65536
        gap(4 * t + 2)
        a(smf(kb, mem(t), W0 + 8 * (t % 2)))
        gap(4 * t + 3)
    assert not ex, ex
    def qw(x, off, hi): q('ds_write_b16%s %s, %s offset:%d' % ('_d16_hi' if hi else '', V(vQw), V(x), L_Q + off + 64 * hi), 'w')
    rd = frag_read(q, 8, W0, None)
    st('k7')
    a(smf(qa, mem(7), regpos[('q', 7, 0)])); q(rd[0], ('kb', 8)); q(rd[1], ('kb', 8))
    a(smf(qb, mem(7), regpos[('q', 7, 1)])); mread(9); q.wait(('m', 8))
    a(smf(qa, mem(8), regpos[('q', 8, 0)]))
    a(smf(qb, mem(8), regpos[('q', 8, 1)]))
    a(smf(ka, mem(7), regpos[('k', 7, 0)])); a('s_nop 0'); a(add2(qa, qa))
    a(smf(kb, mem(7), W0 + 8)); mread(10); q.wait(('kb', 8), ('m', 9)); a(cvt(qa, qa, qa + 1)); a(add(qb, qb, qb + 2))
    a(smf(ka, mem(8), regpos[('k', 8, 0)])); qw(qa, 0, 0); qw(qa, 0, 1); a(add(qb + 1, qb + 1, qb + 3)); a(cvt(qb, qb, qb + 1))
    a(smf(kb, mem(8), W0)); qw(qb, 4, 0); qw(qb, 4, 1); a(mov2(Sm, '0'))
    st('p1e')
    vsm = [(t, tau) for t in range(9) for tau in range(2)]
    wb = [W1, W1 + 8, VX]
    wl = [(p, hf) for p in range(2) for hf in range(2)]; wl_on = []
    def wo_read(p, hf):
        if fbase(9 + p)[0] != q.base:
            a('v_add_u32 %s, 0x10000, %s' % (V(vT16), V(vT16))); q.base += 65536
        q(frag_read(q, 9 + p, wb[p % 3], None)[hf], ('wo', p))
    def vstep(n=1, feed=True):
        for _ in range(n):
            t, tau = vsm.pop(0)
            q.wait(('m', 9 + t))
            a(smf(va + 4 * tau, mem(9 + t), regpos[('v', t, tau)]))
            k = 0
            nx = {0: 3, 1: 4, 2: 99}.get(t, t + 2)
            if tau == 1 and nx < 9 and feed: mread(9 + nx); k = 1
            while k < 2 and wl and wl_on: wo_read(*wl.pop(0)); k += 1
    vstep(1)
    mread(11); kxread(0, 0)
    a(add2(ka, ka))
    vstep(1, False)
    q.wait(('m', 10))
    a(cvt(ka, ka, ka + 1)); a(add2(kb, kb)); a(cvt(ka + 1, kb, kb + 1))
    st('kw')
    q('ds_write_b64 %s, %s offset:%d' % (V(vXw), V(ka, 2), L_KM), 'w')
    vstep(1)
    mread(12); kxread(0, 1)
    a(mov2(Sm + 2, '0'))
    vstep(2); kxread(1, 0); vstep(1)
    q.wait('w')
    a('s_barrier')
    st('B1')
    def qread(k): q('ds_read_b128 %s, %s offset:%d' % (V(W1 + 4 * k, 4), V(vQr), L_Q + 512 * k), ('q', k))
    def xrd(base, dst, tp, z, name):
        q('ds_read_b64_tr_b16 %s, %s offset:%d' % (V(dst + 2 * z, 2), V(vXr), base + 1088 * tp + 32 * z), name)
    def kmread(tp): xrd(L_KM, R1, tp, 0, ('km', tp)); xrd(L_KM, R1, tp, 1, ('km', tp))
    qread(0); qread(1)
    vstep(); kmread(0)
    vstep(); qread(2)
    vstep(); qread(3)
    vstep()
    def sx(k, tau):
        q.wait(('q', k), ('kx', k, tau))
        a('v_mfma_f32_16x16x32_bf16 %s, %s, %s, %s' % (V(Sx[tau], 4), V(kxr[k, tau], 4), V(W1 + 4 * k, 4), V(Sx[tau], 4) if k else '0'))
    def sm(tp):
        q.wait(('km', tp), ('q', 2 * tp + 1))
        a(smf(Sm, R1, W1 + 8 * tp))
    T0, T1, T2, T3, ONE = Sm + 2, Sm + 3, Sm + 1, vPm, R0
    oa, ob, LL = W2, W2 + 4, W2 + 8
    def ex2(x): return 'v_exp_f32 %s, %s' % (V(x), V(x))
    def m16(d, b): return 'v_mfma_f32_16x16x16_bf16 %s, %s, %s, 0' % (V(d, 4), V(vPm, 2), V(b, 2))
    def sm32(d, b): return 'v_smfmac_f32_16x16x32_bf16 %s, %s, %s, %s' % (V(d, 4), V(T0, 2), V(b, 4), V(vIdx))
    cn = [cnd(Sx[0] + r, V(Sx[0] + r), V(Sx[1] + r)) for r in range(4)]
    pm = [cnd(Sm + 1, '0', V(Sm)), cnd(Sm, V(Sm), '0'), cvt(vPm, Sm, Sm + 1)]
    SC = 'v_mul_f32 %s, %s, %s' % (V(Sm), S(sC), V(Sm))
    st('s0')
    sx(0, 0); sx(0, 1); sx(1, 0); kxread(1, 1)
    sm(0); kmread(1)
    vstep(1); kxread(2, 0); vstep(1)
    sx(1, 1); kxread(2, 1)
    sm(1); kxread(3, 0); kxread(3, 1)
    vstep(2)
    sx(2, 0); a(add2(Sm, Sm))
    vstep(1); a(cnd(Sm, V(Sm), V(Sm + 1)))
    vstep(1); wo_read(0, 0); a(SC)
    sx(2, 1); a(ex2(Sm))
    vstep(1); wo_read(0, 1); a(pm[0])
    vstep(1); wo_read(1, 0); a(pm[1])
    sx(3, 0); a(pm[2]); a(mov2(ONE, S(sOne, 2)))
    sx(3, 1)
    st('Se')
    wo_read(1, 1)
    assert not vsm
    a(mov2(ONE + 2, S(sOne, 2)))
    a(add2(va, va)); a(cvt(vVa, va, va + 1)); a(add2(vb, vb)); a(cvt(vVb, vb, vb + 1))
    a(cn)
    st('max')
    a(m16(LL, ONE)); q.wait('vx'); a(ex2(Sx[0]))
    a(m16(oa, vVa)); a('s_cmp_eq_u32 %s, 63' % S(sStep)); a(ex2(Sx[0] + 1))
    a(m16(ob, vVb)); a(ex2(Sx[0] + 2)); a(ex2(Sx[0] + 3))
    pk = [cvt(T0, Sx[0], Sx[0] + 1), cvt(T1, Sx[0] + 2, Sx[0] + 3)]
    a(pk)
    wacc = [W3, W3 + 4, W0, W0 + 4, W0 + 8, W0 + 12, W2 + 8, W3, W0]
    zer = [mov2(x + 2 * i, '0') for x in wacc[:7] for i in range(2)]
    a(zer.pop(0)); a(zer.pop(0))
    st('pv')
    for d, b in ((LL, ONE), (oa, VX), (ob, VX + 4)):
        a(sm32(d, b))
        if d == ob: a('s_nop 0')
        else: a(zer.pop(0)); a(zer.pop(0))
    def norm():
        a(add2(LL, LL))
        for i in range(2): a('v_rcp_f32 %s, %s' % (V(LL + i), V(LL + i)))
        a(add2(oa, oa))
        for i in range(2): a('v_mul_f32 %s, %s, %s' % (V(oa + i), V(oa + i), V(LL + i)))
        a(add2(ob, ob))
        for i in range(2): a('v_mul_f32 %s, %s, %s' % (V(ob + i), V(ob + i), V(LL + i)))
        a(cvt(oa, oa, oa + 1)); a(cvt(oa + 1, ob, ob + 1))
    OW = 'ds_write_b64 %s, %s offset:%d' % (V(vXw), V(oa, 2), L_O)
    norm()
    q(OW, 'ow')
    R = opt.get('rng', 60)
    for i in range(2): a('v_subrev_u32 %s, 0x%x, %s' % (V(LL + i), (127 - R) << 23, V(LL + i)))
    st('ow')
    a('v_max_u32 %s, %s, %s' % (V(LL), V(LL), V(LL + 1)))
    a('v_cmp_lt_u32 vcc, 0x%x, %s' % ((2 * R) << 23, V(LL)))
    a('s_cbranch_scc1 ' + Lexit)
    Lmx = a.lab('mx'); Lmb = a.lab('mxb')
    PW = vPm
    zer = zer[:6] + p1w_addr(PW, LL) + zer[6:]
    wo01 = frag_read(q, 9, wb[0], None) + frag_read(q, 10, wb[1], None)
    def true_max():
        def mx3(d, x, y, z): return 'v_max3_f32 %s, %s, %s, %s' % (V(d), V(x), V(y), V(z))
        a(Lmx + ':')
        if stamp: a('s_add_u32 s17, s17, 0x100')
        a('s_waitcnt lgkmcnt(0)')
        for k in range(4): a('ds_read_b128 %s, %s offset:%d' % (V(W1 + 4 * k, 4), V(vQr), L_Q + 512 * k))
        a(mov2(Sm, '0')); a(mov2(Sm + 2, '0'))
        for k in range(5):
            for tau in range(2):
                if k < 4: a('ds_read_b128 %s, %s offset:%d' % (V(W2 + 4 * tau, 4), V(vL16), L_KX + 2048 * k + 1024 * tau))
                else:
                    for z in range(2): a('ds_read_b64_tr_b16 %s, %s offset:%d' % (V(W2 + 4 * tau + 2 * z, 2), V(vXr), L_KM + 1088 * tau + 32 * z))
            a('s_waitcnt lgkmcnt(0)')
            for tau in range(2):
                if k < 4: a('v_mfma_f32_16x16x32_bf16 %s, %s, %s, %s' % (V(Sx[tau], 4), V(W2 + 4 * tau, 4), V(W1 + 4 * k, 4), V(Sx[tau], 4) if k else '0'))
                else: a(smf(Sm, W2 + 4 * tau, W1 + 8 * tau))
        a(wo01)
        a(mov2(ONE, S(sOne, 2))); a(mov2(ONE + 2, S(sOne, 2))); a('s_nop 1')
        a(add2(Sm, Sm))
        for i in range(2): a('v_mul_f32 %s, %s, %s' % (V(Sm + i), S(sC), V(Sm + i)))
        a('v_max_f32 %s, %s, %s' % (V(T0), V(Sm), V(Sm + 1))); a(cnd(Sm, V(Sm), V(Sm + 1)))
        for i in range(3): a(mx3(T0, T0, Sx[0] + 2 * i, Sx[0] + 2 * i + 1))
        a(mx3(T1, T0, Sx[1] + 2, Sx[1] + 3)); a(mx3(T2, T0, Sx[1] + 2, Sx[1] + 3))
        a(cn[:2])
        a('v_permlane16_swap_b32 %s, %s' % (V(T1), V(T2)))
        a('v_max_f32 %s, %s, %s' % (V(T0), V(T1), V(T2)))
        a('v_max_f32 %s, %s, %s' % (V(T3), V(T1), V(T2)))
        a(cn[2:])
        a('v_permlane32_swap_b32 %s, %s' % (V(T0), V(T3)))
        a('v_max_f32 %s, %s, %s' % (V(T0), V(T0), V(T3)))
        vals = [Sm] + [Sx[0] + r for r in range(4)]
        for x in vals: a('v_sub_f32 %s, %s, %s' % (V(x), V(x), V(T0)))
        for x in vals: a(ex2(x))
        a(pm); a(pk)
        a(m16(LL, ONE)); a(m16(oa, vVa)); a(m16(ob, vVb))
        a(sm32(LL, ONE)); a(sm32(oa, VX)); a(sm32(ob, VX + 4)); a('s_nop 0')
        norm()
        a(OW)
        for i in range(8): a(mov2(W0 + 2 * i, '0'))
        a('s_waitcnt lgkmcnt(0)')
        a('s_branch ' + Lmb)
    tails.append(true_max)
    sal = [sadd(sKXo, 0x80000), sxor(sTag, 1), sadd(sVXo, 0x80000), sadd(sKVM, 0x20000),
           's_cmp_lt_u32 %s, 61' % S(sStep), 's_cselect_b32 %s, 0x80000, 0' % S(sTmp), 's_add_u32 %s, %s, %s' % (S(sPF), S(sPF), S(sTmp)),
           's_add_u32 %s, %s, 1' % (S(sStep), S(sStep)), 's_add_u32 %s, %s, 2' % (S(sTm2), S(sStep)), 's_min_u32 %s, %s, 64' % (S(sTm2), S(sTm2))] + [sxor(x) for x in TOGGLE]
    ords = [(0, 0), (0, 1), (1, 0), (1, 1)]
    kxl = [0, 1]
    def kxd(): q('buffer_load_dwordx4 %s, %s, %s offen offset:%d sc1 lds' % (V(vL16), WS, S(sKXo), 1024 * kxl.pop(0)), 'kxd')
    def warm(pat):
        for c in pat:
            if c == 'v': a(zer.pop(0))
            elif c == 's': a(sal.pop(0))
            elif c == 'w': wo_read(2, 0); wo_read(2, 1)
            elif c == 'r': tp, z = ords.pop(0); xrd(L_O, W2 + 4 * tp, tp, z, ('oa', tp))
            elif c == 'x': wo_read(2, 0)
            elif c == 'y': wo_read(2, 1)
            elif c == 'd': kxd()
            elif c == 'k': a('v_mov_b32 %s, 0' % V(vZero))
            elif c == 'b': a('s_cbranch_vccnz ' + Lmx); a(Lmb + ':')
    warm(opt.get('wa', 'vvvvb'))
    q.wait('ow')
    warm(opt.get('wm', 'v'))
    a('s_barrier')
    st('B2')
    warm(opt.get('wb', 'rvrrvrxvysvsvsv'))
    def fin(p):
        x = wacc[p]
        def tag(d): return 'v_and_or_b32 %s, %s, -2, %s' % (V(d), V(d), S(sTag))
        if p == 0:
            return add2(x, x) + [cvt(x + 1, x + 1, x + 1), cvt(x, x, x), tag(x + 1),
                    'buffer_store_dwordx2 %s, %s, %s, %s offen %s' % (V(x, 2), V(PW), WS, S(sP1w + 2), sf)]
        if p % 2: return add2(x, x)
        y = wacc[p - 1]; r = p // 2 - 1
        return add2(x, x) + [cvt(y + 1, y + 1, x + 1), cvt(y, y, x), tag(y + 1),
                'buffer_store_dwordx2 %s, %s, %s, %s offen offset:%d %s' % (V(y, 2), V(PW), WS, S(sP1w + r // 2), 2048 * (r % 2), sf)]
    order = [(0, 0)]
    for p in range(1, 9): order += [(p, 0), (p - 1, 1)]
    order += [(8, 1)]
    F = [fin(p) for p in range(9)]
    rz = {p: [mov2(wacc[p] + 2 * i, '0') for i in range(2)] for p in (7, 8)}
    ws_ = opt.get('ws', 1)
    if ws_ == 0:
        vw = {4: F[0][:2], 5: F[0][2:4], 6: F[0][4:5] + F[1], 7: rz[7], 8: F[2][:2], 9: F[2][2:4], 10: F[2][4:5] + F[3], 11: rz[8],
              12: F[4][:2], 13: F[4][2:5], 14: F[5][:1], 15: F[5][1:], 16: F[6][:2]}
        sw = {7: F[0][5], 11: F[2][5], 14: F[4][5]}
    else:
        vw = {4: F[0][:3], 5: F[0][3:5], 6: F[1], 7: rz[7], 8: F[2][:3], 9: F[2][3:5], 10: F[3], 11: rz[8],
              12: F[4][:3], 13: F[4][3:5], 14: F[5][:1], 15: F[5][1:], 16: F[6][:2]}
        sw = {6: F[0][5], 10: F[2][5], 14: F[4][5]}
    kxg = [int(c) for c in str(opt.get('kxg', 'g02'))[1:]]
    q.wait(('oa', 0))
    st('wo0')
    for n, (p, tp) in enumerate(order):
        tl = WO_ORDER[p]
        k = 0
        st('w%d' % n)
        if tp == 0: a(smf(wacc[p], W2, regpos[('o', 0, tl)]))
        else: a(smf(wacc[p], W2 + 4, wb[p % 3] if p < 8 else regpos[('o', 1, tl)]))
        if n == 17: break
        if ws_ == 0:
            if tp and p < 5: wo_read(p + 3, 0); wo_read(p + 3, 1); k = 2
        elif 2 <= n < 12: wo_read(n // 2 + 2, n % 2); k = 1
        if n in sw: q(sw[n], 'p1'); k += 2
        if n in kxg and kxl: kxd(); k += 2
        if order[n + 1][1] == 1: k += q.wait(('oa', 1), ('wo', order[n + 1][0]))
        while k < 2 and sal: a(sal.pop(0)); k += 1
        if zer: a(zer.pop(0))
        if n == 3:
            a('v_add_u32 %s, 0x10000, %s' % (V(vT16), V(vT16))); q.base += 65536
        if k == 0: a('s_nop 0')
        a(vw.get(n, []))
    assert not zer
    pend = F[6][2:] + F[7] + ['s_nop 0'] + F[8]
    SEL, X, D, XH, DH = W1 + 8, W1, W1 + 12, W0, W0 + 8
    MA, HA, LA, C, TT, NEG = W2, W2 + 1, W2 + 2, W2 + 3, W2 + 6, W2 + 7
    sal_left = list(sal)
    a('s_cmp_eq_u32 s4, 0')
    n8 = len(F[8])
    a(pend[:-n8])
    if opt.get('wn', 0): a('s_nop %d' % (opt['wn'] - 1))
    a(pend[-n8:])
    st('Woe')
    def red(d, x, m): return 'v_mfma_f32_16x16x32_bf16 %s, %s, %s, %s' % (V(d, 4), V(SEL, 4), V(x + 4 * m, 4), V(d, 4) if m else '0')
    def tchk(quads, x=''):
        o = []
        for i, r in enumerate(quads):
            o.append('v_bitop3_b32 %s, %s, %s, %s bitop3:0x7e' % (V(C + min(i, 1) + (i == 2)), V(r + 1), V(r + 3), S(sTag)))
            if i == 2: o.append('v_or3_b32 %s, %s, %s, %s' % (V(C), V(C), V(C + 1), V(C + 2)))
        return o + ['v_bitop3_b32 %s, %s, 1, %s bitop3:0xc8' % (V(C), V(C), V(C + 1)), 'v_cmp%s_ne_u32 vcc, 0, %s' % (x, V(C))]
    def ror(d, n): return 'v_add_f32_dpp %s, %s, %s row_ror:%d row_mask:0xf bank_mask:0xf' % (V(d), V(d), V(d), n)
    def pub(d, ad, so): return [cvt(d, d, d + 1), 'buffer_store_dword %s, %s, %s, %s offen %s' % (V(d), V(ad), WS, S(so), sf)]
    lates = []
    def misc():
        a(sal_left)
        a('v_mov_b32 %s, 0x3f80' % V(SEL + 3))
        a(cnd(SEL + 3, V(SEL + 3), '1.0', sOdd))
        a([cnd(SEL + r, '0', V(SEL + 3), sSel + 2 * r) for r in range(4)])
        a(m2_addr(MA, TT))
        a('v_subrev_u32 %s, 0x20000, %s' % (V(vT16), V(vT16)))
        a('v_mov_b32 %s, -1' % V(NEG))
        a('v_add_u32 %s, %s, %s' % (V(LA), S(sM2b), V(vL16)))
        for f in kvm_stores(Seq(a), a, KQ, TT)[:4]: f()
    def kb01():
        qq = Seq(a); qq.base = 0
        a(frag_read(qq, 0, W0, None)); a(frag_read(qq, 1, W0 + 8, None))
    def hop2(hx):
        quads = [VX, VX + 4, YH][:2 + hx]
        lds = ldi(VX, sM2a) + ldi(YH, sM2c, hx)
        a('buffer_store_dword %s, %s, %s, %s offen %s' % (V(NEG), V(MA), WS, S(sM2x), sf))
        if hx: a('buffer_store_dword %s, %s, %s, %s offen %s' % (V(NEG), V(HA), WS, S(sM2xh), sf))
        a('v_cmp_gt_u32 vcc, %s, %s' % (S(sTm2), V(vDum)))
        if hx: kb01()
        for i in range(8): a(mov2(W1 + 2 * i, '0'))
        Lf = a.lab('fok'); Lfw = a.lab('fw'); L2 = a.lab('p2')
        a('s_cmp_lg_u32 vcc_hi, 0')
        a('s_cbranch_scc1 ' + Lfw)
        a(Lf + ':')
        lates.append((Lfw, Lf))
        a(step_addrs())
        a('s_waitcnt lgkmcnt(0)')
        delay(opt.get('d2', 16) - 6 * hx + hx * opt.get('d2h', 0))
        a(lds)
        delay(opt.get('sp2', 24))
        a(L2 + ':')
        for u in range(3):
            a(lds)
            if stamp: a('s_add_u32 s17, s17, 1')
            a('s_waitcnt vmcnt(%d)' % len(lds))
            c = chk(quads, C, 'x')
            a(c[:-1])
            for m in range(2 + hx): a('ds_write_b128 %s, %s offset:%d' % (V(LA), V(quads[m], 4), L_MEM + (0, 1024, 8192)[m]))
            a(c[-1])
            st('h2e')
            a('s_cbranch_execz ' + Lstep)
        a('s_sub_u32 %s, %s, 1' % (S(sSpin), S(sSpin)))
        a('s_cbranch_scc0 ' + L2)
        a('s_endpgm')
    def reduce1(ins):
        Lr = a.lab('r1'); Lr2 = a.lab('r2'); Lb = a.lab('b1')
        def attempt(x, young, L):
            a('s_waitcnt vmcnt(%d)' % (young + 1)); a(red(D, x, 0))
            a('s_waitcnt vmcnt(%d)' % young); a(red(D, x, 1))
            st('got1')
            a(tchk([x, x + 4]))
            a('s_nop 3')
            a(ror(D, 4)); a(ror(D + 1, 4))
            a('s_cbranch_vccnz ' + L)
            a(ror(D, 8)); a(ror(D + 1, 8))
            a(pub(D, MA, sM2w))
        attempt(X, 2 * ins, Lr2 if ins else Lr)
        a(Lb + ':')
        st('pub')
        def tail():
            x = VX if ins else X
            if ins:
                a(Lr2 + ':')
                if stamp: a('s_add_u32 s17, s17, 0x100')
                attempt(VX, 0, Lr)
                a('s_branch ' + Lb)
            retry(Lr, ldi(x, sP1r), tchk([x, x + 4], 'x'), (16, 1))
            a('s_nop 2')
            a(red(D, x, 0)); a(red(D, x, 1)); a('s_nop 7')
            a(ror(D, 4)); a(ror(D + 1, 4)); a('s_nop 0'); a(ror(D, 8)); a(ror(D + 1, 8))
            a(pub(D, MA, sM2w))
            if not ins: a('s_waitcnt vmcnt(1)')
            a('s_branch ' + Lb)
        tails.append(tail)
    LH = a.lab('wH'); Lq = a.lab('q1')
    a('s_cbranch_scc1 ' + LH)
    misc(); kb01()
    st('pre1')
    for w in (1, 2):
        a('s_cmp_eq_u32 s4, %d' % w); a('s_waitcnt vmcnt(%d)' % (3 - w + opt.get('e1', 0))); a('s_cbranch_scc1 ' + Lq)
    a('s_waitcnt vmcnt(%d)' % opt.get('e1', 0))
    a(Lq + ':')
    st('ack1')
    delay(opt.get('d1', 0))
    a(ldi(X, sP1r))
    if opt.get('sp1', 28): delay(opt.get('sp1', 28)); a(ldi(VX, sP1r))
    reduce1(1 if opt.get('sp1', 28) else 0)
    hop2(0)
    a(LH + ':')
    st('pre1')
    a(h_addr(HA, TT))
    a('s_waitcnt vmcnt(%d)' % opt.get('a0', 2))
    st('ack1')
    ld3 = ldi(XH, sP1h) + ldi(X, sP1r)
    a(ld3)
    misc()
    Lr = a.lab('r1'); Lb = a.lab('b1')
    quads = [X, X + 4, XH, XH + 4]
    a('s_waitcnt vmcnt(2)'); a(red(DH, XH, 0)); a(red(DH, XH, 1))
    a('s_waitcnt vmcnt(1)'); a(red(D, X, 0))
    a('s_waitcnt vmcnt(0)'); a(red(D, X, 1))
    st('got1')
    a(tchk(quads))
    def fin3(br):
        a(ror(DH + 1, 4)); a(ror(D, 4)); a(ror(D + 1, 4))
        a(ror(DH + 1, 8)); a(ror(D, 8)); a(ror(D + 1, 8))
        if br: a('s_cbranch_vccnz ' + Lr)
        a(pub(D, MA, sM2w))
        a('v_mov_b32_dpp %s, %s quad_perm:[1,0,3,2] row_mask:0xf bank_mask:0xf' % (V(DH + 2), V(DH + 1)))
        a(pub(DH + 1, HA, sM2wh))
    fin3(1)
    a(Lb + ':')
    st('pub')
    hop2(1)
    retry(Lr, ld3, tchk(quads, 'x'), (16, 1))
    a('s_nop 2')
    a(red(DH, XH, 0)); a(red(DH, XH, 1)); a(red(D, X, 0)); a(red(D, X, 1)); a('s_nop 6')
    fin3(0)
    a('s_waitcnt vmcnt(2)')
    a('s_branch ' + Lb)
    for t_ in tails: t_()
    for Lfw, Lf in lates:
        a(Lfw + ':')
        wait_flag(a, S(sFPB), S(sTm2), 'pb')
        a('s_branch ' + Lf)
    a(Lfail + ':')
    a('s_endpgm')

def chain(a, opt, flags_ready, wflags='nt', stamp=None, stamp_once=None, force_slow=False):
    srd(a, 8, 'B_wq'); srd(a, 12, 'B_wk'); srd(a, 16, 'B_wv'); srd(a, 24, 'B_wo'); srd(a, 28, 'dbg'); srd(a, 32, 'B_mem0')
    setup(a)
    a('s_waitcnt lgkmcnt(0)')
    init_handoff(a)
    load_weights(a, wflags, arrive, (8, opt.get('cL', 57)), early(a, opt))
    if stamp_once: stamp_once(a, 1)
    start(a, (lambda: stamp_once(a, 2)) if stamp_once else None)
    Lslow = a.lab('slow'); Lexit = a.lab('chexit')
    if force_slow: a('s_branch ' + Lslow)
    a('s_cbranch_scc0 ' + Lslow)
    step_loop(a, '', Lexit, opt, stamp)
    a(Lslow + ':')
    step_loop(a, 'sc1', Lexit, opt, stamp)
    a(Lexit + ':')
    q = Seq(a)
    a('s_add_u32 %s, %s, 0x10000' % (S(sKVM), S(sKVM)))
    for f in kvm_stores(q, a, W3, vPm): f()
    a('s_waitcnt vmcnt(0) lgkmcnt(0)')
    a('s_barrier')
    a('v_subrev_u32 %s, 0x10000, %s' % (V(vT16), V(vT16)))
    a('v_min_u32 %s, 16, %s' % (V(vT16), V(vT16))); a('v_lshlrev_b32 %s, 24, %s' % (V(vT16), V(vT16)))
    a('v_mov_b32 %s, 64' % V(vPm))
    a('buffer_store_dword %s, %s, %s, %s offen sc1' % (V(vPm), V(vT16), WS, S(sFCH)))
```

```python
from common import *

sW0, sW1, sO0, sO1, sN, sT0 = 32, 33, 34, 35, 36, 37
sTc, sTp1, sTp2, sCnt, sSlotR, sSlotW, sTmp, sXo, sSt0, sSt1, sM0, sScale = 39, 40, 41, 42, 43, 44, 45, 46, 47, 48, 49, 50

vXb, vXr, vWr = 4, 6, 8
vOffX, vOffW, vOffO, vFlagOff, vFlagVal = 10, 11, 12, 13, 14
vPK = 16
vXF = 32
vACC = 64
def wreg(m, tau, j, NK, z=None):
    i = ((m * 2 + tau) * NK + j) * 4
    i = 256 + i if i < 256 else 224 + i - 256
    return U(i, 4) if z is None else U(i + 2 * z, 2)
def acc(P, m, tau, tt): return vACC + 32 * P + 16 * m + 8 * tau + 4 * tt

def setup_lanes(a, KD):
    PX = KD * 2
    XS = 32 * PX
    a('v_and_b32 v1, 63, v0')
    a('v_lshrrev_b32 v2, 3, v0')
    a('v_mul_u32_u24 %s, %d, v2' % (V(vOffX), PX))
    a('v_lshrrev_b32 v2, 4, v0')
    a('v_xor_b32 v2, v2, v0')
    a('v_and_b32 v2, 7, v2')
    a('v_lshl_add_u32 %s, v2, 4, %s' % (V(vOffX), V(vOffX)))
    a('v_lshrrev_b32 v2, 4, v1')
    a('v_bfe_u32 v3, v1, 1, 3')
    a('v_xor_b32 v2, v2, v3')
    a('v_and_b32 v3, 15, v1')
    a('v_lshlrev_b32 v3, 7, v3')
    a('v_lshl_add_u32 %s, v2, 4, v3' % V(vXb))
    a('v_xor_b32 %s, 64, %s' % (V(vXb + 1), V(vXb)))
    a('v_lshrrev_b32 v2, 4, v0')
    a('v_lshlrev_b32 %s, 13, v2' % V(vOffW))
    a('v_lshrrev_b32 v2, 7, v0')
    a('v_lshrrev_b32 v3, 4, v1')
    a('v_lshl_add_u32 v3, v2, 2, v3')
    a('v_bfe_u32 v2, v1, 1, 3')
    a('v_xor_b32 v2, v2, v3')
    a('v_lshl_add_u32 %s, v2, 5, %s' % (V(vOffW), V(vOffW)))
    a('v_and_b32 v2, 1, v1')
    a('v_lshl_add_u32 %s, v2, 4, %s' % (V(vOffW), V(vOffW)))
    a('v_bfe_u32 v2, v1, 2, 3')
    a('v_xor_b32 v3, s4, v2')
    a('v_lshlrev_b32 v3, 5, v3')
    a('v_and_b32 v2, 3, v2')
    a('v_lshl_add_u32 v3, v2, 8, v3')
    a('v_lshrrev_b32 v2, 4, v1')
    a('v_lshl_add_u32 v3, v2, 11, v3')
    a('v_and_b32 v2, 3, v1')
    a('v_lshl_add_u32 v3, v2, 3, v3')
    a('v_add_u32 %s, %d, v3' % (V(vWr), 2 * XS))
    a('v_xor_b32 v3, 0x80, v3')
    a('v_add_u32 %s, %d, v3' % (V(vWr + 1), 2 * XS))
    a('s_lshl_b32 %s, s4, 11' % S(sTmp))
    a('v_lshl_add_u32 %s, v1, 4, %s' % (V(vOffO), S(sTmp)))

def x_dma(KD, xflags):
    return [('s_add_u32 m0, %s, %d' % (S(sM0), 3968 * kb),
             'buffer_load_dwordx4 %s, s[8:11], %s offen offset:%d %s lds' % (V(vOffX), S(sXo), 128 * kb, xflags))
            for kb in range(KD // 64)]

def default_next(dt):
    def f(dst, src): return ['s_add_u32 %s, %s, %d' % (S(dst), S(src), dt)]
    return f

def pack2(t0, t1, pk, scale=None, zipped=False):
    ins = []
    if scale:
        for t in (t0, t1):
            for i in range(4): ins.append('v_mul_f32 %s, %s, %s' % (V(t + i), scale, V(t + i)))
    if zipped: return ins + ['v_cvt_pk_bf16_f32 %s, %s, %s' % (V(pk + j), V(t0 + j), V(t1 + j)) for j in range(4)]
    for j, (t, hf) in enumerate([(t0, 0), (t1, 0), (t0, 1), (t1, 1)]):
        ins.append('v_cvt_pk_bf16_f32 %s, %s, %s' % (V(pk + j), V(t + 2 * hf), V(t + 2 * hf + 1)))
    return ins

def load_weights(a, KD, wflags):
    NK = KD // 32; XS = 64 * KD; STG = 2 * XS
    def dma(u):
        o = []
        for m in range(2):
            for pp in range(2):
                o.append('s_add_u32 m0, %s, %d' % (S(sM0), STG + (u % 4) * 16384 + m * 8192 + pp * 4096))
                o.append('s_add_u32 %s, %s, %d' % (S(sTmp), S(sW0 + m), (32 * u + 16 * pp) * 8192))
                o.append('buffer_load_dwordx4 %s, %s, %s offen %s lds' % (V(vOffW), S(12 + 4 * m, 4), S(sTmp), wflags))
        return o
    a('s_lshl_b32 %s, s4, 10' % S(sM0))
    for u in range(3): a(dma(u))
    for u in range(NK):
        left = min(2, NK - 1 - u)
        a('s_waitcnt vmcnt(%d) lgkmcnt(0)' % (4 * left))
        a('s_barrier')
        if u + 3 < NK: a(dma(u + 3))
        for m in range(2):
            for tau in range(2):
                for z in range(2):
                    a('ds_read_b64_tr_b16 %s, %s offset:%d' % (wreg(m, tau, u, NK, z), V(vWr + tau),
                      (u % 4) * 16384 + m * 8192 + z * 1024))

def prologue(a, KD, nxt, xflags, wflags):
    XS = 64 * KD
    setup_lanes(a, KD)
    a('s_mov_b32 %s, %s' % (S(sTc), S(sT0)))
    a(nxt(sTp1, sTc))
    for slot, t in ((0, sTc), (1, sTp1)):
        a('s_lshl_b32 %s, s4, 10' % S(sM0))
        if slot: a('s_add_u32 %s, %s, %d' % (S(sM0), S(sM0), XS))
        a('s_mul_i32 %s, %s, %d' % (S(sXo), S(t), XS))
        for s_, d in x_dma(KD, xflags): a([s_, 's_nop 0', d])
    load_weights(a, KD, wflags)
    a('s_mov_b32 %s, 0x%x' % (S(sScale), QSCALE))
    a('s_mov_b32 %s, 0' % S(sCnt))
    a('s_mov_b32 %s, 0' % S(sSlotR))
    a('s_mov_b32 %s, %d' % (S(sSlotW), 2 * XS))
    for s in range(2): a('v_mov_b32 %s, %s' % (V(vXr + s), V(vXb + s)))

def xfrag(J, tt): return V(vXF + 8 * (J % 4) + 4 * tt, 4)
def xread(J, tt, NK):
    j = J % NK
    return 'ds_read_b128 %s, %s offset:%d' % (xfrag(J, tt), V(vXr + j % 2), 4096 * (j // 2) + 2048 * tt)

def tile_mfmas(P, KD, mode, accset=None):
    NK = KD // 32
    main = []
    for j in range(NK):
        for tt in range(2):
            for m in range(2):
                for tau in range(2):
                    d = V(acc(P if accset is None else accset, m, tau, tt), 4)
                    c = d if j else '0'
                    w = wreg(m, tau, j, NK); xf = xfrag(P * NK + j, tt)
                    if m == 1 and mode == 'kv': main.append('v_mfma_f32_16x16x32_bf16 %s, %s, %s, %s' % (d, xf, w, c))
                    else: main.append('v_mfma_f32_16x16x32_bf16 %s, %s, %s, %s' % (d, w, xf, c))
    return main

def stream_fill(put, P, KD, nxt, xflags, vm, after_bar=None, d0=1):
    NK = KD // 32; XS = 64 * KD
    for j in range(NK):
        if j == NK - 2:
            put(8 * j, ['s_waitcnt vmcnt(%d)' % vm, 's_barrier'])
        put(8 * j, xread(P * NK + j + 2, 0, NK))
        put(8 * j + 1, xread(P * NK + j + 2, 1, NK))
        if j == NK - 2 and after_bar: put(8 * j + 2, after_bar)
        put(8 * j + 7, 's_waitcnt lgkmcnt(2)')
    put(2, nxt(sTp2, sTp1))
    put(3, ['s_add_u32 %s, %s, 2' % (S(sTmp), S(sCnt)), 's_mul_i32 %s, %s, %d' % (S(sXo), S(sTp2), XS)])
    put(4, ['s_cmp_lt_u32 %s, %s' % (S(sTmp), S(sN)), 's_cselect_b32 %s, %s, 0' % (S(sXo), S(sXo))])
    put(5, ['s_lshl_b32 %s, s4, 10' % S(sM0), 's_add_u32 %s, %s, %s' % (S(sM0), S(sM0), S(sSlotW))])
    for kb, (s_, d) in enumerate(x_dma(KD, xflags)):
        b = 8 * (d0 + kb // 2) + 2 + 2 * (kb % 2)
        put(b, s_); put(b + 1, d)
    b = 8 * (NK - 5)
    put(b + 2, ['s_add_u32 %s, %s, %d' % (S(sSlotR), S(sSlotR), XS), 's_cmp_eq_u32 %s, %d' % (S(sSlotR), 4 * XS)])
    put(b + 3, ['s_cselect_b32 %s, 0, %s' % (S(sSlotR), S(sSlotR)), 's_add_u32 %s, %s, %d' % (S(sSlotW), S(sSlotW), XS)])
    put(b + 4, ['s_cmp_eq_u32 %s, %d' % (S(sSlotW), 4 * XS), 's_cselect_b32 %s, 0, %s' % (S(sSlotW), S(sSlotW))])
    for s in range(2):
        put(8 * (NK - 4 + s) + 2, 'v_add_u32 %s, %s, %s' % (V(vXr + s), S(sSlotR), V(vXb + s)))

def spread(put, fill, ins, lo, hi, cap=2):
    free = [g for g in range(lo, hi) for _ in range(max(0, cap - len(fill.get(g, []))))]
    assert len(free) >= len(ins), (len(free), len(ins))
    for i, x in enumerate(ins): put(free[(i * len(free)) // len(ins)], x)

def pstream(a, KD, mode, ostride, nxt, flag=True, xflags='', wflags='', stflags='sc1', pre_loop=None, dbg='', xpf=0, soon=0, kscale=0):
    NK = KD // 32; ND = KD // 64
    prologue(a, KD, nxt, xflags, wflags)
    if pre_loop: pre_loop(a)
    scale = S(sScale) if mode == 'qq' else None
    a('s_lshl_b32 %s, s2, 13' % S(sSt0))
    a('s_add_u32 %s, %s, 0x%x' % (S(sSt0), S(sSt0), WS_DUMP))
    a('s_mov_b32 %s, %s' % (S(sSt1), S(sSt0)))
    a('v_mov_b32 %s, 0' % V(vFlagVal))
    a('s_waitcnt vmcnt(0) lgkmcnt(0)')
    a('s_barrier')
    for J in range(2):
        for tt in range(2): a(xread(J, tt, NK))
    if xpf:
        a('v_lshlrev_b32 v1, 12, v0'); a('s_lshl_b32 %s, s6, 7' % S(sTmp))
        for i in range((2048 * KD * 2 + 0xfffff) >> 20):
            a('buffer_load_dword v15, v1, s[8:11], %s offen %s' % (S(sTmp), xflags))
            a('v_add_u32 v1, 0x100000, v1')
    a('s_waitcnt lgkmcnt(2)')
    def stores(P):
        ins = []
        for m in range(2):
            for b in range(2):
                if m == 1 and mode == 'kv': t0, t1 = acc(P, m, b, 0), acc(P, m, b, 1)
                else: t0, t1 = acc(P, m, 0, b), acc(P, m, 1, b)
                pk = vPK + 8 * m + 4 * b
                ins += pack2(t0, t1, pk, S(sScale) if (kscale and m == 0) else scale, kscale and m == 0)
                ins.append('buffer_store_dwordx4 %s, %s, s[20:23], %s offen offset:%d %s' %
                           (V(pk, 4), V(vOffO), S(sSt0 + m), 1024 * b, stflags))
        return ins
    Lloop = a.lab('ps_loop')
    a(Lloop + ':')
    for P in range(2):
        fill = {}
        def put(i, x): fill.setdefault(i, []).extend(x if isinstance(x, list) else [x])
        main = tile_mfmas(P, KD, mode)
        fl = 'buffer_store_dword %s, %s, s[20:23], 0 offen sc1' % (V(vFlagVal), V(vFlagOff)) if flag is True else None
        stream_fill(put, P, KD, nxt, xflags, ND if soon else ND + 4, fl, 5 if soon else 1)
        e = 8 * (NK - 1)
        put(e + 2, ['s_mul_i32 %s, %s, %d' % (S(sTmp), S(sTc), ostride), 's_add_u32 %s, %s, %s' % (S(sSt0), S(sO0), S(sTmp))])
        put(e + 3, ['s_add_u32 %s, %s, %s' % (S(sSt1), S(sO1), S(sTmp)), ('v_add_u32 %s, 1, %s' % (V(vFlagVal), V(vFlagVal))) if soon else 'v_mov_b32 %s, %s' % (V(vFlagVal), S(sCnt))])
        put(e + 4, ['s_mov_b32 %s, %s' % (S(sTc), S(sTp1)), 's_mov_b32 %s, %s' % (S(sTp1), S(sTp2))])
        put(e + 5, ['s_add_u32 %s, %s, 1' % (S(sCnt), S(sCnt))] + (['s_cmp_lt_u32 %s, %s' % (S(sCnt), S(sN))] if P else []))
        if soon: spread(put, fill, stores(1 - P), 6, 40, cap=2 if kscale else 1)
        else: spread(put, fill, stores(1 - P), 8 * (2 + ND // 2), 8 * (NK - 2), cap=1 if mode == 'kv' and not kscale else 2)
        body = weave(main, fill)
        if 'nost' in dbg: body = [x if 'buffer_store_dwordx4' not in x else 's_nop 0' for x in body]
        if 'x0' in dbg: body = [x if not x.startswith('s_cselect_b32 s46') else 's_mov_b32 s46, 0' for x in body]
        if 'st0' in dbg: body = [x if not x.startswith('s_mul_i32 s45') else 's_mov_b32 s45, 0' for x in body]
        if 'nodma' in dbg: body = [x if ' lds' not in x else 's_nop 0' for x in body]
        a(body)
    a('s_cbranch_scc1 ' + Lloop)
    a('s_nop 7')
    a(stores(1))
    a('s_waitcnt vmcnt(0) lgkmcnt(0)')
    a('s_barrier')
    if flag:
        a('v_mov_b32 %s, %s' % (V(vFlagVal), S(sN)))
        a('buffer_store_dword %s, %s, s[20:23], 0 offen sc1' % (V(vFlagVal), V(vFlagOff)))
```

```python
import sys, os
from common import *
import pstream as P, chain as C, att as T, qb as Q, ostream as O, hazard

def gen(opt, name):
    a = Asm()
    diag = opt.get('diag')
    perm = [int(c) for c in str(opt.get('perm', 'p02145673'))[1:]]
    ROLE = sum(r << (4 * i) for i, r in enumerate(perm))
    def stamp(a, idx, v=20):
        if not diag: return
        a('s_memrealtime s[96:97]'); a('s_memtime s[98:99]'); a('s_waitcnt lgkmcnt(0)')
        a('v_mov_b32 v%d, s98' % v); a('v_mov_b32 v%d, s96' % (v + 1))
        a('s_lshl_b32 s96, s2, 6'); a('s_add_u32 s96, s96, %d' % (WS_STAMP + idx * 8))
        a('v_mov_b32 v%d, 0' % (v + 2))
        a('buffer_store_dwordx2 v[%d:%d], v%d, s[20:23], s96 offen' % (v, v + 1, v + 2))
    def far(cond, lab):
        a('s_cbranch_%s %s' % (cond, lab))
    def flags_ready(a, v=20, gate=False):
        L = a.lab('fr'); Lok = a.lab('frk')
        a('s_mov_b32 s95, 0x%x' % SPIN)
        a('s_cmp_lg_u32 s4, 0'); a('s_cbranch_scc1 ' + Lok)
        a('v_min_u32 v%d, 1, v0' % (v + 1)); a('v_lshlrev_b32 v%d, 28, v%d' % (v + 1, v + 1))
        a(L + ':')
        a('buffer_load_dword v%d, v%d, s[28:31], 0 offen offset:%d sc1' % (v, v + 1, 128 if gate else 0))
        a('s_waitcnt vmcnt(0)')
        a('v_cmp_eq_u32 vcc, %d, v%d' % (1, v))
        a('s_cbranch_vccnz ' + Lok)
        if gate: a('s_sleep 12')
        a('s_sub_u32 s95, s95, 1'); a('s_cbranch_scc0 ' + L)
        a('s_endpgm')
        a(Lok + ':')
    def flag_lane(off_code):
        a(off_code)
        a('v_min_u32 v1, 1, v0'); a('v_lshlrev_b32 v1, 28, v1'); a('v_add_u32 %s, s7, v1' % V(P.vFlagOff))
    def ps_pre(a): flags_ready(a); stamp(a, 1)
    def ps_gate(a): flags_ready(a, gate=opt.get('usegate')); stamp(a, 1)
    xf, wf = opt.get('xf', ''), opt.get('wf', '')
    a('s_cmp_ge_u32 s2, 256'); far('scc1', 'Lend')
    srd(a, 20, 'ws'); srd(a, 28, 'dbg')
    a('v_lshrrev_b32 v1, 6, v0')
    a('s_and_b32 s5, s2, 7'); a('s_lshr_b32 s6, s2, 3')
    a('v_readfirstlane_b32 s4, v1')
    a('s_lshl_b32 s5, s5, 2'); a('s_lshr_b32 s5, 0x%x, s5' % ROLE); a('s_and_b32 s5, s5, 7')
    a('s_waitcnt lgkmcnt(0)')
    stamp(a, 0)
    if opt.get('tlb', 0):
        a('s_cmp_eq_u32 s4, 3'); a('s_cbranch_scc0 Ltlb')
        a('v_and_b32 v1, 63, v0'); a('v_lshlrev_b32 v1, 21, v1'); a('s_lshl_b32 s7, s6, 14')
        a('buffer_load_dword v254, v1, s[20:23], s7 offen sc1')
        a('Ltlb:')
    if opt.get('cpf', 0):
        a('s_getpc_b64 s[8:9]'); a('Lpc:')
        a('s_lshl_b32 s7, s6, 13'); a('s_cmp_le_u32 s7, Lend - Lpc'); a('s_cselect_b32 s3, s4, 1')
        a('s_cmp_eq_u32 s3, 0'); a('s_cbranch_scc0 Lcpf')
        a('v_lshl_add_u32 v1, v0, 7, s7'); a('v_min_u32 v1, Lend - Lpc, v1')
        a('global_load_dword v255, v1, s[8:9]')
        a('Lcpf:')
    a('s_cmp_eq_u32 s5, 0'); far('scc1', 'Lchain')
    a('s_cmp_eq_u32 s5, 1'); far('scc1', 'Lpb')
    a('s_cmp_lt_u32 s5, 4'); far('scc1', 'Lqa')
    srd(a, 8, 'A_ckv'); srd(a, 12, 'A_wuk'); srd(a, 16, 'A_wuv')
    a('s_sub_u32 s3, s5, 4'); a('s_lshl_b32 s3, s3, 3'); a('s_lshr_b32 s7, s6, 2'); a('s_add_u32 s3, s3, s7')
    a('s_lshl_b32 s32, s3, 8'); a('s_mov_b32 s33, s32')
    a('s_lshl_b32 s34, s3, 14'); a('s_add_u32 s34, s34, 0x%x' % WS_KVA); a('s_add_u32 s35, s34, 8192')
    a('s_mov_b32 s36, 16'); a('s_and_b32 s37, s6, 3')
    flag_lane(['s_lshl_b32 s7, s3, 5', 's_add_u32 s7, s7, s37', 's_lshl_b32 s7, s7, 2', 's_add_u32 s7, s7, 0x%x' % FLAG(FL_PA)])
    a('s_waitcnt lgkmcnt(0)')
    P.pstream(a, 512, 'kv', 16384 * 32, P.default_next(4), xflags=xf, wflags=wf, pre_loop=ps_gate, xpf=opt.get('xpf', 1), flag='end')
    stamp(a, 2)
    a('s_mov_b32 s32, s3'); a('s_and_b32 s33, s6, 3'); a('s_sub_u32 s34, 7, s33')
    def att_wait(a):
        L = a.lab('aw'); Lok = a.lab('awk')
        a('s_lshl_b32 s7, s3, 7'); a('s_add_u32 s7, s7, 0x%x' % FLAG(FL_PA))
        a('s_lshr_b32 s94, s3, 1'); a('s_lshl_b32 s94, s94, 7'); a('s_add_u32 s94, s94, 0x%x' % FLAG(FL_QA))
        a('v_mov_b32 v8, 0')
        a(L + ':')
        a('buffer_load_dwordx4 v[16:19], v8, s[20:23], s7 offen sc1')
        a('buffer_load_dwordx4 v[20:23], v8, s[20:23], s94 offen sc1')
        a('s_waitcnt vmcnt(0)')
        a('v_min3_u32 v16, v16, v17, v18'); a('v_min3_u32 v16, v16, v19, v20'); a('v_min3_u32 v16, v16, v21, v22'); a('v_min_u32 v16, v16, v23')
        a('v_cmp_le_u32 vcc, 16, v16')
        a('s_cbranch_vccnz ' + Lok)
        a('s_sleep 2')
        a('s_sub_u32 s95, s95, 1'); a('s_cbranch_scc0 ' + L)
        a('s_endpgm')
        a(Lok + ':')
    T.att(a, att_wait, opt, (lambda a, i: stamp(a, i, 8)))
    stamp(a, 5)
    a('s_cmp_ge_u32 s6, 27'); far('scc1', 'Lfin')
    srd(a, 8, 'A_wo')
    a('s_mul_i32 s7, s6, 29'); a('s_lshr_b32 s7, s7, 8'); a('s_mul_i32 s94, s7, 9')
    a('s_sub_u32 %s, s6, s94' % S(O.sCs))
    a('s_mul_i32 %s, s7, 3' % S(O.sRot0))
    a('s_lshl_b32 s7, s7, 2'); a('s_add_u32 s7, s7, s5'); a('s_sub_u32 %s, s7, 4' % S(O.sT0))
    a('s_mov_b32 %s, 12' % S(O.sDT)); a('s_cmp_lt_u32 %s, 4' % S(O.sT0)); a('s_cselect_b32 %s, 6, 5' % S(O.sN))
    a('s_mov_b32 %s, 0x%x' % (S(O.sCtx), WS_CTXA)); a('s_mov_b32 %s, 0' % S(O.sOcol))
    a('s_lshl_b32 %s, s4, 5' % S(O.sFb)); a('s_add_u32 %s, %s, 0x%x' % (S(O.sFb), S(O.sFb), FLAG(FL_AT)))
    a('s_mov_b32 %s, 0' % S(O.sDX))
    a('s_mov_b32 s93, 0x38'); a('s_mov_b32 s92, 7'); a('s_mov_b32 s91, 4'); a('s_mov_b32 s90, 31')
    a('s_branch Los')
    a('Lpb:')
    srd(a, 8, 'B_x'); srd(a, 12, 'B_wk'); srd(a, 16, 'B_wv')
    a('s_lshl_b32 s32, s6, 8'); a('s_mov_b32 s33, s32')
    a('s_lshl_b32 s34, s6, 14'); a('s_add_u32 s34, s34, 0x%x' % WS_KVB); a('s_add_u32 s35, s34, 8192')
    a('s_mov_b32 s36, 64'); a('s_mov_b32 s37, 0')
    flag_lane(['s_lshl_b32 s7, s6, 7', 's_add_u32 s7, s7, 0x%x' % FLAG(FL_PB)])
    a('s_waitcnt lgkmcnt(0)')
    P.pstream(a, 576, 'kv', 16384 * 32, P.default_next(1), xflags=xf, wflags=wf, pre_loop=ps_pre, xpf=opt.get('xpf', 1), soon=opt.get('soon', 1), kscale=1)
    a('s_branch Lfin')
    a('Lqa:')
    srd(a, 8, 'A_x'); srd(a, 12, 'A_wq'); srd(a, 16, 'A_wq')
    a('s_cmp_eq_u32 s2, %d' % (248 + perm.index(3))); a('s_cbranch_scc0 Lqa1')
    for i in range(4): a('v_mov_b32 v%d, 0' % (4 + i))
    a('v_lshlrev_b32 v1, 4, v0')
    for i in range(5):
        a('s_mov_b32 s7, %d' % (WS_FLAGS + 4096 * i))
        a('buffer_store_dwordx4 v[4:7], v1, s[20:23], s7 offen sc1')
    a('v_min_u32 v1, 1, v0'); a('v_lshlrev_b32 v1, 28, v1'); a('v_mov_b32 v2, 1')
    a('s_waitcnt vmcnt(0)'); a('s_barrier')
    a('buffer_store_dword v2, v1, s[28:31], 0 offen sc1')
    a('Lqa1:')
    a('s_sub_u32 s3, s5, 2'); a('s_lshl_b32 s3, s3, 3'); a('s_lshr_b32 s7, s6, 2'); a('s_add_u32 s3, s3, s7')
    a('s_lshl_b32 s32, s3, 9'); a('s_add_u32 s33, s32, 256')
    a('s_lshl_b32 s34, s3, 14'); a('s_add_u32 s34, s34, 0x%x' % WS_QA); a('s_add_u32 s35, s34, 8192')
    a('s_mov_b32 s36, 16'); a('s_and_b32 s37, s6, 3')
    flag_lane(['s_lshl_b32 s7, s3, 5', 's_add_u32 s7, s7, s37', 's_lshl_b32 s7, s7, 2', 's_add_u32 s7, s7, 0x%x' % FLAG(FL_QA)])
    a('s_waitcnt lgkmcnt(0)')
    P.pstream(a, 576, 'qq', 8192 * 32, P.default_next(4), xflags=xf, wflags=wf, pre_loop=ps_gate, xpf=opt.get('xpf', 1), flag='end')
    stamp(a, 2)
    a('s_sub_u32 s3, s5, 2')
    a('s_add_u32 s7, s6, s3'); a('s_cmp_ge_u32 s7, 30'); far('scc1', 'Lfin')
    a('s_cmp_ge_u32 s6, 16'); far('scc1', 'Lob')
    srd(a, 8, 'B_x'); srd(a, 12, 'B_wq'); srd(a, 16, 'B_wq')
    a('s_lshl_b32 s32, s6, 9'); a('s_add_u32 s33, s32, 256')
    a('s_mov_b32 s36, 32'); a('s_mov_b32 s37, s3')
    a('s_lshl_b32 %s, s6, 1' % S(Q.sHm))
    a('s_lshl_b32 s7, s3, 4'); a('s_add_u32 s7, s7, s6'); a('s_and_b32 s94, s7, 3'); a('s_lshr_b32 s7, s7, 2'); a('s_lshl_b32 s7, s7, 5')
    a('s_add_u32 s7, s7, s94'); a('s_lshl_b32 s7, s7, 2'); a('s_add_u32 %s, s7, 0x%x' % (S(Q.sFq), FLAG(FL_QB)))
    a('s_waitcnt lgkmcnt(0)')
    Q.qb(a, P.default_next(2), xflags=xf, wflags=opt.get('wf2', ''), stamp=stamp)
    a('s_branch Lfin')
    a('Lob:')
    srd(a, 8, 'B_wo')
    a('s_sub_u32 %s, s6, 16' % S(O.sCs))
    a('s_mul_i32 s7, s3, 5'); a('s_add_u32 s7, s7, s6'); a('s_sub_u32 s7, s7, 25')
    a('s_cmp_lt_u32 s6, 25')
    a('s_cselect_b32 %s, %s, s7' % (S(O.sCs), S(O.sCs)))
    a('s_cselect_b32 %s, s3, 4' % S(O.sT0)); a('s_cselect_b32 %s, 2, 1' % S(O.sDT)); a('s_cselect_b32 %s, 6, 4' % S(O.sDX))
    a('s_cselect_b32 %s, 22, 20' % S(O.sN)); a('s_cselect_b32 %s, 0, 4' % S(O.sRot0))
    a('s_mov_b32 %s, 0x%x' % (S(O.sCtx), WS_CTXB)); a('s_mov_b32 %s, 1152' % S(O.sOcol))
    a('s_lshl_b32 s7, s4, 7'); a('s_add_u32 %s, s7, 0x%x' % (S(O.sFb), FLAG(FL_QB)))
    a('s_mov_b32 s93, 1'); a('s_mov_b32 s92, 3'); a('s_mov_b32 s91, 9'); a('s_mov_b32 s90, 1')
    a('Los:')
    srd(a, 24, 'out')
    a('s_waitcnt lgkmcnt(0)')
    O.ostream(a, lambda d, t: ['s_and_b32 %s, %s, s93' % (S(d), S(t)), 's_lshl_b32 %s, %s, s91' % (S(d), S(d)), 's_add_u32 %s, %s, %s' % (S(d), S(d), S(O.sFb)),
                               's_lshr_b32 %s, %s, s90' % (S(O.sNeed), S(t)), 's_add_u32 %s, %s, 1' % (S(O.sNeed), S(O.sNeed))],
              's92', wflags=opt.get('wf2', ''), stamp=stamp, slp=opt.get('slp', 4), oflags=opt.get('of', ''))
    a('s_branch Lfin')
    a('Lchain:')
    C.chain(a, opt, lambda a: flags_ready(a, 30), wflags=wf, stamp_once=(lambda a, i: stamp(a, i, 20)) if diag else None, force_slow=opt.get('slow'))
    a('Lfin:')
    stamp(a, 7)
    a('Lend:')
    a('s_endpgm')
    head = open(os.path.join(os.path.dirname(os.path.abspath(__file__)), 'header.txt')).read()
    t = head + '; @launch grid=(256,1,1) block=(256,1,1) lds=163840\n' + HEAD + kernel_open(name) + a.text() + RODATA + kernel_desc(name)
    assert hazard.check(t) == 0
    return t
if __name__ == '__main__':
    opt = {}
    for x in (sys.argv[1] if len(sys.argv) > 1 else '').split(','):
        if x:
            k, v = x.split('='); opt[k] = int(v) if v.lstrip('-').isdigit() else v
    print(gen(opt, KNAME + '_kernel'), end='')
```

```python
import sys, os
from common import *
import pstream as P, chain as C, att as T, qb as Q, ostream as O, hazard

def gen(opt, name):
    a = Asm()
    diag = opt.get('diag')
    perm = [int(c) for c in str(opt.get('perm', 'p02145673'))[1:]]
    ROLE = sum(r << (4 * i) for i, r in enumerate(perm))
    def stamp(a, idx, v=20, who='x'):
        if not diag: return
        if diag == 2:
            slot = {(0, 'x'): 4, (1, 'c'): 6, (2, 'c'): 7, (7, 'c'): 8, (7, 'x'): 9, (1, 'x'): 10, (2, 'x'): 11, (5, 'x'): 12, (6, 'x'): 13}.get((idx, who))
            if slot is None: return
            a('s_load_dwordx2 s[84:85], s[0:1], 112'); a('s_memrealtime s[96:97]'); a('s_mov_b32 s86, 256'); a('s_mov_b32 s87, 0x20000'); a('s_waitcnt lgkmcnt(0)')
            a('v_mbcnt_lo_u32_b32 v%d, -1, s4' % (v + 2)); a('v_min_u32 v%d, 1, v%d' % (v + 2, v + 2)); a('v_lshlrev_b32 v%d, 28, v%d' % (v + 2, v + 2))
            a('v_mov_b32 v%d, s96' % v); a('v_not_b32 v%d, v%d' % (v + 1, v))
            a('buffer_atomic_umax v%d, v%d, s[84:87], 0 offen offset:%d' % (v, v + 2, 4 * slot))
            if idx == 0: a('buffer_atomic_umax v%d, v%d, s[84:87], 0 offen offset:%d' % (v + 1, v + 2, 4 * slot + 4))
            return
        a('s_memrealtime s[96:97]'); a('s_memtime s[98:99]'); a('s_waitcnt lgkmcnt(0)')
        a('v_mov_b32 v%d, s98' % v); a('v_mov_b32 v%d, s96' % (v + 1))
        a('s_lshl_b32 s96, s2, 6'); a('s_add_u32 s96, s96, %d' % (WS_STAMP + idx * 8))
        a('v_mov_b32 v%d, 0' % (v + 2))
        a('buffer_store_dwordx2 v[%d:%d], v%d, s[20:23], s96 offen' % (v, v + 1, v + 2))
    def far(cond, lab):
        a('s_cbranch_%s %s' % (cond, lab))
    def flags_ready(a, v=20, gate=False):
        L = a.lab('fr'); Lok = a.lab('frk')
        a('s_mov_b32 s95, 0x%x' % SPIN)
        a('s_cmp_lg_u32 s4, 0'); a('s_cbranch_scc1 ' + Lok)
        a('v_min_u32 v%d, 1, v0' % (v + 1)); a('v_lshlrev_b32 v%d, 28, v%d' % (v + 1, v + 1))
        a(L + ':')
        a('buffer_load_dword v%d, v%d, s[28:31], 0 offen offset:%d sc1' % (v, v + 1, 128 if gate else 0))
        a('s_waitcnt vmcnt(0)')
        a('v_cmp_eq_u32 vcc, %d, v%d' % (1, v))
        a('s_cbranch_vccnz ' + Lok)
        if gate: a('s_sleep 12')
        a('s_sub_u32 s95, s95, 1'); a('s_cbranch_scc0 ' + L)
        a('s_endpgm')
        a(Lok + ':')
    def flag_lane(off_code):
        a(off_code)
        a('v_min_u32 v1, 1, v0'); a('v_lshlrev_b32 v1, 28, v1'); a('v_add_u32 %s, s7, v1' % V(P.vFlagOff))
    def ps_pre(a): flags_ready(a); stamp(a, 1)
    def ps_gate(a): flags_ready(a, gate=opt.get('usegate', 1)); stamp(a, 1)
    xf, wf = opt.get('xf', ''), opt.get('wf', '')
    a('s_cmp_ge_u32 s2, 256'); far('scc1', 'Lend')
    srd(a, 20, 'ws'); srd(a, 28, 'dbg')
    a('v_lshrrev_b32 v1, 6, v0')
    a('s_and_b32 s5, s2, 7'); a('s_lshr_b32 s6, s2, 3')
    a('v_readfirstlane_b32 s4, v1')
    a('s_lshl_b32 s5, s5, 2'); a('s_lshr_b32 s5, 0x%x, s5' % ROLE); a('s_and_b32 s5, s5, 7')
    a('s_waitcnt lgkmcnt(0)')
    stamp(a, 0)
    if opt.get('tlb', 0):
        a('s_cmp_eq_u32 s4, 3'); a('s_cbranch_scc0 Ltlb')
        a('v_and_b32 v1, 63, v0'); a('v_lshlrev_b32 v1, 21, v1'); a('s_lshl_b32 s7, s6, 14')
        a('buffer_load_dword v254, v1, s[20:23], s7 offen sc1')
        a('Ltlb:')
    if opt.get('cpf', 0):
        a('s_getpc_b64 s[8:9]'); a('Lpc:')
        a('s_lshl_b32 s7, s6, 13'); a('s_cmp_le_u32 s7, Lend - Lpc'); a('s_cselect_b32 s3, s4, 1')
        a('s_cmp_eq_u32 s3, 0'); a('s_cbranch_scc0 Lcpf')
        a('v_lshl_add_u32 v1, v0, 7, s7'); a('v_min_u32 v1, Lend - Lpc, v1')
        a('global_load_dword v255, v1, s[8:9]')
        a('Lcpf:')
    a('s_cmp_eq_u32 s5, 0'); far('scc1', 'Lchain')
    a('s_cmp_eq_u32 s5, 1'); far('scc1', 'Lpb')
    a('s_cmp_lt_u32 s5, 4'); far('scc1', 'Lqa')
    srd(a, 8, 'A_ckv'); srd(a, 12, 'A_wuk'); srd(a, 16, 'A_wuv')
    a('s_sub_u32 s3, s5, 4'); a('s_lshl_b32 s3, s3, 3'); a('s_lshr_b32 s7, s6, 2'); a('s_add_u32 s3, s3, s7')
    a('s_lshl_b32 s32, s3, 8'); a('s_mov_b32 s33, s32')
    a('s_lshl_b32 s34, s3, 14'); a('s_add_u32 s34, s34, 0x%x' % WS_KVA); a('s_add_u32 s35, s34, 8192')
    a('s_mov_b32 s36, 16'); a('s_and_b32 s37, s6, 3')
    flag_lane(['s_lshl_b32 s7, s3, 5', 's_add_u32 s7, s7, s37', 's_lshl_b32 s7, s7, 2', 's_add_u32 s7, s7, 0x%x' % FLAG(FL_PA)])
    a('s_waitcnt lgkmcnt(0)')
    P.pstream(a, 512, 'kv', 16384 * 32, P.default_next(4), xflags=xf, wflags=wf, pre_loop=ps_gate, xpf=opt.get('xpf', 1), flag='end')
    stamp(a, 2)
    a('s_mov_b32 s32, s3'); a('s_and_b32 s33, s6, 3'); a('s_sub_u32 s34, 7, s33')
    def att_wait(a):
        L = a.lab('aw'); Lok = a.lab('awk')
        a('s_lshl_b32 s7, s3, 7'); a('s_add_u32 s7, s7, 0x%x' % FLAG(FL_PA))
        a('s_lshr_b32 s94, s3, 1'); a('s_lshl_b32 s94, s94, 7'); a('s_add_u32 s94, s94, 0x%x' % FLAG(FL_QA))
        a('v_mov_b32 v8, 0')
        a(L + ':')
        a('buffer_load_dwordx4 v[16:19], v8, s[20:23], s7 offen sc1')
        a('buffer_load_dwordx4 v[20:23], v8, s[20:23], s94 offen sc1')
        a('s_waitcnt vmcnt(0)')
        a('v_min3_u32 v16, v16, v17, v18'); a('v_min3_u32 v16, v16, v19, v20'); a('v_min3_u32 v16, v16, v21, v22'); a('v_min_u32 v16, v16, v23')
        a('v_cmp_le_u32 vcc, 16, v16')
        a('s_cbranch_vccnz ' + Lok)
        a('s_sleep 2')
        a('s_sub_u32 s95, s95, 1'); a('s_cbranch_scc0 ' + L)
        a('s_endpgm')
        a(Lok + ':')
    T.att(a, att_wait, opt, (lambda a, i: stamp(a, i, 8)))
    stamp(a, 5)
    a('s_cmp_ge_u32 s6, 27'); far('scc1', 'Lfin')
    srd(a, 8, 'A_wo')
    a('s_mul_i32 s7, s6, 29'); a('s_lshr_b32 s7, s7, 8'); a('s_mul_i32 s94, s7, 9')
    a('s_sub_u32 %s, s6, s94' % S(O.sCs))
    a('s_mul_i32 %s, s7, 3' % S(O.sRot0))
    a('s_lshl_b32 s7, s7, 2'); a('s_add_u32 s7, s7, s5'); a('s_sub_u32 %s, s7, 4' % S(O.sT0))
    a('s_mov_b32 %s, 12' % S(O.sDT)); a('s_cmp_lt_u32 %s, 4' % S(O.sT0)); a('s_cselect_b32 %s, 6, 5' % S(O.sN))
    a('s_mov_b32 %s, 0x%x' % (S(O.sCtx), WS_CTXA)); a('s_mov_b32 %s, 0' % S(O.sOcol))
    a('s_lshl_b32 %s, s4, 5' % S(O.sFb)); a('s_add_u32 %s, %s, 0x%x' % (S(O.sFb), S(O.sFb), FLAG(FL_AT)))
    a('s_mov_b32 %s, 0' % S(O.sDX))
    a('s_mov_b32 s93, 0x38'); a('s_mov_b32 s92, 7'); a('s_mov_b32 s91, 4'); a('s_mov_b32 s90, 31')
    a('s_branch Los')
    a('Lpb:')
    srd(a, 8, 'B_x'); srd(a, 12, 'B_wk'); srd(a, 16, 'B_wv')
    a('s_lshl_b32 s32, s6, 8'); a('s_mov_b32 s33, s32')
    a('s_lshl_b32 s34, s6, 14'); a('s_add_u32 s34, s34, 0x%x' % WS_KVB); a('s_add_u32 s35, s34, 8192')
    a('s_mov_b32 s36, 64'); a('s_mov_b32 s37, 0')
    flag_lane(['s_lshl_b32 s7, s6, 7', 's_add_u32 s7, s7, 0x%x' % FLAG(FL_PB)])
    a('s_waitcnt lgkmcnt(0)')
    P.pstream(a, 576, 'kv', 16384 * 32, P.default_next(1), xflags=xf, wflags=wf, pre_loop=ps_pre, xpf=opt.get('xpf', 1), soon=opt.get('soon', 1), kscale=1)
    a('s_branch Lfin')
    a('Lqa:')
    srd(a, 8, 'A_x'); srd(a, 12, 'A_wq'); srd(a, 16, 'A_wq')
    a('s_cmp_eq_u32 s2, %d' % (248 + perm.index(3))); a('s_cbranch_scc0 Lqa1')
    for i in range(4): a('v_mov_b32 v%d, 0' % (4 + i))
    a('v_lshlrev_b32 v1, 4, v0')
    for i in range(5):
        a('s_mov_b32 s7, %d' % (WS_FLAGS + 4096 * i))
        a('buffer_store_dwordx4 v[4:7], v1, s[20:23], s7 offen sc1')
    a('v_min_u32 v1, 1, v0'); a('v_lshlrev_b32 v1, 28, v1'); a('v_mov_b32 v2, 1')
    a('s_waitcnt vmcnt(0)'); a('s_barrier')
    a('buffer_store_dword v2, v1, s[28:31], 0 offen sc1')
    a('Lqa1:')
    a('s_sub_u32 s3, s5, 2'); a('s_lshl_b32 s3, s3, 3'); a('s_lshr_b32 s7, s6, 2'); a('s_add_u32 s3, s3, s7')
    a('s_lshl_b32 s32, s3, 9'); a('s_add_u32 s33, s32, 256')
    a('s_lshl_b32 s34, s3, 14'); a('s_add_u32 s34, s34, 0x%x' % WS_QA); a('s_add_u32 s35, s34, 8192')
    a('s_mov_b32 s36, 16'); a('s_and_b32 s37, s6, 3')
    flag_lane(['s_lshl_b32 s7, s3, 5', 's_add_u32 s7, s7, s37', 's_lshl_b32 s7, s7, 2', 's_add_u32 s7, s7, 0x%x' % FLAG(FL_QA)])
    a('s_waitcnt lgkmcnt(0)')
    P.pstream(a, 576, 'qq', 8192 * 32, P.default_next(4), xflags=xf, wflags=wf, pre_loop=ps_gate, xpf=opt.get('xpf', 1), flag='end')
    stamp(a, 2)
    a('s_sub_u32 s3, s5, 2')
    a('s_add_u32 s7, s6, s3'); a('s_cmp_ge_u32 s7, 30'); far('scc1', 'Lfin')
    a('s_cmp_ge_u32 s6, 16'); far('scc1', 'Lob')
    srd(a, 8, 'B_x'); srd(a, 12, 'B_wq'); srd(a, 16, 'B_wq')
    a('s_lshl_b32 s32, s6, 9'); a('s_add_u32 s33, s32, 256')
    a('s_mov_b32 s36, 32'); a('s_mov_b32 s37, s3')
    a('s_lshl_b32 %s, s6, 1' % S(Q.sHm))
    a('s_lshl_b32 s7, s3, 4'); a('s_add_u32 s7, s7, s6'); a('s_and_b32 s94, s7, 3'); a('s_lshr_b32 s7, s7, 2'); a('s_lshl_b32 s7, s7, 5')
    a('s_add_u32 s7, s7, s94'); a('s_lshl_b32 s7, s7, 2'); a('s_add_u32 %s, s7, 0x%x' % (S(Q.sFq), FLAG(FL_QB)))
    a('s_waitcnt lgkmcnt(0)')
    Q.qb(a, P.default_next(2), xflags=xf, wflags=opt.get('wf2', ''), stamp=stamp)
    a('s_branch Lfin')
    a('Lob:')
    srd(a, 8, 'B_wo')
    a('s_sub_u32 %s, s6, 16' % S(O.sCs))
    a('s_mul_i32 s7, s3, 5'); a('s_add_u32 s7, s7, s6'); a('s_sub_u32 s7, s7, 25')
    a('s_cmp_lt_u32 s6, 25')
    a('s_cselect_b32 %s, %s, s7' % (S(O.sCs), S(O.sCs)))
    a('s_cselect_b32 %s, s3, 4' % S(O.sT0)); a('s_cselect_b32 %s, 2, 1' % S(O.sDT)); a('s_cselect_b32 %s, 6, 4' % S(O.sDX))
    a('s_cselect_b32 %s, 22, 20' % S(O.sN)); a('s_cselect_b32 %s, 0, 4' % S(O.sRot0))
    a('s_mov_b32 %s, 0x%x' % (S(O.sCtx), WS_CTXB)); a('s_mov_b32 %s, 1152' % S(O.sOcol))
    a('s_lshl_b32 s7, s4, 7'); a('s_add_u32 %s, s7, 0x%x' % (S(O.sFb), FLAG(FL_QB)))
    a('s_mov_b32 s93, 1'); a('s_mov_b32 s92, 3'); a('s_mov_b32 s91, 9'); a('s_mov_b32 s90, 1')
    a('Los:')
    srd(a, 24, 'out')
    a('s_waitcnt lgkmcnt(0)')
    O.ostream(a, lambda d, t: ['s_and_b32 %s, %s, s93' % (S(d), S(t)), 's_lshl_b32 %s, %s, s91' % (S(d), S(d)), 's_add_u32 %s, %s, %s' % (S(d), S(d), S(O.sFb)),
                               's_lshr_b32 %s, %s, s90' % (S(O.sNeed), S(t)), 's_add_u32 %s, %s, 1' % (S(O.sNeed), S(O.sNeed))],
              's92', wflags=opt.get('wf2', ''), stamp=stamp, slp=opt.get('slp', 4), oflags=opt.get('of', ''))
    a('s_branch Lfin')
    a('Lchain:')
    C.chain(a, opt, lambda a: flags_ready(a, 30), wflags=wf, stamp_once=(lambda a, i: stamp(a, i, 20, 'c')) if diag else None, force_slow=opt.get('slow'))
    if diag == 2: stamp(a, 7, 20, 'c')
    a('Lfin:')
    stamp(a, 7)
    a('Lend:')
    a('s_endpgm')
    head = open(os.path.join(os.path.dirname(os.path.abspath(__file__)), 'header.txt')).read()
    t = head + '; @launch grid=(256,1,1) block=(256,1,1) lds=163840\n' + HEAD + kernel_open(name) + a.text() + RODATA + kernel_desc(name)
    assert hazard.check(t) == 0
    return t
if __name__ == '__main__':
    opt = {}
    for x in (sys.argv[1] if len(sys.argv) > 1 else '').split(','):
        if x:
            k, v = x.split('='); opt[k] = int(v) if v.lstrip('-').isdigit() else v
    print(gen(opt, KNAME + '_kernel'), end='')
```

```python
from common import *

L_MEM, L_KX, L_Q, L_KM, L_O, L_F = 0, 9216, 17408, 19456, 19968, 24576
M2SZ = P1_BUF
vT16, vDum, vVa, vL16, vVb, vIdx, vPm, vZero, vXw, vXr, vQw, vQr = range(12)
VX, W0, W1, W2, W3 = 12, 20, 36, 52, 64
WREG = 72
sH = 6
sStep, sKV, sKVM, sP1r, sP1h, sM2a, sM2b, sM2c, sM2w, sM2x = 36, 37, 38, 39, 40, 41, 42, 43, 44, 45
sTmp, sSpin, sC, sFPB, sFCH, sTm2, sVXo = 47, 54, 55, 56, 57, 58, 59
sHf = 48
sTag = 46
sP1w = 60
sM2wh, sM2xh, sKXo, sPF, sXq = 65, 66, 67, 68, 69
sLo = 70
sSel, sOdd, sOne = 24, 32, 34
TOGGLE = (sM2w, sM2x, sM2wh, sM2xh, sM2a, sM2c)
WS = 's[20:23]'

WO_ORDER = [8, 0, 1, 2, 3, 4, 5, 6, 7]
frags = [(m, t, tau) for t in range(9) for m in 'qkv' for tau in range(2)] + [('o', tp, tl) for tl in range(9) for tp in range(2)]
KORD = [8, 0, 1, 2, 3, 4, 5, 6, 7]
lds_frags = [('k', t, 1) for t in KORD] + [('o', 1, tl) for tl in WO_ORDER[:8]]
reg_frags = [f for f in frags if f not in lds_frags]
assert len(reg_frags) == 55
regpos = {f: (WREG + 8 * i) for i, f in enumerate(reg_frags)}
def fbase(f):
    off = L_F + 8192 * f
    return (off // 65536) * 65536, off % 65536
def smf(d, a_, b): return 'v_smfmac_f32_16x16x64_bf16 %s, %s, %s, %s' % (V(d, 4), V(a_, 4), U(b, 8), V(vIdx))

def spin_fail(a, lab):
    a('s_sub_u32 %s, %s, 1' % (S(sSpin), S(sSpin)))
    a('s_cbranch_scc0 ' + lab)
    a('s_endpgm')

def setup(a):
    a('v_and_b32 v20, 63, v0')
    a('v_lshlrev_b32 %s, 4, v20' % V(vL16))
    a('v_mov_b32 %s, 0' % V(vZero))
    a('s_mov_b32 %s, 0xcccccccc' % S(sHf)); a('s_mov_b32 %s, 0xcccccccc' % S(sHf + 1))
    a('v_mov_b32 v21, 0x44444444'); a('v_mov_b32 v22, 0xeeeeeeee')
    a('v_cndmask_b32 %s, v21, v22, %s' % (V(vIdx), S(sHf, 2)))
    a('s_lshl_b32 %s, s4, 10' % S(sTmp)); a('s_add_u32 %s, %s, %d' % (S(sTmp), S(sTmp), L_KM))
    a('v_and_b32 v21, 48, v20'); a('v_lshl_add_u32 v21, v21, 3, %s' % S(sTmp))
    a('v_and_b32 v22, 8, v20'); a('v_lshl_add_u32 v21, v22, 2, v21')
    a('v_and_b32 v22, 1, v20'); a('v_lshl_add_u32 v21, v22, 4, v21')
    a('v_and_b32 v22, 6, v20'); a('v_lshl_add_u32 %s, v22, 1, v21' % V(vXw))
    a('v_and_b32 v21, 32, v20'); a('v_lshlrev_b32 v21, 5, v21')
    a('v_and_b32 v22, 12, v20'); a('v_lshl_add_u32 v21, v22, 5, v21')
    a('v_and_b32 v22, 1, v20'); a('v_lshl_add_u32 v21, v22, 6, v21')
    a('v_and_b32 v22, 16, v20'); a('v_lshl_add_u32 v21, v22, 1, v21')
    a('v_and_b32 v22, 2, v20'); a('v_lshl_add_u32 %s, v22, 3, v21' % V(vXr))
    a('v_lshrrev_b32 v21, 4, v0'); a('v_lshlrev_b32 v21, 7, v21')
    a('v_and_b32 v22, 15, v20'); a('v_lshl_add_u32 v21, v22, 2, v21')
    a('v_add_u32 %s, %d, v21' % (V(vQw), L_Q))
    a('v_and_b32 v22, 1, v20')
    a('v_and_b32 v21, 12, v20'); a('v_lshlrev_b32 v21, 5, v21')
    a('v_lshl_add_u32 v21, v22, 6, v21')
    a('v_and_b32 v22, 48, v20'); a('v_add_u32 %s, v21, v22' % V(vQr))
    a('s_mov_b32 %s, 0x%x' % (S(sC), QSCALE))
    a('s_mov_b32 %s, 0x%x' % (S(sSpin), SPIN))
    a('s_lshl_b32 %s, %s, 6' % (S(sTmp), S(sH)))
    for r in range(3): a('s_add_u32 %s, %s, 0x%x' % (S(sP1w + r), S(sTmp), WS_P1 + 4096 * r))
    a('s_lshl_b32 %s, %s, 7' % (S(sTmp), S(sH)))
    a('s_add_u32 %s, %s, 0x%x' % (S(sFPB), S(sTmp), FLAG(FL_PB)))
    a('s_add_u32 %s, %s, 0x%x' % (S(sFCH), S(sTmp), FLAG(FL_CH)))
    a('s_mul_i32 %s, %s, %d' % (S(sTmp), S(sH), P1_STRIDE))
    a('s_add_u32 %s, %s, 0x%x' % (S(sP1h), S(sTmp), WS_P1 + 4 * 2048))
    a('s_lshl_b32 %s, s4, 11' % S(sTm2))
    a('s_add_u32 %s, %s, %s' % (S(sTmp), S(sTmp), S(sTm2)))
    a('s_add_u32 %s, %s, 0x%x' % (S(sP1r), S(sTmp), WS_P1))
    a('s_lshl_b32 %s, s4, 11' % S(sM2b))
    a('s_add_u32 %s, %s, 0x%x' % (S(sM2a), S(sM2b), WS_M2 + M2SZ))
    a('s_mov_b32 %s, 0x%x' % (S(sM2c), WS_M2 + M2SZ + 8192))
    a('s_lshr_b32 %s, s4, 1' % S(sXq)); a('s_lshl_b32 %s, %s, 11' % (S(sXq), S(sXq)))
    a('s_and_b32 %s, s4, 1' % S(sTmp)); a('s_lshl_b32 %s, %s, 3' % (S(sTmp), S(sTmp)))
    a('s_add_u32 %s, %s, %s' % (S(sXq), S(sXq), S(sTmp)))
    a('s_lshl_b32 %s, %s, 5' % (S(sTmp), S(sH)))
    a('s_add_u32 %s, %s, 0x%x' % (S(sM2wh), S(sTmp), WS_M2 + M2SZ + 8192))
    a('s_add_u32 %s, %s, 0x%x' % (S(sM2xh), S(sTmp), WS_M2 + 8192))
    a('s_lshr_b32 %s, %s, 3' % (S(sTmp), S(sH))); a('s_lshl_b32 %s, %s, 9' % (S(sTmp), S(sTmp)))
    a('s_and_b32 %s, %s, 1' % (S(sTm2), S(sH))); a('s_lshl_b32 %s, %s, 8' % (S(sTm2), S(sTm2)))
    a('s_add_u32 %s, %s, %s' % (S(sTmp), S(sTmp), S(sTm2)))
    a('s_and_b32 %s, %s, 6' % (S(sTm2), S(sH))); a('s_lshl_b32 %s, %s, 5' % (S(sTm2), S(sTm2)))
    a('s_add_u32 %s, %s, %s' % (S(sTmp), S(sTmp), S(sTm2)))
    a('s_lshl_b32 %s, s4, 11' % S(sTm2))
    a('s_add_u32 %s, %s, %s' % (S(sTmp), S(sTmp), S(sTm2)))
    a('s_add_u32 %s, %s, 0x%x' % (S(sM2w), S(sTmp), WS_M2 + M2SZ))
    a('s_add_u32 %s, %s, 0x%x' % (S(sM2x), S(sTmp), WS_M2))
    a('s_lshl_b32 %s, %s, 14' % (S(sTmp), S(sH)))
    a('s_add_u32 %s, %s, 0x%x' % (S(sKV), S(sTmp), WS_KVB))
    a('s_add_u32 %s, %s, %s' % (S(sKXo), S(sKV), S(sTm2)))
    a('s_add_u32 %s, %s, 8192' % (S(sVXo), S(sKXo)))
    a('s_lshl_b32 %s, %s, 12' % (S(sTmp), S(sH)))
    a('s_add_u32 %s, %s, 0x%x' % (S(sKVM), S(sTmp), WS_KVM - 0x20000))
    a('s_mov_b32 %s, 0' % S(sStep))
    a('s_mov_b32 %s, 0' % S(sTag))

def h_addr(d, t):
    x = V(vL16)
    return ['v_bfe_u32 %s, %s, 8, 1' % (V(d), x), 'v_bfe_u32 %s, %s, 9, 1' % (V(t), x),
            'v_lshl_or_b32 %s, %s, 1, %s' % (V(d), V(d), V(t)), 'v_bfe_u32 %s, %s, 5, 1' % (V(t), x),
            'v_lshl_or_b32 %s, %s, 1, %s' % (V(d), V(d), V(t)), 'v_and_b32 %s, 0xd0, %s' % (V(t), x),
            'v_lshlrev_b32 %s, 24, %s' % (V(t), V(t)), 'v_lshl_or_b32 %s, %s, 2, %s' % (V(d), V(d), V(t))]
def m2_addr(d, t):
    x = V(vL16)
    return ['v_bfe_u32 %s, %s, 8, 2' % (V(d), x), 'v_bfe_u32 %s, %s, 2, 4' % (V(t), x),
            'v_lshl_or_b32 %s, %s, 4, %s' % (V(d), V(d), V(t)), 'v_and_b32 %s, 0xc0, %s' % (V(t), x),
            'v_lshl_or_b32 %s, %s, 24, %s' % (V(d), V(t), V(d))]
def p1w_addr(d, t):
    return ['v_bfe_u32 %s, %s, 7, 5' % (V(d), V(vT16)), 'v_mul_u32_u24 %s, %d, %s' % (V(d), P1_STRIDE, V(d)),
            'v_bfe_u32 %s, %s, 4, 3' % (V(t), V(vL16)), 'v_lshl_add_u32 %s, %s, 3, %s' % (V(d), V(t), V(d))]

def init_handoff(a):
    for i in range(4): a('v_mov_b32 %s, 0' % V(W0 + i))
    a('v_mov_b32 %s, -1' % V(W0 + 7))
    a(h_addr(W0 + 4, W0 + 5)); a(m2_addr(W0 + 6, W0 + 5))
    for s_ in (sP1r, sP1h):
        for m in range(2):
            a('buffer_store_dwordx4 %s, %s, %s, %s offen offset:%d sc1' % (V(W0, 4), V(vL16), WS, S(s_), 1024 * m))
    for s_ in (sM2w, sM2x):
        a('buffer_store_dword %s, %s, %s, %s offen sc1' % (V(W0 + 7), V(W0 + 6), WS, S(s_)))
    for s_ in (sM2wh, sM2xh):
        a('buffer_store_dword %s, %s, %s, %s offen sc1' % (V(W0 + 7), V(W0 + 4), WS, S(s_)))

def load_weights(a, wflags, arrive, lead, mid):
    vA, vB, vR, vWb, T, vC = 12, 14, 16, 60, 40, 56
    a('v_and_b32 v30, 63, v0')
    a('v_bfe_u32 v31, v30, 1, 2'); a('v_lshrrev_b32 v32, 5, v30'); a('v_xor_b32 v31, v31, v32')
    a('v_lshlrev_b32 v31, 5, v31'); a('v_and_b32 v32, 1, v30'); a('v_lshl_add_u32 v31, v32, 4, v31')
    a('v_xor_b32 v33, 64, v31')
    a('v_lshrrev_b32 v32, 3, v30')
    a('s_lshl_b32 %s, s4, 4' % S(sTmp))
    a('v_and_b32 v34, 3, v32'); a('v_lshrrev_b32 v35, 2, v32'); a('v_lshl_add_u32 v34, v34, 1, v35')
    a('v_add_u32 v34, %s, v34' % S(sTmp))
    a('v_lshl_add_u32 %s, v34, 13, v31' % V(vA))
    a('v_add_u32 v34, 8, v34')
    a('v_lshl_add_u32 %s, v34, 13, v33' % V(vA + 1))
    a('v_and_b32 v34, 1, v32'); a('v_lshlrev_b32 v34, 6, v34'); a('v_and_b32 v35, 6, v32')
    a('s_lshl_b32 %s, s4, 3' % S(sTmp))
    a('v_add3_u32 v34, v34, v35, %s' % S(sTmp))
    a('v_lshl_add_u32 %s, v34, 13, v31' % V(vC))
    a('v_mul_u32_u24 v35, 1152, v34'); a('v_add_u32 %s, v35, v31' % V(vB))
    a('v_add_u32 v34, 1, v34')
    a('v_lshl_add_u32 %s, v34, 13, v33' % V(vC + 1))
    a('v_mul_u32_u24 v35, 1152, v34'); a('v_add_u32 %s, v35, v33' % V(vB + 1))
    a('v_bfe_u32 v31, v30, 4, 1'); a('v_bfe_u32 v32, v30, 3, 1')
    a('v_lshl_add_u32 v33, v32, 1, v31'); a('v_xor_b32 v33, s4, v33'); a('v_lshlrev_b32 v33, 5, v33')
    a('v_lshl_add_u32 v33, v31, 9, v33'); a('v_lshl_add_u32 v33, v32, 10, v33')
    a('v_bfe_u32 v31, v30, 2, 1'); a('v_lshl_add_u32 v33, v31, 7, v33')
    a('v_lshrrev_b32 v31, 5, v30'); a('v_lshl_add_u32 v33, v31, 11, v33')
    a('v_and_b32 v31, 3, v30'); a('v_lshl_add_u32 %s, v31, 3, v33' % V(vR))
    a('v_add_u32 %s, 0x10000, %s' % (V(vR + 1), V(vR))); a('v_add_u32 %s, 0x20000, %s' % (V(vR + 2), V(vR)))
    a('v_lshlrev_b32 %s, 4, v0' % V(vWb))
    a('v_add_u32 %s, 0x10000, %s' % (V(vWb + 1), V(vWb))); a('v_add_u32 %s, 0x20000, %s' % (V(vWb + 2), V(vWb)))
    sA, sB, sM = 70, 71, 72
    a('s_lshl_b32 %s, %s, 8' % (S(sA), S(sH)))
    a('s_mul_i32 %s, %s, 147456' % (S(sB), S(sH)))
    a('s_lshl_b32 %s, s4, 11' % S(sM))
    vTx, vTn, vTo, vTd, sGA, sGB = 19, 58, 59, 63, 76, 80
    a('s_lshl_b32 %s, s4, 4' % S(sTmp)); a('v_add_u32 v31, %s, v30' % S(sTmp))
    a('s_lshr_b32 %s, s4, 1' % S(sTmp)); a('s_lshl_b32 %s, %s, 5' % (S(sTmp), S(sTmp))); a('v_add_u32 v32, %s, v31' % S(sTmp))
    a('v_lshrrev_b32 v33, 4, v30'); a('v_lshlrev_b32 v33, 28, v33')
    a('v_lshl_or_b32 %s, v31, 13, v33' % V(vTn)); a('v_lshl_or_b32 %s, v32, 13, v33' % V(vTx))
    a('v_mul_u32_u24 v32, 1152, v32'); a('v_or_b32 %s, v32, v33' % V(vTo))
    def touch(n):
        m, t, tau = seq[n]
        if m == 'o':
            a('s_add_u32 %s, %s, %d' % (S(sTmp), S(sGB), 32 * t * 1152 + 128 * tau))
            a('buffer_load_dword %s, %s, s[24:27], %s offen' % (V(vTd), V(vTo), S(sTmp)))
        else:
            row = 512 if t == 8 else 128 * (t // 2) + 32 * (t % 2)
            a('s_add_u32 %s, %s, %d' % (S(sTmp), S(sGA), row * 8192 + 128 * tau))
            a('buffer_load_dword %s, %s, %s, %s offen' % (V(vTd), V(vTn if t == 8 else vTx), S(8 + 4 * 'qkv'.index(m), 4), S(sTmp)))
    def help_others(first):
        for d in range(1, 4):
            L = a.lab('hlp')
            a('s_add_u32 %s, %s, %d' % (S(sTm2), S(sH), d)); a('s_and_b32 %s, %s, 31' % (S(sTm2), S(sTm2)))
            a('s_bitcmp1_b32 s77, %s' % S(sTm2)); a('s_cbranch_scc1 ' + L)
            a('s_lshl_b32 %s, %s, 8' % (S(sGA), S(sTm2))); a('s_mul_i32 %s, %s, 147456' % (S(sGB), S(sTm2)))
            for n in range(first + d - 1, 72, 3): touch(n)
            a(L + ':')
    seq = list(reg_frags)
    n0 = len(seq)
    seq += [lds_frags[n % 17] for n in range(n0, n0 + 17)]
    D = lead[0]
    q = Seq(a, vm=['init'])
    def dma(n):
        m, t, tau = seq[n]
        for zz in range(2):
            a('s_add_u32 m0, %s, %d' % (S(sM), L_F + 8192 * (n % 17) + 1024 * zz))
            if m == 'o':
                if zz == 0: a('s_add_u32 %s, %s, %d' % (S(sTmp), S(sB), 32 * t * 1152 + 128 * tau))
                else: a('s_nop 0')
                q('buffer_load_dwordx4 %s, s[24:27], %s offen %s lds' % (V(vB + zz), S(sTmp), wflags), n)
            else:
                row = 512 if t == 8 else 128 * (t // 2) + 32 * (t % 2)
                if zz == 0: a('s_add_u32 %s, %s, %d' % (S(sTmp), S(sA), row * 8192 + 128 * tau))
                else: a('s_nop 0')
                q('buffer_load_dwordx4 %s, %s, %s offen %s lds' % (V((vA if t == 8 else vC) + zz), S(8 + 4 * 'qkv'.index(m), 4), S(sTmp), wflags), n)
    def finish(n):
        f = seq[n]; t = T + 8 * (n % 2)
        if f in lds_frags:
            b, o = fbase(n % 17)
            for hf in range(2):
                a('ds_write_b128 %s, %s offset:%d' % (V(vWb + b // 65536), V(t + 4 * hf, 4), o + 4096 * hf))
    for n in range(D): dma(n)
    for n in range(72):
        q.wait(n)
        a('s_waitcnt lgkmcnt(0)')
        a('s_barrier')
        if n == 0: arrive(a, q)
        if n + D < 72: dma(n + D)
        mid(n, q)
        if n == 72 - D and lead[1]: help_others(lead[1])
        if n: finish(n - 1)
        f = seq[n]
        dst = regpos.get(f, T + 8 * (n % 2))
        b, o = fbase(n % 17)
        for y in range(4):
            a('ds_read_b64_tr_b16 %s, %s offset:%d' % (U(dst + 2 * y, 2), V(vR + b // 65536), o + 4096 * (y // 2) + 256 * (y % 2)))
    a('s_waitcnt lgkmcnt(0)')
    a('s_barrier')
    finish(71)

def arrive(a, q):
    L = a.lab('arr')
    a('s_getreg_b32 s73, hwreg(HW_REG_XCC_ID, 0, 3)')
    a('s_lshl_b32 s73, s73, 3')
    a('s_lshl_b64 s[74:75], 1, s73')
    a('v_mov_b32 v64, s74'); a('v_mov_b32 v65, s75')
    a('v_mov_b32 v66, 0x7ff00000'); a('v_cmp_eq_u32 vcc, 0, v0'); a('s_nop 1')
    a('v_cndmask_b32 v66, v66, %s, vcc' % V(vZero))
    q('buffer_atomic_add_x2 v[64:65], v66, s[28:31], 0 offen offset:8', 'arr')

def wait_flag(a, soff, need, lab):
    L = a.lab(lab); Lok = a.lab(lab + 'ok')
    a(L + ':')
    a('buffer_load_dword %s, %s, %s, %s offen sc1' % (V(vDum), V(vZero), WS, soff))
    a('s_waitcnt vmcnt(0)')
    a('v_cmp_le_u32 vcc, %s, %s' % (need, V(vDum)))
    a('s_cbranch_vccnz ' + Lok)
    spin_fail(a, L)
    a(Lok + ':')

def frag_read(q, f, dst, name):
    b, o = fbase(f)
    assert b == q.base, (f, b, q.base)
    return ['ds_read_b128 %s, %s offset:%d' % (V(dst + 4 * hf, 4), V(vT16), o + 4096 * hf) for hf in range(2)]

def early(a, opt):
    M = 20
    def dbg_load(q, name): q('buffer_load_dwordx4 v[68:71], v65, s[28:31], 0 offen sc1', name)
    def mid(n, q):
        if n == opt.get('nm', 4):
            a('v_lshrrev_b32 v68, 4, %s' % V(vL16))
            a('v_bfe_u32 v69, v68, 2, 2'); a('v_and_b32 v70, 1, v68'); a('v_lshl_add_u32 v69, v69, 1, v70')
            a('v_mul_u32_u24 v69, 1152, v69')
            a('v_and_b32 v70, 48, v68'); a('v_and_b32 v71, 2, v68'); a('v_lshl_add_u32 v71, v71, 2, v70')
            a('v_lshl_add_u32 v71, v71, 1, v69'); a('v_add_u32 v69, v70, v69')
            a('s_lshr_b32 %s, s4, 1' % S(sTmp)); a('s_lshl_b32 %s, %s, 8' % (S(sTmp), S(sTmp)))
            a('s_and_b32 %s, s4, 1' % S(sTm2)); a('s_lshl_b32 %s, %s, 6' % (S(sTm2), S(sTm2)))
            a('s_add_u32 %s, %s, %s' % (S(sTmp), S(sTmp), S(sTm2)))
            for m in range(2):
                for tl in range(2):
                    q('buffer_load_dwordx4 %s, v69, s[32:35], %s offen offset:%d' % (V(M + 8 * m + 4 * tl, 4), S(sTmp), 512 * m + 128 * tl), 'm0')
            q('buffer_load_dwordx4 %s, v71, s[32:35], 0 offen offset:1024' % V(M + 16, 4), 'm0')
        if n == opt.get('nm', 4) + 10:
            q.wait('m0')
            a('v_mov_b32 v68, 0x05040100'); a('v_mov_b32 v69, 0x07060302')
            a('v_cndmask_b32 v70, v68, v69, %s' % S(sHf, 2))
            for m in range(2):
                for i in range(4):
                    a('v_perm_b32 %s, %s, %s, v70' % (V(M + 8 * m + i), V(M + 8 * m + 4 + i), V(M + 8 * m + i)))
            for i in range(4):
                a('v_perm_b32 %s, %s, %s, v%d' % (V(M + 4 + i), V(M + 16 + 2 * (i % 2) + 1), V(M + 16 + 2 * (i % 2)), 68 + i // 2))
            a('ds_write_b128 v60, %s' % V(M, 4))
            a('ds_write_b128 v60, %s offset:4096' % V(M + 8, 4))
            a('ds_write_b128 %s, %s offset:8192' % (V(vL16), V(M + 4, 4)))
        if n == 30:
            a('v_min_u32 v65, 16, %s' % V(vL16)); a('v_lshlrev_b32 v65, 24, v65')
            dbg_load(q, 'd0')
        if n == 40:
            L = a.lab('hs'); Lc = a.lab('hsc'); Lok = a.lab('hsok')
            q.wait('d0')
            a('s_branch ' + Lc)
            a(L + ':')
            dbg_load(Seq(a), None); a('s_waitcnt vmcnt(0)')
            a(Lc + ':')
            a('v_sad_u8 v69, v70, 0, 0'); a('v_sad_u8 v69, v71, 0, v69'); a('v_lshrrev_b32 v69, 5, v69'); a('v_min_u32 v68, v68, v69')
            a('v_cmp_ne_u32 vcc, 0, v68')
            a('s_cbranch_vccnz ' + Lok)
            spin_fail(a, L)
            a(Lok + ':')
            a('v_readfirstlane_b32 s74, v70'); a('v_readfirstlane_b32 s75, v71')
            for s_ in (sP1r, sP1h):
                for m in range(2):
                    q('buffer_load_dwordx4 %s, %s, %s, %s offen offset:%d sc1' % (V(M, 4), V(vL16), WS, S(s_), 1024 * m), 'x')
            a('v_lshlrev_b32 v67, 6, v0')
        if n == opt.get('mark', 48):
            a('s_lshl_b32 %s, %s, 2' % (S(sTmp), S(sH))); a('s_add_u32 %s, %s, 0x%x' % (S(sTmp), S(sTmp), FLAG(FL_LD)))
            a('v_mov_b32 v64, 1')
            q('buffer_store_dword v64, v66, %s, %s offen' % (WS, S(sTmp)), 'g')
        if n == opt.get('hm', 55):
            a('v_lshrrev_b32 v68, 2, %s' % V(vL16)); a('s_mov_b32 %s, 0x%x' % (S(sTmp), FLAG(FL_LD)))
            q('buffer_load_dword v68, v68, %s, %s offen sc1' % (WS, S(sTmp)), 'd1')
        if n == 63: q('buffer_load_dword %s, v65, %s, %s offen sc1' % (V(vDum), WS, S(sFPB)), 'pb')
        if n == 64: q.wait('d1'); a('v_cmp_ne_u32 vcc, 0, v68'); a('s_mov_b32 s77, vcc_lo')
        if n == opt.get('gate', 52):
            L = a.lab('gt')
            a('s_and_b32 %s, %s, 29' % (S(sTmp), S(sH))); a('s_cbranch_scc1 ' + L)
            a('buffer_store_dword v64, v66, s[28:31], 0 offen offset:128 sc1')
            a(L + ':')
    return mid

def start(a, st=None):
    a('v_lshlrev_b32 %s, 4, v0' % V(vT16))
    Lok = a.lab('pbk')
    a('s_waitcnt vmcnt(0)')
    a('v_cmp_le_u32 vcc, 2, %s' % V(vDum))
    a('s_cbranch_vccnz ' + Lok)
    wait_flag(a, S(sFPB), '2', 'pb0')
    a(Lok + ':')
    if st: st()
    a('s_lshl_b32 %s, s4, 11' % S(sTmp))
    a('s_add_u32 m0, %s, %d' % (S(sTmp), L_KX))
    a('s_add_u32 %s, %s, 0x80000' % (S(sPF), S(sKV)))
    for tau in range(2):
        a('buffer_load_dwordx4 %s, %s, %s offen offset:%d sc1 lds' % (V(vL16), WS, S(sKXo), 1024 * tau))
    a('buffer_load_dword %s, v67, %s, %s offen sc1' % (V(VX), WS, S(sKV)))
    a('buffer_load_dword %s, v67, %s, %s offen sc1' % (V(VX), WS, S(sPF)))
    for i in range(2): a('v_mov_b64 %s, 0' % V(W3 + 4 + 2 * i, 2))
    a('s_add_u32 %s, %s, 0x80000' % (S(sPF), S(sPF)))
    for r in range(4):
        a('s_mov_b32 %s, 0x%x' % (S(sSel + 2 * r), 0x000f000f << (4 * r))); a('s_mov_b32 %s, 0x%x' % (S(sSel + 2 * r + 1), 0x000f000f << (4 * r)))
    a('s_mov_b32 %s, 0xaaaaaaaa' % S(sOdd)); a('s_mov_b32 %s, 0xaaaaaaaa' % S(sOdd + 1))
    a('s_mov_b32 %s, 0x3f803f80' % S(sOne)); a('s_mov_b32 %s, 0x3f803f80' % S(sOne + 1))
    a('s_mov_b32 %s, -1' % S(sLo)); a('s_mov_b32 %s, 0' % S(sLo + 1))
    a('s_lshl_b32 %s, s4, 12' % S(sTmp)); a('s_add_u32 %s, %s, %s' % (S(sPF), S(sPF), S(sTmp)))
    a('v_mov_b32 %s, 0' % V(vVa)); a('v_mov_b32 %s, 0' % V(vVb))
    q = Seq(a); q.base = 0
    a('s_waitcnt lgkmcnt(0)')
    a(frag_read(q, 0, W0, None)); a(frag_read(q, 1, W0 + 8, None))
    for i in range(8): a('v_mov_b64 %s, 0' % V(W1 + 2 * i, 2))
    a(step_addrs())
    for s_ in TOGGLE:
        a('s_xor_b32 %s, %s, 0x%x' % (S(s_), S(s_), P1_BUF))
    a('s_lshr_b64 s[74:75], s[74:75], s73')
    a('s_and_b32 s74, s74, 0xff')
    a('s_cmp_eq_u32 s74, 32')
    a('s_waitcnt vmcnt(2)')

def step_addrs():
    return ['v_lshl_add_u32 %s, %s, 3, %s' % (V(vDum), V(vL16), S(sPF)), 'v_mov_b32 %s, %s' % (V(vPm), S(sFPB)),
            'v_cndmask_b32 %s, %s, %s, %s' % (V(vDum), V(vPm), V(vDum), S(sLo, 2)),
            'v_min_u32 %s, 16, %s' % (V(vPm), V(vT16)), 'v_lshlrev_b32 %s, 24, %s' % (V(vPm), V(vPm)),
            's_max_u32 %s, %s, 1' % (S(sTmp), S(sStep)), 'v_add_u32 %s, -1, %s' % (V(vVa), S(sTmp))]

def kvm_stores(q, a, tmp, addr):
    return [lambda: a('v_add_u32 %s, %s, %s' % (V(addr), S(sXq), V(vXr))),
            lambda: q('ds_read_b64 %s, %s offset:%d' % (V(tmp, 2), V(addr), L_KM), 'kmr'),
            lambda: a('v_mov_b32 %s, %s' % (V(tmp + 2), V(vVa))),
            lambda: a('v_mov_b32 %s, %s' % (V(tmp + 3), V(vVb))),
            lambda: (q.wait('kmr'), q('buffer_store_dwordx4 %s, %s, %s, %s offen sc1' % (V(tmp, 4), V(vT16), WS, S(sKVM)), 'kvs'))]

def step_loop(a, sf, Lexit, opt, stamp=None):
    def add(d, x, y): return 'v_add_f32 %s, %s, %s' % (V(d), V(x), V(y))
    def add2(d, x): return [add(d, x, x + 2), add(d + 1, x + 1, x + 3)]
    def cvt(d, x, y): return 'v_cvt_pk_bf16_f32 %s, %s, %s' % (V(d), V(x), V(y))
    def cnd(d, x, y, m=sHf): return 'v_cndmask_b32 %s, %s, %s, %s' % (V(d), x, y, S(m, 2))
    def mov2(d, x): return 'v_mov_b64 %s, %s' % (V(d, 2), x)
    def sadd(d, x):
        if opt.get('nopf') and d in (sVXo, sKXo): x = 0
        return 's_add_u32 %s, %s, 0x%x' % (S(d), S(d), x)
    def sxor(d, x=P1_BUF): return 's_xor_b32 %s, %s, 0x%x' % (S(d), S(d), x)
    def delay(n):
        while n > 0: a('s_nop %d' % (min(n, 16) - 1)); n -= 16
    st = stamp or (lambda i: None)
    Lstep = a.lab('step'); Lfail = a.lab('fail')
    Sx = [W0, W0 + 4]; Sm = W0 + 8; R0 = W0 + 12; R1 = W2 + 8
    kxr = {(0, 0): Sx[0], (0, 1): Sx[1], (1, 0): R0, (1, 1): R0, (2, 0): W1, (2, 1): W1 + 4, (3, 0): R0, (3, 1): R1}
    qa, qb, ka, kb = W1, W1 + 4, W1 + 8, W1 + 12
    va, vb = W3, W3 + 4
    KQ, YH, FV = W3, W3 + 4, vVa
    tails = []
    def mem(u): return W2 + 4 * (u % 3 if u < 12 else u % 2)
    def mu3(d, x, y, z): return 'v_max3_u32 %s, %s, %s, %s' % (V(d), V(x), V(y), V(z))
    def ldi(x, so, n=2):
        return ['buffer_load_dwordx4 %s, %s, %s, %s offen offset:%d sc1' % (V(x + 4 * m, 4), V(vL16), WS, S(so), 1024 * m) for m in range(n)]
    def chk(quads, C, x=''):
        regs = [r + i for r in quads for i in range(4)]
        o = [mu3(C, *regs[:3])]; regs = regs[3:]
        while len(regs) > 1: o.append(mu3(C, C, regs[0], regs[1])); regs = regs[2:]
        o.append('v_max_u32 %s, %s, %s' % (V(C), V(C), V(regs[0])))
        return o + ['v_cmp%s_eq_u32 vcc, -1, %s' % (x, V(C))]
    def retry(L, loads, check, cnt, first=None):
        L1 = a.lab('rt'); Le = a.lab('rte')
        a(L + ':')
        a('s_mov_b64 exec, vcc')
        a(L1 + ':')
        for u in range(3):
            a(loads)
            if stamp: a('s_add_u32 s%d, s%d, %d' % (cnt[0], cnt[0], cnt[1]))
            a('s_waitcnt vmcnt(%d)' % (len(loads) * (opt.get('dep', 2) - 1)))
            a(check)
            a('s_cbranch_execz ' + Le)
        a('s_sub_u32 %s, %s, 1' % (S(sSpin), S(sSpin))); a('s_cbranch_scc0 ' + L1)
        a('s_endpgm')
        a(Le + ':')
        a('s_mov_b64 exec, -1')
    LstepB = a.lab('stepB'); Ljoin = a.lab('join')
    PF = 'buffer_load_dword %s, %s, %s, 0 offen sc1' % (V(vDum), V(vDum), WS)
    FS = 'buffer_store_dword %s, %s, %s, %s offen sc1' % (V(FV), V(vPm), WS, S(sFCH))
    def vs(u, tau, slot): a(smf(va + 4 * tau, slot, regpos[('v', KORD[u], tau)]))
    flat = [(u, x) for u in range(7) for x in (('qa', 'qb', 'ka', 'va', 'vb', 'kb') if u in (2, 3, 4) else ('qa', 'qb', 'ka', 'kb'))]
    GB = opt.get('gb', 22); GJ = opt.get('gj', 19)
    def mk(q):
        ex = {}
        def mread(u): q('ds_read_b128 %s, %s offset:%d' % (V(mem(u), 4), V(vL16), L_MEM + 1024 * KORD[u]), ('m', u))
        def at(g, f, name='x'):
            l = ex.setdefault(g, [])
            fn = f if callable(f) else (lambda: q(f, name))
            if not callable(f) and f.startswith('v_'): l.append(fn)
            else: l.insert(0, fn)
        def run(n0, n1):
            for n in range(n0, n1):
                u, x = flat[n]; t = KORD[u]
                if x == 'kb': a(smf(kb, mem(u), W0 + 8 * (u % 2)))
                else: a(smf({'qa': qa, 'qb': qb, 'ka': ka, 'va': va, 'vb': vb}[x], mem(u), regpos[(x[0], t, int(x[1] == 'b'))]))
                if u and x in ('qa', 'qb'): q(frag_read(q, u + 1, W0 + 8 * ((u + 1) % 2), None)[x == 'qb'], ('kb', u + 1))
                if x == 'ka' and u in (1, 2, 5, 6): mread(u + 2)
                if n + 1 < len(flat) and flat[n + 1][1] == 'kb':
                    if u == 4: q.wait(('kb', u))
                    else: q.wait(('kb', u), ('m', u + 1))
                    if fbase(u + 2)[0] != q.base:
                        a('v_add_u32 %s, 0x10000, %s' % (V(vT16), V(vT16))); q.base += 65536
                for f in ex.pop(n, []): f()
                if (u, x) == (4, 'kb'): q.wait(('m', 5))
            assert not ex, ex
        return mread, at, run
    def head(late):
        a('.p2align 3')
        a((LstepB if late else Lstep) + ':')
        q = Seq(a, vm=['pre']); q.base = 0
        mread, at, run = mk(q)
        a('s_mov_b64 exec, -1')
        if late: q(ldi(VX, sM2a), 'y')
        q.drain(vm=False)
        a('s_barrier')
        st('B0')
        mread(0); mread(1); mread(2)
        kg = opt.get('kg%d' % late, -1)
        if kg < 0: kvm_stores(q, a, KQ, None)[4]()
        else: at(kg, kvm_stores(q, a, KQ, None)[4])
        if not late: at(opt.get('fg', 1), FS)
        at(4, mov2(W3, '0')); at(5, mov2(W3 + 2, '0'))
        if late:
            g = opt.get('gc', 11)
            at(3, lambda: q.wait('pre')); at(7, mov2(YH, '0')); at(8, mov2(YH + 2, '0'))
            wr = ['ds_write_b128 %s, %s offset:%d' % (V(vVb), V(VX + 4 * m, 4), L_MEM + 1024 * m) for m in range(2)]
            if opt.get('nowr'): wr = ['s_nop 0'] * 2
            at(g, lambda: (q.wait('y'), q(wr[0], 'yw'))); at(g + opt.get('gw', 2), wr[1], 'yw')
            for i, x in zip([int(c, 36) for c in opt.get('cg', 'gdefgh')[1:]], chk([VX, VX + 4], vVa)): at(i, x)
            Lr = a.lab('yr'); Lb = a.lab('yb')
            def tail():
                retry(Lr, ldi(VX, sM2a), chk([VX, VX + 4], vVa, 'x'), (17, 0x100))
                a(wr); a('s_waitcnt lgkmcnt(0)'); a('s_branch ' + Lb)
            tails.append(tail)
        q.wait(('m', 0))
        st('m0')
        if late: at(opt.get('gv', 19), lambda: (a('s_cbranch_vccnz ' + Lr), a(Lb + ':')))
        run(0, GJ + 1)
        q.wait('yw')
        return q
    q = head(0)
    lg0 = list(q.lg)
    a('s_branch ' + Ljoin)
    q = head(1)
    assert q.lg == lg0[len(lg0) - len(q.lg):], (q.lg, lg0)
    q.lg = lg0; q.vm = []
    a(Ljoin + ':')
    mread, at, run = mk(q)
    def kxread(kap, tau): q('ds_read_b128 %s, %s offset:%d' % (V(kxr[kap, tau], 4), V(vL16), L_KX + 2048 * kap + 1024 * tau), ('kx', kap, tau))
    at(GB, lambda: (a('s_barrier'), mread(5), st('Bc')))
    at(GB + 1, lambda: mread(6))
    at(opt.get('gx0', 20), ldi(VX, sVXo)[0], 'vx'); at(opt.get('gx1', 21), ldi(VX, sVXo)[1], 'vx')
    at(opt.get('gpf', 25), PF)
    run(GJ + 1, len(flat))
    def pk2(x, y): return [cvt(x, x, y), cvt(x + 1, x + 1, y + 1)]
    def w2(ad, x, o=0): return 'ds_write2_b32 %s, %s, %s offset0:%d offset1:%d' % (V(ad), V(x), V(x + 1), o, o + 16)
    SA, SB, SC_ = W2, W2 + 4, W2 + 8
    def rread(t, slot): q('ds_read_b128 %s, %s offset:%d' % (V(slot, 4), V(vL16), L_MEM + 1024 * KORD[t]), ('r', t))
    kxr.update({(1, 1): SA, (2, 0): R0, (2, 1): SC_, (3, 0): W1, (3, 1): SA})
    rd = frag_read(q, 8, W0, None)
    st('k7')
    a(smf(qa, mem(7), regpos[('q', KORD[7], 0)])); q(rd[0], ('kb', 8))
    a(smf(qb, mem(7), regpos[('q', KORD[7], 1)])); q(rd[1], ('kb', 8)); q.wait(('m', 8))
    a(smf(qa, mem(8), regpos[('q', KORD[8], 0)]))
    a(smf(qb, mem(8), regpos[('q', KORD[8], 1)]))
    pq = pk2(qa, qb)
    vs(6, 0, SA); a('s_nop 0'); a(add(qa, qa, qa + 2))
    vs(6, 1, SA); rread(0, SA); a(add(qa + 1, qa + 1, qa + 3))
    a(smf(ka, mem(7), regpos[('k', KORD[7], 0)])); a(add2(qb, qb))
    a(smf(kb, mem(7), W0 + 8)); q.wait(('kb', 8)); a(pq[0])
    a(smf(ka, mem(8), regpos[('k', KORD[8], 0)])); kxread(1, 0); a(pq[1])
    a(smf(kb, mem(8), W0)); q(w2(vQw, qa), 'w')
    st('p1e')
    wb = [W1, W1 + 8, VX]
    def wo_read(p, hf):
        if fbase(9 + p)[0] != q.base:
            a('v_add_u32 %s, 0x10000, %s' % (V(vT16), V(vT16))); q.base += 65536
        q(frag_read(q, 9 + p, wb[p % 3], None)[hf], ('wo', p))
    vs(7, 0, SB); kxread(0, 0); a(add2(ka, ka))
    vs(7, 1, SB); q.wait(('r', 0))
    a(add2(kb, kb)); a(pk2(ka, kb))
    st('kw')
    if opt.get('kwf', 0):
        vs(0, 0, SA); q(w2(vXw, ka), 'w')
        vs(0, 1, SA); rread(1, SB); a(mov2(Sm, '0'))
        vs(8, 0, SC_); rread(5, SA); a(mov2(Sm + 2, '0'))
        vs(8, 1, SC_); kxread(0, 1)
    else:
        q(w2(vXw, ka), 'w')
        vs(0, 0, SA); rread(1, SB); a(mov2(Sm, '0'))
        vs(0, 1, SA); rread(5, SA); a(mov2(Sm + 2, '0'))
        vs(8, 0, SC_); kxread(0, 1)
        vs(8, 1, SC_)
    q.wait('w')
    a('s_barrier')
    st('B1')
    def qread(k): q('ds_read_b128 %s, %s offset:%d' % (V(W1 + 4 * k, 4), V(vQr), L_Q + 512 * k), ('q', k))
    def xrd(base, dst, tp, name): q('ds_read_b128 %s, %s offset:%d' % (V(dst, 4), V(vXr), base + 2048 * tp), name)
    kmr = [SC_, SB]
    def kmread(tp): xrd(L_KM, kmr[tp], tp, ('km', tp))
    qread(0); q.wait(('r', 1))
    vs(1, 0, SB); qread(1); q.wait(('r', 5))
    vs(1, 1, SB); kmread(0); qread(2)
    vs(5, 0, SA); qread(3)
    vs(5, 1, SA); kxread(1, 1)
    def sx(k, tau):
        q.wait(('q', k), ('kx', k, tau))
        a('v_mfma_f32_16x16x32_bf16 %s, %s, %s, %s' % (V(Sx[tau], 4), V(kxr[k, tau], 4), V(W1 + 4 * k, 4), V(Sx[tau], 4) if k else '0'))
    def sm(tp):
        q.wait(('km', tp), ('q', 2 * tp + 1))
        a(smf(Sm, kmr[tp], W1 + 8 * tp))
    T0, T1, T2, T3, ONE = Sm + 2, Sm + 3, Sm + 1, vPm, R0
    oa, ob, LL = W2, W2 + 4, W2 + 8
    def ex2(x): return 'v_exp_f32 %s, %s' % (V(x), V(x))
    def m16(d, b): return 'v_mfma_f32_16x16x16_bf16 %s, %s, %s, 0' % (V(d, 4), V(vPm, 2), V(b, 2))
    def sm32(d, b): return 'v_smfmac_f32_16x16x32_bf16 %s, %s, %s, %s' % (V(d, 4), V(T0, 2), V(b, 4), V(vIdx))
    cn = [cnd(Sx[0] + r, V(Sx[0] + r), V(Sx[1] + r)) for r in range(4)]
    pm = [cnd(Sm + 1, '0', V(Sm)), cnd(Sm, V(Sm), '0'), cvt(vPm, Sm, Sm + 1)]
    SC = 'v_mul_f32 %s, %s, %s' % (V(Sm), S(sC), V(Sm))
    wacc = [W3, W3 + 4, W0, W0 + 4, W0 + 8, W0 + 12, W2 + 8, W3, W0]
    zer = [mov2(x + 2 * i, '0') for x in wacc[:7] for i in range(2)]
    st('s0')
    sx(0, 0); kmread(1)
    sx(0, 1); a(add2(va, va))
    sx(1, 0); kxread(2, 0); a(cvt(vVa, va, va + 1)); a(add(vb, vb, vb + 2))
    sm(0); kxread(2, 1); kxread(3, 0); a(add(vb + 1, vb + 1, vb + 3))
    sx(1, 1); kxread(3, 1); a(cvt(vVb, vb, vb + 1))
    sm(1); wo_read(0, 1)
    sx(2, 0); a(mov2(ONE, S(sOne, 2))); a(mov2(ONE + 2, S(sOne, 2)))
    sx(2, 1); wo_read(1, 0); a(add2(Sm, Sm))
    sx(3, 0); wo_read(0, 0); a(cnd(Sm, V(Sm), V(Sm + 1))); a(SC)
    sx(3, 1)
    st('Se')
    wo_read(1, 1)
    a(ex2(Sm)); a(zer.pop(0)); a(pm); a(zer.pop(0)); a(zer.pop(0))
    a(cn)
    st('max')
    a(m16(LL, ONE)); q.wait('vx'); a(ex2(Sx[0]))
    a(m16(oa, vVa)); a('s_cmp_eq_u32 %s, 63' % S(sStep)); a(ex2(Sx[0] + 1))
    a(m16(ob, vVb)); a(ex2(Sx[0] + 2)); a(ex2(Sx[0] + 3))
    pk = [cvt(T0, Sx[0], Sx[0] + 1), cvt(T1, Sx[0] + 2, Sx[0] + 3)]
    a(pk)
    a(zer.pop(0)); a(zer.pop(0))
    st('pv')
    for d, b in ((LL, ONE), (oa, VX), (ob, VX + 4)):
        a(sm32(d, b))
        if d == ob: a('s_nop 0')
        elif d == oa: a(zer.pop(0))
        else: a(zer.pop(0)); a(zer.pop(0))
    def norm():
        a(add2(LL, LL))
        for i in range(2): a('v_rcp_f32 %s, %s' % (V(LL + i), V(LL + i)))
        a(add2(oa, oa))
        for i in range(2): a('v_mul_f32 %s, %s, %s' % (V(oa + i), V(oa + i), V(LL + i)))
        a(add2(ob, ob))
        for i in range(2): a('v_mul_f32 %s, %s, %s' % (V(ob + i), V(ob + i), V(LL + i)))
        a(pk2(oa, ob))
    OW = w2(vXw, oa, 128)
    norm()
    q(OW, 'ow')
    R = opt.get('rng', 60)
    for i in range(2): a('v_subrev_u32 %s, 0x%x, %s' % (V(LL + i), (127 - R) << 23, V(LL + i)))
    st('ow')
    a('v_max_u32 %s, %s, %s' % (V(LL), V(LL), V(LL + 1)))
    a('v_cmp_lt_u32 vcc, 0x%x, %s' % ((2 * R) << 23, V(LL)))
    a('s_cbranch_scc1 ' + Lexit)
    Lmx = a.lab('mx'); Lmb = a.lab('mxb')
    PW = vPm
    zer = zer[:4] + p1w_addr(PW, LL) + zer[4:]
    wo01 = frag_read(q, 9, wb[0], None) + frag_read(q, 10, wb[1], None)
    def true_max():
        def mx3(d, x, y, z): return 'v_max3_f32 %s, %s, %s, %s' % (V(d), V(x), V(y), V(z))
        a(Lmx + ':')
        if stamp: a('s_add_u32 s17, s17, 0x100')
        a('s_waitcnt lgkmcnt(0)')
        for k in range(4): a('ds_read_b128 %s, %s offset:%d' % (V(W1 + 4 * k, 4), V(vQr), L_Q + 512 * k))
        a(mov2(Sm, '0')); a(mov2(Sm + 2, '0'))
        for k in range(5):
            for tau in range(2):
                if k < 4: a('ds_read_b128 %s, %s offset:%d' % (V(W2 + 4 * tau, 4), V(vL16), L_KX + 2048 * k + 1024 * tau))
                else: a('ds_read_b128 %s, %s offset:%d' % (V(W2 + 4 * tau, 4), V(vXr), L_KM + 2048 * tau))
            a('s_waitcnt lgkmcnt(0)')
            for tau in range(2):
                if k < 4: a('v_mfma_f32_16x16x32_bf16 %s, %s, %s, %s' % (V(Sx[tau], 4), V(W2 + 4 * tau, 4), V(W1 + 4 * k, 4), V(Sx[tau], 4) if k else '0'))
                else: a(smf(Sm, W2 + 4 * tau, W1 + 8 * tau))
        a(wo01)
        a(mov2(ONE, S(sOne, 2))); a(mov2(ONE + 2, S(sOne, 2))); a('s_nop 1')
        a(add2(Sm, Sm))
        for i in range(2): a('v_mul_f32 %s, %s, %s' % (V(Sm + i), S(sC), V(Sm + i)))
        a('v_max_f32 %s, %s, %s' % (V(T0), V(Sm), V(Sm + 1))); a(cnd(Sm, V(Sm), V(Sm + 1)))
        for i in range(3): a(mx3(T0, T0, Sx[0] + 2 * i, Sx[0] + 2 * i + 1))
        a(mx3(T1, T0, Sx[1] + 2, Sx[1] + 3)); a(mx3(T2, T0, Sx[1] + 2, Sx[1] + 3))
        a(cn[:2])
        a('v_permlane16_swap_b32 %s, %s' % (V(T1), V(T2)))
        a('v_max_f32 %s, %s, %s' % (V(T0), V(T1), V(T2)))
        a('v_max_f32 %s, %s, %s' % (V(T3), V(T1), V(T2)))
        a(cn[2:])
        a('v_permlane32_swap_b32 %s, %s' % (V(T0), V(T3)))
        a('v_max_f32 %s, %s, %s' % (V(T0), V(T0), V(T3)))
        vals = [Sm] + [Sx[0] + r for r in range(4)]
        for x in vals: a('v_sub_f32 %s, %s, %s' % (V(x), V(x), V(T0)))
        for x in vals: a(ex2(x))
        a(pm); a(pk)
        a(m16(LL, ONE)); a(m16(oa, vVa)); a(m16(ob, vVb))
        a(sm32(LL, ONE)); a(sm32(oa, VX)); a(sm32(ob, VX + 4)); a('s_nop 0')
        norm()
        a(OW)
        for i in range(8): a(mov2(W0 + 2 * i, '0'))
        a('s_waitcnt lgkmcnt(0)')
        a('s_branch ' + Lmb)
    tails.append(true_max)
    sal = [sadd(sKXo, 0x80000), sxor(sTag, 1), sadd(sVXo, 0x80000), sadd(sKVM, 0x20000),
           's_cmp_lt_u32 %s, 61' % S(sStep), 's_cselect_b32 %s, 0x80000, 0' % S(sTmp), 's_add_u32 %s, %s, %s' % (S(sPF), S(sPF), S(sTmp)),
           's_add_u32 %s, %s, 1' % (S(sStep), S(sStep)), 's_add_u32 %s, %s, 2' % (S(sTm2), S(sStep)), 's_min_u32 %s, %s, 64' % (S(sTm2), S(sTm2))] + [sxor(x) for x in TOGGLE]
    ords = [0, 1]
    kxl = [0, 1]
    def kxd(): q('buffer_load_dwordx4 %s, %s, %s offen offset:%d sc1 lds' % (V(vL16), WS, S(sKXo), 1024 * kxl.pop(0)), 'kxd')
    def warm(pat):
        for c in pat:
            if c == 'v': a(zer.pop(0))
            elif c == 's': a(sal.pop(0))
            elif c == 'w': wo_read(2, 0); wo_read(2, 1)
            elif c == 'r': tp = ords.pop(0); xrd(L_O, W2 + 4 * tp, tp, ('oa', tp))
            elif c == 'x': wo_read(2, 0)
            elif c == 'y': wo_read(2, 1)
            elif c == 'd': kxd()
            elif c == 'k': a('v_mov_b32 %s, 0' % V(vZero))
            elif c == 'b': a('s_cbranch_vccnz ' + Lmx); a(Lmb + ':')
    warm(opt.get('wa', 'vvvvb'))
    q.wait('ow')
    warm(opt.get('wm', 'v'))
    a('s_barrier')
    st('B2')
    warm(opt.get('wb', 'rvrxvysvssvsv'))
    def fin(p):
        x = wacc[p]
        def tag(d): return 'v_and_or_b32 %s, %s, -2, %s' % (V(d), V(d), S(sTag))
        if p == 0:
            return add2(x, x) + [cvt(x + 1, x + 1, x + 1), cvt(x, x, x), tag(x + 1),
                    'buffer_store_dwordx2 %s, %s, %s, %s offen %s' % (V(x, 2), V(PW), WS, S(sP1w + 2), sf)]
        if p % 2: return add2(x, x)
        y = wacc[p - 1]; r = p // 2 - 1
        return add2(x, x) + [cvt(y + 1, y + 1, x + 1), cvt(y, y, x), tag(y + 1),
                'buffer_store_dwordx2 %s, %s, %s, %s offen offset:%d %s' % (V(y, 2), V(PW), WS, S(sP1w + r // 2), 2048 * (r % 2), sf)]
    order = [(0, 0)]
    for p in range(1, 9): order += [(p, 0), (p - 1, 1)]
    order += [(8, 1)]
    F = [fin(p) for p in range(9)]
    rz = {p: [mov2(wacc[p] + 2 * i, '0') for i in range(2)] for p in (7, 8)}
    ws_ = opt.get('ws', 1)
    if ws_ == 0:
        vw = {4: F[0][:2], 5: F[0][2:4], 6: F[0][4:5] + F[1], 7: rz[7], 8: F[2][:2], 9: F[2][2:4], 10: F[2][4:5] + F[3], 11: rz[8],
              12: F[4][:2], 13: F[4][2:5], 14: F[5][:1], 15: F[5][1:], 16: F[6][:2]}
        sw = {7: F[0][5], 11: F[2][5], 14: F[4][5]}
    else:
        vw = {4: F[0][:3], 5: F[0][3:5], 6: F[1], 7: rz[7], 8: F[2][:3], 9: F[2][3:5], 10: F[3], 11: rz[8],
              12: F[4][:3], 13: F[4][3:5], 14: F[5][:1], 15: F[5][1:], 16: F[6][:2]}
        sw = {6: F[0][5], 10: F[2][5], 14: F[4][5]}
    if opt.get('r2', 0): vw[16] = F[6][:5]
    kxg = [int(c) for c in str(opt.get('kxg', 'g02'))[1:]]
    q.wait(('oa', 0))
    st('wo0')
    for n, (p, tp) in enumerate(order):
        tl = WO_ORDER[p]
        k = 0
        st('w%d' % n)
        if tp == 0: a(smf(wacc[p], W2, regpos[('o', 0, tl)]))
        else: a(smf(wacc[p], W2 + 4, wb[p % 3] if p < 8 else regpos[('o', 1, tl)]))
        if n == 17: break
        if ws_ == 0:
            if tp and p < 5: wo_read(p + 3, 0); wo_read(p + 3, 1); k = 2
        elif 2 <= n < 12: wo_read(n // 2 + 2, n % 2); k = 1
        if n in sw: q(sw[n], 'p1'); k += 2
        if n in kxg and kxl: kxd(); k += 2
        if order[n + 1][1] == 1: k += q.wait(('oa', 1), ('wo', order[n + 1][0]))
        while k < 2 and sal: a(sal.pop(0)); k += 1
        if zer: a(zer.pop(0))
        if n == 3:
            a('v_add_u32 %s, 0x10000, %s' % (V(vT16), V(vT16))); q.base += 65536
        if k == 0: a('s_nop 0')
        a(vw.get(n, []))
    assert not zer
    pend = F[6][2:] + F[7] + ['s_nop 0'] + F[8]
    if opt.get('r2', 0): pend = F[6][5:] + ['s_nop 0'] + F[7] + ['s_nop 2'] + F[8]
    SEL, X, D, XH, DH = W1 + 8, W1, W1 + 12, W0, W0 + 8
    MA, HA, LA, C, TT, NEG = W2, W2 + 1, W2 + 2, W2 + 3, W2 + 6, W2 + 7
    sal_left = list(sal)
    a('s_cmp_eq_u32 s4, 0')
    n8 = len(F[8])
    a(pend[:-n8])
    if opt.get('wn', 0): a('s_nop %d' % (opt['wn'] - 1))
    a(pend[-n8:])
    st('Woe')
    def red(d, x, m): return 'v_mfma_f32_16x16x32_bf16 %s, %s, %s, %s' % (V(d, 4), V(SEL, 4), V(x + 4 * m, 4), V(d, 4) if m else '0')
    def tchk(quads, x=''):
        o = []
        for i, r in enumerate(quads):
            o.append('v_bitop3_b32 %s, %s, %s, %s bitop3:0x7e' % (V(C + min(i, 1) + (i == 2)), V(r + 1), V(r + 3), S(sTag)))
            if i == 2: o.append('v_or3_b32 %s, %s, %s, %s' % (V(C), V(C), V(C + 1), V(C + 2)))
        return o + ['v_bitop3_b32 %s, %s, 1, %s bitop3:0xc8' % (V(C), V(C), V(C + 1)), 'v_cmp%s_ne_u32 vcc, 0, %s' % (x, V(C))]
    def ror(d, n): return 'v_add_f32_dpp %s, %s, %s row_ror:%d row_mask:0xf bank_mask:0xf' % (V(d), V(d), V(d), n)
    def pub(d, ad, so): return [cvt(d, d, d + 1), 'buffer_store_dword %s, %s, %s, %s offen %s' % (V(d), V(ad), WS, S(so), sf)]
    lates = []
    def misc():
        a(sal_left)
        a('v_mov_b32 %s, 0x3f80' % V(SEL + 3))
        a(cnd(SEL + 3, V(SEL + 3), '1.0', sOdd))
        a([cnd(SEL + r, '0', V(SEL + 3), sSel + 2 * r) for r in range(4)])
        a(m2_addr(MA, TT))
        a('v_subrev_u32 %s, 0x20000, %s' % (V(vT16), V(vT16)))
        a('v_mov_b32 %s, -1' % V(NEG))
        a('v_add_u32 %s, %s, %s' % (V(LA), S(sM2b), V(vL16)))
        for f in kvm_stores(Seq(a), a, KQ, TT)[:4]: f()
        a(mov2(W3 + 4, '0')); a(mov2(W3 + 6, '0'))
    def kb01():
        qq = Seq(a); qq.base = 0
        a(frag_read(qq, 0, W0, None)); a(frag_read(qq, 1, W0 + 8, None))
    def hop2(w, pol):
        hx = w == 0
        quads = [YH] if w == 2 else [VX, VX + 4]
        lds = ldi(YH, sM2c, 1) if w == 2 else ldi(VX, sM2a)
        a('buffer_store_dword %s, %s, %s, %s offen %s' % (V(NEG), V(MA), WS, S(sM2x), sf))
        if hx: a('buffer_store_dword %s, %s, %s, %s offen %s' % (V(NEG), V(HA), WS, S(sM2xh), sf))
        a('v_cmp_gt_u32 vcc, %s, %s' % (S(sTm2), V(vDum)))
        if hx: kb01()
        for i in range(8): a(mov2(W1 + 2 * i, '0'))
        Lf = a.lab('fok'); Lfw = a.lab('fw'); L2 = a.lab('p2')
        a('s_cmp_lg_u32 vcc_hi, 0')
        a('s_cbranch_scc1 ' + Lfw)
        a(Lf + ':')
        lates.append((Lfw, Lf))
        a(step_addrs()[:3 if w >= 2 else 7])
        if w >= 2: a('v_mov_b32 %s, %s' % (V(vVb), V(LA)))
        if w == 3:
            a('s_waitcnt vmcnt(0)'); delay(pol[0])
            st('h2e'); a('s_branch ' + LstepB); return
        d, sp, dep = pol
        delay(d)
        for i in range(dep - 1): a(lds); delay(sp)
        a(L2 + ':')
        for u in range(3):
            a(lds)
            if stamp: a('s_add_u32 s17, s17, 1')
            a('s_waitcnt vmcnt(%d)' % (len(lds) * (dep - 1)))
            c = chk(quads, C, 'x')
            a(c[:-1])
            if w == 2: a('ds_write_b128 %s, %s offset:%d' % (V(vL16), V(YH, 4), L_MEM + 8192))
            else:
                for m in range(2): a('ds_write_b128 %s, %s offset:%d' % (V(LA), V(quads[m], 4), L_MEM + 1024 * m))
            a(c[-1])
            st('h2e')
            a('s_cbranch_execz ' + (LstepB if w == 2 else Lstep))
        a('s_sub_u32 %s, %s, 1' % (S(sSpin), S(sSpin)))
        a('s_cbranch_scc0 ' + L2)
        a('s_endpgm')
    def reduce1(ins):
        Lr = a.lab('r1'); Lr2 = a.lab('r2'); Lb = a.lab('b1')
        def attempt(x, young, L):
            a('s_waitcnt vmcnt(%d)' % (young + 1)); a(red(D, x, 0))
            a('s_waitcnt vmcnt(%d)' % young); a(red(D, x, 1))
            st('got1')
            a(tchk([x, x + 4]))
            a('s_nop 3')
            a(ror(D, 4)); a(ror(D + 1, 4))
            a('s_cbranch_vccnz ' + L)
            a(ror(D, 8)); a(ror(D + 1, 8))
            a(pub(D, MA, sM2w))
        attempt(X, 2 * ins, Lr2 if ins else Lr)
        a(Lb + ':')
        st('pub')
        def tail():
            x = VX if ins else X
            if ins:
                a(Lr2 + ':')
                if stamp: a('s_add_u32 s17, s17, 0x100')
                attempt(VX, 0, Lr)
                a('s_branch ' + Lb)
            retry(Lr, ldi(x, sP1r), tchk([x, x + 4], 'x'), (16, 1))
            a('s_nop 2')
            a(red(D, x, 0)); a(red(D, x, 1)); a('s_nop 7')
            a(ror(D, 4)); a(ror(D + 1, 4)); a('s_nop 0'); a(ror(D, 8)); a(ror(D + 1, 8))
            a(pub(D, MA, sM2w))
            if not ins: a('s_waitcnt vmcnt(1)')
            a('s_branch ' + Lb)
        tails.append(tail)
    def P(w, dflt):
        return [int(x) for x in str(opt.get('p%d' % w, dflt)).split('.')]
    LH = a.lab('wH'); Lw = {w: a.lab('w') for w in (1, 2)}
    a('s_cbranch_scc1 ' + LH)
    a('s_cmp_eq_u32 s4, 1'); a('s_cbranch_scc1 ' + Lw[1])
    a('s_cmp_eq_u32 s4, 2'); a('s_cbranch_scc1 ' + Lw[2])
    for w in (3, 2, 1):
        p = P(w, {1: '2.0.5.0.17.24.2', 2: '1.8.0.1.8.24.2', 3: '0.12.0.1.32.0.0'}[w])
        if w < 3: a(Lw[w] + ':')
        if p[3]: misc(); kb01()
        a('s_waitcnt vmcnt(%d)' % p[0])
        delay(p[1])
        st('ack1')
        a(ldi(X, sP1r))
        if not p[3]: misc(); kb01()
        if p[2]: delay(p[2] - 1); a(ldi(VX, sP1r))
        reduce1(1 if p[2] else 0)
        hop2(w, p[4:])
    p = P(0, '3.8.0.0.11.24.2')
    a(LH + ':')
    st('pre1')
    a(h_addr(HA, TT))
    a('s_waitcnt vmcnt(%d)' % p[0]); delay(p[1])
    st('ack1')
    ld3 = ldi(XH, sP1h) + ldi(X, sP1r)
    a(ld3)
    misc()
    Lr = a.lab('r1'); Lb = a.lab('b1')
    quads = [X, X + 4, XH, XH + 4]
    a('s_waitcnt vmcnt(2)'); a(red(DH, XH, 0)); a(red(DH, XH, 1))
    a('s_waitcnt vmcnt(1)'); a(red(D, X, 0))
    a('s_waitcnt vmcnt(0)'); a(red(D, X, 1))
    st('got1')
    a(tchk(quads))
    def fin3(br):
        a(ror(DH + 1, 4)); a(ror(D, 4)); a(ror(D + 1, 4))
        a(ror(DH + 1, 8)); a(ror(D, 8)); a(ror(D + 1, 8))
        if br: a('s_cbranch_vccnz ' + Lr)
        a(pub(D, MA, sM2w))
        a('v_mov_b32_dpp %s, %s quad_perm:[1,0,3,2] row_mask:0xf bank_mask:0xf' % (V(DH + 2), V(DH + 1)))
        a(pub(DH + 1, HA, sM2wh))
    fin3(1)
    a(Lb + ':')
    st('pub')
    hop2(0, p[4:])
    retry(Lr, ld3, tchk(quads, 'x'), (16, 1))
    a('s_nop 2')
    a(red(DH, XH, 0)); a(red(DH, XH, 1)); a(red(D, X, 0)); a(red(D, X, 1)); a('s_nop 6')
    fin3(0)
    a('s_waitcnt vmcnt(2)')
    a('s_branch ' + Lb)
    for t_ in tails: t_()
    for Lfw, Lf in lates:
        a(Lfw + ':')
        wait_flag(a, S(sFPB), S(sTm2), 'pb')
        a('s_branch ' + Lf)
    a(Lfail + ':')
    a('s_endpgm')

def chain(a, opt, flags_ready, wflags='nt', stamp=None, stamp_once=None, force_slow=False):
    srd(a, 8, 'B_wq'); srd(a, 12, 'B_wk'); srd(a, 16, 'B_wv'); srd(a, 24, 'B_wo'); srd(a, 28, 'dbg'); srd(a, 32, 'B_mem0')
    setup(a)
    a('s_waitcnt lgkmcnt(0)')
    init_handoff(a)
    load_weights(a, wflags, arrive, (8, opt.get('cL', 57)), early(a, opt))
    if stamp_once: stamp_once(a, 1)
    start(a, (lambda: stamp_once(a, 2)) if stamp_once else None)
    Lslow = a.lab('slow'); Lexit = a.lab('chexit')
    if force_slow: a('s_branch ' + Lslow)
    a('s_cbranch_scc0 ' + Lslow)
    step_loop(a, '', Lexit, opt, stamp)
    a(Lslow + ':')
    step_loop(a, 'sc1', Lexit, opt, stamp)
    a(Lexit + ':')
    q = Seq(a)
    a('s_add_u32 %s, %s, 0x10000' % (S(sKVM), S(sKVM)))
    for f in kvm_stores(q, a, W3, vPm): f()
    a('s_waitcnt vmcnt(0) lgkmcnt(0)')
    a('s_barrier')
    a('v_subrev_u32 %s, 0x10000, %s' % (V(vT16), V(vT16)))
    a('v_min_u32 %s, 16, %s' % (V(vT16), V(vT16))); a('v_lshlrev_b32 %s, 24, %s' % (V(vT16), V(vT16)))
    a('v_mov_b32 %s, 64' % V(vPm))
    a('buffer_store_dword %s, %s, %s, %s offen sc1' % (V(vPm), V(vT16), WS, S(sFCH)))
```

```python
from common import *

L_MEM, L_KX, L_Q, L_KM, L_O, L_F = 0, 9216, 17408, 19456, 19968, 24576
M2SZ = P1_BUF
vT16, vDum, vVa, vL16, vVb, vIdx, vPm, vZero, vXw, vXr, vQw, vQr = range(12)
VX, W0, W1, W2, W3 = 12, 20, 36, 52, 64
WREG = 72
sH = 6
sStep, sKV, sKVM, sP1r, sP1h, sM2a, sM2b, sM2c, sM2w, sM2x = 36, 37, 38, 39, 40, 41, 42, 43, 44, 45
sTmp, sSpin, sC, sFPB, sFCH, sTm2, sVXo = 47, 54, 55, 56, 57, 58, 59
sHf = 48
sTag = 46
sP1w = 60
sM2wh, sM2xh, sKXo, sPF, sXq = 65, 66, 67, 68, 69
sLo = 70
sSel, sOdd, sOne = 24, 32, 34
TOGGLE = (sM2w, sM2x, sM2wh, sM2xh, sM2a, sM2c)
WS = 's[20:23]'

WO_ORDER = [8, 0, 1, 2, 3, 4, 5, 6, 7]
frags = [(m, t, tau) for t in range(9) for m in 'qkv' for tau in range(2)] + [('o', tp, tl) for tl in range(9) for tp in range(2)]
KORD = [8, 0, 1, 2, 3, 4, 5, 6, 7]
lds_frags = [('k', t, 1) for t in KORD] + [('o', 1, tl) for tl in WO_ORDER[:8]]
reg_frags = [f for f in frags if f not in lds_frags]
assert len(reg_frags) == 55
regpos = {f: (WREG + 8 * i) for i, f in enumerate(reg_frags)}
def fbase(f):
    off = L_F + 8192 * f
    return (off // 65536) * 65536, off % 65536
def smf(d, a_, b): return 'v_smfmac_f32_16x16x64_bf16 %s, %s, %s, %s' % (V(d, 4), V(a_, 4), U(b, 8), V(vIdx))

def spin_fail(a, lab):
    a('s_sub_u32 %s, %s, 1' % (S(sSpin), S(sSpin)))
    a('s_cbranch_scc0 ' + lab)
    a('s_endpgm')

def setup(a):
    a('v_and_b32 v20, 63, v0')
    a('v_lshlrev_b32 %s, 4, v20' % V(vL16))
    a('v_mov_b32 %s, 0' % V(vZero))
    a('s_mov_b32 %s, 0xcccccccc' % S(sHf)); a('s_mov_b32 %s, 0xcccccccc' % S(sHf + 1))
    a('v_mov_b32 v21, 0x44444444'); a('v_mov_b32 v22, 0xeeeeeeee')
    a('v_cndmask_b32 %s, v21, v22, %s' % (V(vIdx), S(sHf, 2)))
    a('s_lshl_b32 %s, s4, 10' % S(sTmp)); a('s_add_u32 %s, %s, %d' % (S(sTmp), S(sTmp), L_KM))
    a('v_and_b32 v21, 48, v20'); a('v_lshl_add_u32 v21, v21, 3, %s' % S(sTmp))
    a('v_and_b32 v22, 8, v20'); a('v_lshl_add_u32 v21, v22, 2, v21')
    a('v_and_b32 v22, 1, v20'); a('v_lshl_add_u32 v21, v22, 4, v21')
    a('v_and_b32 v22, 6, v20'); a('v_lshl_add_u32 %s, v22, 1, v21' % V(vXw))
    a('v_and_b32 v21, 32, v20'); a('v_lshlrev_b32 v21, 5, v21')
    a('v_and_b32 v22, 12, v20'); a('v_lshl_add_u32 v21, v22, 5, v21')
    a('v_and_b32 v22, 1, v20'); a('v_lshl_add_u32 v21, v22, 6, v21')
    a('v_and_b32 v22, 16, v20'); a('v_lshl_add_u32 v21, v22, 1, v21')
    a('v_and_b32 v22, 2, v20'); a('v_lshl_add_u32 %s, v22, 3, v21' % V(vXr))
    a('v_lshrrev_b32 v21, 4, v0'); a('v_lshlrev_b32 v21, 7, v21')
    a('v_and_b32 v22, 15, v20'); a('v_lshl_add_u32 v21, v22, 2, v21')
    a('v_add_u32 %s, %d, v21' % (V(vQw), L_Q))
    a('v_and_b32 v22, 1, v20')
    a('v_and_b32 v21, 12, v20'); a('v_lshlrev_b32 v21, 5, v21')
    a('v_lshl_add_u32 v21, v22, 6, v21')
    a('v_and_b32 v22, 48, v20'); a('v_add_u32 %s, v21, v22' % V(vQr))
    a('s_mov_b32 %s, 0x%x' % (S(sC), QSCALE))
    a('s_mov_b32 %s, 0x%x' % (S(sSpin), SPIN))
    a('s_lshl_b32 %s, %s, 6' % (S(sTmp), S(sH)))
    for r in range(3): a('s_add_u32 %s, %s, 0x%x' % (S(sP1w + r), S(sTmp), WS_P1 + 4096 * r))
    a('s_lshl_b32 %s, %s, 7' % (S(sTmp), S(sH)))
    a('s_add_u32 %s, %s, 0x%x' % (S(sFPB), S(sTmp), FLAG(FL_PB)))
    a('s_add_u32 %s, %s, 0x%x' % (S(sFCH), S(sTmp), FLAG(FL_CH)))
    a('s_mul_i32 %s, %s, %d' % (S(sTmp), S(sH), P1_STRIDE))
    a('s_add_u32 %s, %s, 0x%x' % (S(sP1h), S(sTmp), WS_P1 + 4 * 2048))
    a('s_lshl_b32 %s, s4, 11' % S(sTm2))
    a('s_add_u32 %s, %s, %s' % (S(sTmp), S(sTmp), S(sTm2)))
    a('s_add_u32 %s, %s, 0x%x' % (S(sP1r), S(sTmp), WS_P1))
    a('s_lshl_b32 %s, s4, 11' % S(sM2b))
    a('s_add_u32 %s, %s, 0x%x' % (S(sM2a), S(sM2b), WS_M2 + M2SZ))
    a('s_mov_b32 %s, 0x%x' % (S(sM2c), WS_M2 + M2SZ + 8192))
    a('s_lshr_b32 %s, s4, 1' % S(sXq)); a('s_lshl_b32 %s, %s, 11' % (S(sXq), S(sXq)))
    a('s_and_b32 %s, s4, 1' % S(sTmp)); a('s_lshl_b32 %s, %s, 3' % (S(sTmp), S(sTmp)))
    a('s_add_u32 %s, %s, %s' % (S(sXq), S(sXq), S(sTmp)))
    a('s_lshl_b32 %s, %s, 5' % (S(sTmp), S(sH)))
    a('s_add_u32 %s, %s, 0x%x' % (S(sM2wh), S(sTmp), WS_M2 + M2SZ + 8192))
    a('s_add_u32 %s, %s, 0x%x' % (S(sM2xh), S(sTmp), WS_M2 + 8192))
    a('s_lshr_b32 %s, %s, 3' % (S(sTmp), S(sH))); a('s_lshl_b32 %s, %s, 9' % (S(sTmp), S(sTmp)))
    a('s_and_b32 %s, %s, 1' % (S(sTm2), S(sH))); a('s_lshl_b32 %s, %s, 8' % (S(sTm2), S(sTm2)))
    a('s_add_u32 %s, %s, %s' % (S(sTmp), S(sTmp), S(sTm2)))
    a('s_and_b32 %s, %s, 6' % (S(sTm2), S(sH))); a('s_lshl_b32 %s, %s, 5' % (S(sTm2), S(sTm2)))
    a('s_add_u32 %s, %s, %s' % (S(sTmp), S(sTmp), S(sTm2)))
    a('s_lshl_b32 %s, s4, 11' % S(sTm2))
    a('s_add_u32 %s, %s, %s' % (S(sTmp), S(sTmp), S(sTm2)))
    a('s_add_u32 %s, %s, 0x%x' % (S(sM2w), S(sTmp), WS_M2 + M2SZ))
    a('s_add_u32 %s, %s, 0x%x' % (S(sM2x), S(sTmp), WS_M2))
    a('s_lshl_b32 %s, %s, 14' % (S(sTmp), S(sH)))
    a('s_add_u32 %s, %s, 0x%x' % (S(sKV), S(sTmp), WS_KVB))
    a('s_add_u32 %s, %s, %s' % (S(sKXo), S(sKV), S(sTm2)))
    a('s_add_u32 %s, %s, 8192' % (S(sVXo), S(sKXo)))
    a('s_lshl_b32 %s, %s, 12' % (S(sTmp), S(sH)))
    a('s_add_u32 %s, %s, 0x%x' % (S(sKVM), S(sTmp), WS_KVM - 0x20000))
    a('s_mov_b32 %s, 0' % S(sStep))
    a('s_mov_b32 %s, 0' % S(sTag))

def h_addr(d, t):
    x = V(vL16)
    return ['v_bfe_u32 %s, %s, 8, 1' % (V(d), x), 'v_bfe_u32 %s, %s, 9, 1' % (V(t), x),
            'v_lshl_or_b32 %s, %s, 1, %s' % (V(d), V(d), V(t)), 'v_bfe_u32 %s, %s, 5, 1' % (V(t), x),
            'v_lshl_or_b32 %s, %s, 1, %s' % (V(d), V(d), V(t)), 'v_and_b32 %s, 0xd0, %s' % (V(t), x),
            'v_lshlrev_b32 %s, 24, %s' % (V(t), V(t)), 'v_lshl_or_b32 %s, %s, 2, %s' % (V(d), V(d), V(t))]
def m2_addr(d, t):
    x = V(vL16)
    return ['v_bfe_u32 %s, %s, 8, 2' % (V(d), x), 'v_bfe_u32 %s, %s, 2, 4' % (V(t), x),
            'v_lshl_or_b32 %s, %s, 4, %s' % (V(d), V(d), V(t)), 'v_and_b32 %s, 0xc0, %s' % (V(t), x),
            'v_lshl_or_b32 %s, %s, 24, %s' % (V(d), V(t), V(d))]
def p1w_addr(d, t):
    return ['v_bfe_u32 %s, %s, 7, 5' % (V(d), V(vT16)), 'v_mul_u32_u24 %s, %d, %s' % (V(d), P1_STRIDE, V(d)),
            'v_bfe_u32 %s, %s, 4, 3' % (V(t), V(vL16)), 'v_lshl_add_u32 %s, %s, 3, %s' % (V(d), V(t), V(d))]

def init_handoff(a, q):
    for i in range(4): a('v_mov_b32 %s, 0' % V(W0 + i))
    a('v_mov_b32 %s, -1' % V(W0 + 7))
    a(h_addr(W0 + 4, W0 + 5)); a(m2_addr(W0 + 6, W0 + 5))
    for s_ in (sP1r, sP1h):
        for m in range(2):
            q('buffer_store_dwordx4 %s, %s, %s, %s offen offset:%d sc1' % (V(W0, 4), V(vL16), WS, S(s_), 1024 * m), 'init')
    for s_ in (sM2w, sM2x):
        q('buffer_store_dword %s, %s, %s, %s offen sc1' % (V(W0 + 7), V(W0 + 6), WS, S(s_)), 'init')
    for s_ in (sM2wh, sM2xh):
        q('buffer_store_dword %s, %s, %s, %s offen sc1' % (V(W0 + 7), V(W0 + 4), WS, S(s_)), 'init')

def load_weights(a, wflags, arrive, lead, mid):
    vA, vB, vR, vWb, T, vC = 12, 14, 16, 60, 40, 56
    a('v_and_b32 v30, 63, v0')
    a('v_bfe_u32 v31, v30, 1, 2'); a('v_lshrrev_b32 v32, 5, v30'); a('v_xor_b32 v31, v31, v32')
    a('v_lshlrev_b32 v31, 5, v31'); a('v_and_b32 v32, 1, v30'); a('v_lshl_add_u32 v31, v32, 4, v31')
    a('v_xor_b32 v33, 64, v31')
    a('v_lshrrev_b32 v32, 3, v30')
    a('s_lshl_b32 %s, s4, 4' % S(sTmp))
    a('v_and_b32 v34, 3, v32'); a('v_lshrrev_b32 v35, 2, v32'); a('v_lshl_add_u32 v34, v34, 1, v35')
    a('v_add_u32 v34, %s, v34' % S(sTmp))
    a('v_lshl_add_u32 %s, v34, 13, v31' % V(vA))
    a('v_add_u32 v34, 8, v34')
    a('v_lshl_add_u32 %s, v34, 13, v33' % V(vA + 1))
    a('v_and_b32 v34, 1, v32'); a('v_lshlrev_b32 v34, 6, v34'); a('v_and_b32 v35, 6, v32')
    a('s_lshl_b32 %s, s4, 3' % S(sTmp))
    a('v_add3_u32 v34, v34, v35, %s' % S(sTmp))
    a('v_lshl_add_u32 %s, v34, 13, v31' % V(vC))
    a('v_mul_u32_u24 v35, 1152, v34'); a('v_add_u32 %s, v35, v31' % V(vB))
    a('v_add_u32 v34, 1, v34')
    a('v_lshl_add_u32 %s, v34, 13, v33' % V(vC + 1))
    a('v_mul_u32_u24 v35, 1152, v34'); a('v_add_u32 %s, v35, v33' % V(vB + 1))
    a('v_bfe_u32 v31, v30, 4, 1'); a('v_bfe_u32 v32, v30, 3, 1')
    a('v_lshl_add_u32 v33, v32, 1, v31'); a('v_xor_b32 v33, s4, v33'); a('v_lshlrev_b32 v33, 5, v33')
    a('v_lshl_add_u32 v33, v31, 9, v33'); a('v_lshl_add_u32 v33, v32, 10, v33')
    a('v_bfe_u32 v31, v30, 2, 1'); a('v_lshl_add_u32 v33, v31, 7, v33')
    a('v_lshrrev_b32 v31, 5, v30'); a('v_lshl_add_u32 v33, v31, 11, v33')
    a('v_and_b32 v31, 3, v30'); a('v_lshl_add_u32 %s, v31, 3, v33' % V(vR))
    a('v_add_u32 %s, 0x10000, %s' % (V(vR + 1), V(vR))); a('v_add_u32 %s, 0x20000, %s' % (V(vR + 2), V(vR)))
    a('v_lshlrev_b32 %s, 4, v0' % V(vWb))
    a('v_add_u32 %s, 0x10000, %s' % (V(vWb + 1), V(vWb))); a('v_add_u32 %s, 0x20000, %s' % (V(vWb + 2), V(vWb)))
    sA, sB, sM = 70, 71, 72
    a('s_lshl_b32 %s, %s, 8' % (S(sA), S(sH)))
    a('s_mul_i32 %s, %s, 147456' % (S(sB), S(sH)))
    a('s_lshl_b32 %s, s4, 11' % S(sM))
    vTx, vTn, vTo, vTd, sGA, sGB = 19, 58, 59, 63, 76, 80
    a('s_lshl_b32 %s, s4, 4' % S(sTmp)); a('v_add_u32 v31, %s, v30' % S(sTmp))
    a('s_lshr_b32 %s, s4, 1' % S(sTmp)); a('s_lshl_b32 %s, %s, 5' % (S(sTmp), S(sTmp))); a('v_add_u32 v32, %s, v31' % S(sTmp))
    a('v_lshrrev_b32 v33, 4, v30'); a('v_lshlrev_b32 v33, 28, v33')
    a('v_lshl_or_b32 %s, v31, 13, v33' % V(vTn)); a('v_lshl_or_b32 %s, v32, 13, v33' % V(vTx))
    a('v_mul_u32_u24 v32, 1152, v32'); a('v_or_b32 %s, v32, v33' % V(vTo))
    def touch(n):
        m, t, tau = seq[n]
        if m == 'o':
            a('s_add_u32 %s, %s, %d' % (S(sTmp), S(sGB), 32 * t * 1152 + 128 * tau))
            a('buffer_load_dword %s, %s, s[24:27], %s offen' % (V(vTd), V(vTo), S(sTmp)))
        else:
            row = 512 if t == 8 else 128 * (t // 2) + 32 * (t % 2)
            a('s_add_u32 %s, %s, %d' % (S(sTmp), S(sGA), row * 8192 + 128 * tau))
            a('buffer_load_dword %s, %s, %s, %s offen' % (V(vTd), V(vTn if t == 8 else vTx), S(8 + 4 * 'qkv'.index(m), 4), S(sTmp)))
    def help_others(first):
        for d in range(1, 4):
            L = a.lab('hlp')
            a('s_add_u32 %s, %s, %d' % (S(sTm2), S(sH), d)); a('s_and_b32 %s, %s, 31' % (S(sTm2), S(sTm2)))
            a('s_bitcmp1_b32 s77, %s' % S(sTm2)); a('s_cbranch_scc1 ' + L)
            a('s_lshl_b32 %s, %s, 8' % (S(sGA), S(sTm2))); a('s_mul_i32 %s, %s, 147456' % (S(sGB), S(sTm2)))
            for n in range(first + d - 1, 72, 3): touch(n)
            a(L + ':')
    seq = list(reg_frags)
    n0 = len(seq)
    seq += [lds_frags[n % 17] for n in range(n0, n0 + 17)]
    D = lead[0]
    q = Seq(a)
    def dma(n):
        m, t, tau = seq[n]
        for zz in range(2):
            a('s_add_u32 m0, %s, %d' % (S(sM), L_F + 8192 * (n % 17) + 1024 * zz))
            if m == 'o':
                if zz == 0: a('s_add_u32 %s, %s, %d' % (S(sTmp), S(sB), 32 * t * 1152 + 128 * tau))
                else: a('s_nop 0')
                q('buffer_load_dwordx4 %s, s[24:27], %s offen %s lds' % (V(vB + zz), S(sTmp), wflags), n)
            else:
                row = 512 if t == 8 else 128 * (t // 2) + 32 * (t % 2)
                if zz == 0: a('s_add_u32 %s, %s, %d' % (S(sTmp), S(sA), row * 8192 + 128 * tau))
                else: a('s_nop 0')
                q('buffer_load_dwordx4 %s, %s, %s offen %s lds' % (V((vA if t == 8 else vC) + zz), S(8 + 4 * 'qkv'.index(m), 4), S(sTmp), wflags), n)
    def finish(n):
        f = seq[n]; t = T + 8 * (n % 2)
        if f in lds_frags:
            b, o = fbase(n % 17)
            for hf in range(2):
                a('ds_write_b128 %s, %s offset:%d' % (V(vWb + b // 65536), V(t + 4 * hf, 4), o + 4096 * hf))
    for n in range(D): dma(n)
    for n in range(72):
        q.wait(n)
        a('s_waitcnt lgkmcnt(0)')
        a('s_barrier')
        if n + D < 72: dma(n + D)
        mid(n, q)
        if n == 72 - D and lead[1]: help_others(lead[1])
        if n: finish(n - 1)
        f = seq[n]
        dst = regpos.get(f, T + 8 * (n % 2))
        b, o = fbase(n % 17)
        for y in range(4):
            a('ds_read_b64_tr_b16 %s, %s offset:%d' % (U(dst + 2 * y, 2), V(vR + b // 65536), o + 4096 * (y // 2) + 256 * (y % 2)))
    a('s_waitcnt lgkmcnt(0)')
    a('s_barrier')
    finish(71)

def arrive(a, q):
    L = a.lab('arr')
    a('s_getreg_b32 s73, hwreg(HW_REG_XCC_ID, 0, 3)')
    a('s_lshl_b32 s73, s73, 3')
    a('s_lshl_b64 s[74:75], 1, s73')
    a('v_mov_b32 v64, s74'); a('v_mov_b32 v65, s75')
    a('v_mov_b32 v66, 0x7ff00000'); a('v_cmp_eq_u32 vcc, 0, v0'); a('s_nop 1')
    a('v_cndmask_b32 v66, v66, %s, vcc' % V(vZero))
    q('buffer_atomic_add_x2 v[64:65], v66, s[28:31], 0 offen offset:8', 'arr')

def wait_flag(a, soff, need, lab):
    L = a.lab(lab); Lok = a.lab(lab + 'ok')
    a(L + ':')
    a('buffer_load_dword %s, %s, %s, %s offen sc1' % (V(vDum), V(vZero), WS, soff))
    a('s_waitcnt vmcnt(0)')
    a('v_cmp_le_u32 vcc, %s, %s' % (need, V(vDum)))
    a('s_cbranch_vccnz ' + Lok)
    spin_fail(a, L)
    a(Lok + ':')

def frag_read(q, f, dst, name):
    b, o = fbase(f)
    assert b == q.base, (f, b, q.base)
    return ['ds_read_b128 %s, %s offset:%d' % (V(dst + 4 * hf, 4), V(vT16), o + 4096 * hf) for hf in range(2)]

def early(a, opt, rho):
    M = 20
    def dbg_load(q, name): q('buffer_load_dwordx4 v[68:71], v65, s[28:31], 0 offen sc1', name)
    def mid(n, q):
        if n == 0 and rho: q(rho[0](68), 'rho')
        if n == 9:
            if rho: q.wait('rho'); rho[1](a, 68, True)
            init_handoff(a, q)
        if n == 19: q.wait('init')
        if n == 20: arrive(a, q)
        if n == opt.get('nm', 11):
            a('v_lshrrev_b32 v68, 4, %s' % V(vL16))
            a('v_bfe_u32 v69, v68, 2, 2'); a('v_and_b32 v70, 1, v68'); a('v_lshl_add_u32 v69, v69, 1, v70')
            a('v_mul_u32_u24 v69, 1152, v69')
            a('v_and_b32 v70, 48, v68'); a('v_and_b32 v71, 2, v68'); a('v_lshl_add_u32 v71, v71, 2, v70')
            a('v_lshl_add_u32 v71, v71, 1, v69'); a('v_add_u32 v69, v70, v69')
            a('s_lshr_b32 %s, s4, 1' % S(sTmp)); a('s_lshl_b32 %s, %s, 8' % (S(sTmp), S(sTmp)))
            a('s_and_b32 %s, s4, 1' % S(sTm2)); a('s_lshl_b32 %s, %s, 6' % (S(sTm2), S(sTm2)))
            a('s_add_u32 %s, %s, %s' % (S(sTmp), S(sTmp), S(sTm2)))
            for m in range(2):
                for tl in range(2):
                    q('buffer_load_dwordx4 %s, v69, s[32:35], %s offen offset:%d' % (V(M + 8 * m + 4 * tl, 4), S(sTmp), 512 * m + 128 * tl), 'm0')
            q('buffer_load_dwordx4 %s, v71, s[32:35], 0 offen offset:1024' % V(M + 16, 4), 'm0')
        if n == opt.get('nm', 11) + 10:
            q.wait('m0')
            a('v_mov_b32 v68, 0x05040100'); a('v_mov_b32 v69, 0x07060302')
            a('v_cndmask_b32 v70, v68, v69, %s' % S(sHf, 2))
            for m in range(2):
                for i in range(4):
                    a('v_perm_b32 %s, %s, %s, v70' % (V(M + 8 * m + i), V(M + 8 * m + 4 + i), V(M + 8 * m + i)))
            for i in range(4):
                a('v_perm_b32 %s, %s, %s, v%d' % (V(M + 4 + i), V(M + 16 + 2 * (i % 2) + 1), V(M + 16 + 2 * (i % 2)), 68 + i // 2))
            a('ds_write_b128 v60, %s' % V(M, 4))
            a('ds_write_b128 v60, %s offset:4096' % V(M + 8, 4))
            a('ds_write_b128 %s, %s offset:8192' % (V(vL16), V(M + 4, 4)))
        if n == 34:
            a('v_min_u32 v65, 16, %s' % V(vL16)); a('v_lshlrev_b32 v65, 24, v65')
            dbg_load(q, 'd0')
        if n == 44:
            L = a.lab('hs'); Lc = a.lab('hsc'); Lok = a.lab('hsok')
            q.wait('d0')
            a('s_branch ' + Lc)
            a(L + ':')
            dbg_load(Seq(a), None); a('s_waitcnt vmcnt(0)')
            a(Lc + ':')
            a('v_sad_u8 v69, v70, 0, 0'); a('v_sad_u8 v69, v71, 0, v69'); a('v_lshrrev_b32 v69, 5, v69'); a('v_min_u32 v68, v68, v69')
            a('v_cmp_ne_u32 vcc, 0, v68')
            a('s_cbranch_vccnz ' + Lok)
            spin_fail(a, L)
            a(Lok + ':')
            a('v_readfirstlane_b32 s74, v70'); a('v_readfirstlane_b32 s75, v71')
            for s_ in (sP1r, sP1h):
                for m in range(2):
                    q('buffer_load_dwordx4 %s, %s, %s, %s offen offset:%d sc1' % (V(M, 4), V(vL16), WS, S(s_), 1024 * m), 'x')
            a('v_lshlrev_b32 v67, 6, v0')
        if n == opt.get('mark', 48):
            a('s_lshl_b32 %s, %s, 2' % (S(sTmp), S(sH))); a('s_add_u32 %s, %s, 0x%x' % (S(sTmp), S(sTmp), FLAG(FL_LD)))
            a('v_mov_b32 v64, 1')
            q('buffer_store_dword v64, v66, %s, %s offen' % (WS, S(sTmp)), 'g')
        if n == opt.get('hm', 55):
            a('v_lshrrev_b32 v68, 2, %s' % V(vL16)); a('s_mov_b32 %s, 0x%x' % (S(sTmp), FLAG(FL_LD)))
            q('buffer_load_dword v68, v68, %s, %s offen sc1' % (WS, S(sTmp)), 'd1')
        if n == 63: q('buffer_load_dword %s, v65, %s, %s offen sc1' % (V(vDum), WS, S(sFPB)), 'pb')
        if n == 64: q.wait('d1'); a('v_cmp_ne_u32 vcc, 0, v68'); a('s_mov_b32 s77, vcc_lo')
        if n == opt.get('gate', 52):
            L = a.lab('gt')
            a('s_and_b32 %s, %s, 29' % (S(sTmp), S(sH))); a('s_cbranch_scc1 ' + L)
            a('buffer_store_dword v64, v66, s[28:31], 0 offen offset:128 sc1')
            a(L + ':')
    return mid

def start(a, st=None):
    a('v_lshlrev_b32 %s, 4, v0' % V(vT16))
    Lok = a.lab('pbk')
    a('s_waitcnt vmcnt(0)')
    a('v_cmp_le_u32 vcc, 2, %s' % V(vDum))
    a('s_cbranch_vccnz ' + Lok)
    wait_flag(a, S(sFPB), '2', 'pb0')
    a(Lok + ':')
    if st: st()
    a('s_lshl_b32 %s, s4, 11' % S(sTmp))
    a('s_add_u32 m0, %s, %d' % (S(sTmp), L_KX))
    a('s_add_u32 %s, %s, 0x80000' % (S(sPF), S(sKV)))
    for tau in range(2):
        a('buffer_load_dwordx4 %s, %s, %s offen offset:%d sc1 lds' % (V(vL16), WS, S(sKXo), 1024 * tau))
    a('buffer_load_dword %s, v67, %s, %s offen sc1' % (V(VX), WS, S(sKV)))
    a('buffer_load_dword %s, v67, %s, %s offen sc1' % (V(VX), WS, S(sPF)))
    for i in range(2): a('v_mov_b64 %s, 0' % V(W3 + 4 + 2 * i, 2))
    a('s_add_u32 %s, %s, 0x80000' % (S(sPF), S(sPF)))
    for r in range(4):
        a('s_mov_b32 %s, 0x%x' % (S(sSel + 2 * r), 0x000f000f << (4 * r))); a('s_mov_b32 %s, 0x%x' % (S(sSel + 2 * r + 1), 0x000f000f << (4 * r)))
    a('s_mov_b32 %s, 0xaaaaaaaa' % S(sOdd)); a('s_mov_b32 %s, 0xaaaaaaaa' % S(sOdd + 1))
    a('s_mov_b32 %s, 0x3f803f80' % S(sOne)); a('s_mov_b32 %s, 0x3f803f80' % S(sOne + 1))
    a('s_mov_b32 %s, -1' % S(sLo)); a('s_mov_b32 %s, 0' % S(sLo + 1))
    a('s_lshl_b32 %s, s4, 12' % S(sTmp)); a('s_add_u32 %s, %s, %s' % (S(sPF), S(sPF), S(sTmp)))
    a('v_mov_b32 %s, 0' % V(vVa)); a('v_mov_b32 %s, 0' % V(vVb))
    q = Seq(a); q.base = 0
    a('s_waitcnt lgkmcnt(0)')
    a(frag_read(q, 0, W0, None)); a(frag_read(q, 1, W0 + 8, None))
    for i in range(8): a('v_mov_b64 %s, 0' % V(W1 + 2 * i, 2))
    a(step_addrs())
    for s_ in TOGGLE:
        a('s_xor_b32 %s, %s, 0x%x' % (S(s_), S(s_), P1_BUF))
    a('s_lshr_b64 s[74:75], s[74:75], s73')
    a('s_and_b32 s74, s74, 0xff')
    a('s_cmp_eq_u32 s74, 32')
    a('s_waitcnt vmcnt(2)')

def step_addrs():
    return ['v_lshl_add_u32 %s, %s, 3, %s' % (V(vDum), V(vL16), S(sPF)), 'v_mov_b32 %s, %s' % (V(vPm), S(sFPB)),
            'v_cndmask_b32 %s, %s, %s, %s' % (V(vDum), V(vPm), V(vDum), S(sLo, 2)),
            'v_min_u32 %s, 16, %s' % (V(vPm), V(vT16)), 'v_lshlrev_b32 %s, 24, %s' % (V(vPm), V(vPm)),
            's_max_u32 %s, %s, 1' % (S(sTmp), S(sStep)), 'v_add_u32 %s, -1, %s' % (V(vVa), S(sTmp))]

def kvm_stores(q, a, tmp, addr):
    return [lambda: a('v_add_u32 %s, %s, %s' % (V(addr), S(sXq), V(vXr))),
            lambda: q('ds_read_b64 %s, %s offset:%d' % (V(tmp, 2), V(addr), L_KM), 'kmr'),
            lambda: a('v_mov_b32 %s, %s' % (V(tmp + 2), V(vVa))),
            lambda: a('v_mov_b32 %s, %s' % (V(tmp + 3), V(vVb))),
            lambda: (q.wait('kmr'), q('buffer_store_dwordx4 %s, %s, %s, %s offen sc1' % (V(tmp, 4), V(vT16), WS, S(sKVM)), 'kvs'))]

def step_loop(a, sf, Lexit, opt, stamp=None):
    def add(d, x, y): return 'v_add_f32 %s, %s, %s' % (V(d), V(x), V(y))
    def add2(d, x): return [add(d, x, x + 2), add(d + 1, x + 1, x + 3)]
    def cvt(d, x, y): return 'v_cvt_pk_bf16_f32 %s, %s, %s' % (V(d), V(x), V(y))
    def cnd(d, x, y, m=sHf): return 'v_cndmask_b32 %s, %s, %s, %s' % (V(d), x, y, S(m, 2))
    def mov2(d, x): return 'v_mov_b64 %s, %s' % (V(d, 2), x)
    def sadd(d, x):
        if opt.get('nopf') and d in (sVXo, sKXo): x = 0
        return 's_add_u32 %s, %s, 0x%x' % (S(d), S(d), x)
    def sxor(d, x=P1_BUF): return 's_xor_b32 %s, %s, 0x%x' % (S(d), S(d), x)
    def delay(n):
        while n > 0: a('s_nop %d' % (min(n, 16) - 1)); n -= 16
    st = stamp or (lambda i: None)
    Lstep = a.lab('step'); Lfail = a.lab('fail')
    Sx = [W0, W0 + 4]; Sm = W0 + 8; R0 = W0 + 12; R1 = W2 + 8
    kxr = {(0, 0): Sx[0], (0, 1): Sx[1], (1, 0): R0, (1, 1): R0, (2, 0): W1, (2, 1): W1 + 4, (3, 0): R0, (3, 1): R1}
    qa, qb, ka, kb = W1, W1 + 4, W1 + 8, W1 + 12
    va, vb = W3, W3 + 4
    KQ, YH, FV = W3, W3 + 4, vVa
    tails = []
    def mem(u): return W2 + 4 * (u % 3 if u < 12 else u % 2)
    def mu3(d, x, y, z): return 'v_max3_u32 %s, %s, %s, %s' % (V(d), V(x), V(y), V(z))
    def ldi(x, so, n=2):
        return ['buffer_load_dwordx4 %s, %s, %s, %s offen offset:%d sc1' % (V(x + 4 * m, 4), V(vL16), WS, S(so), 1024 * m) for m in range(n)]
    def chk(quads, C, x=''):
        regs = [r + i for r in quads for i in range(4)]
        o = [mu3(C, *regs[:3])]; regs = regs[3:]
        while len(regs) > 1: o.append(mu3(C, C, regs[0], regs[1])); regs = regs[2:]
        o.append('v_max_u32 %s, %s, %s' % (V(C), V(C), V(regs[0])))
        return o + ['v_cmp%s_eq_u32 vcc, -1, %s' % (x, V(C))]
    def retry(L, loads, check, cnt, first=None):
        L1 = a.lab('rt'); Le = a.lab('rte')
        a(L + ':')
        a('s_mov_b64 exec, vcc')
        a(L1 + ':')
        for u in range(3):
            a(loads)
            if stamp: a('s_add_u32 s%d, s%d, %d' % (cnt[0], cnt[0], cnt[1]))
            a('s_waitcnt vmcnt(%d)' % (len(loads) * (opt.get('dep', 2) - 1)))
            a(check)
            a('s_cbranch_execz ' + Le)
        a('s_sub_u32 %s, %s, 1' % (S(sSpin), S(sSpin))); a('s_cbranch_scc0 ' + L1)
        a('s_endpgm')
        a(Le + ':')
        a('s_mov_b64 exec, -1')
    LstepB = a.lab('stepB'); Ljoin = a.lab('join')
    PF = 'buffer_load_dword %s, %s, %s, 0 offen sc1' % (V(vDum), V(vDum), WS)
    FS = 'buffer_store_dword %s, %s, %s, %s offen sc1' % (V(FV), V(vPm), WS, S(sFCH))
    def vs(u, tau, slot): a(smf(va + 4 * tau, slot, regpos[('v', KORD[u], tau)]))
    flat = [(u, x) for u in range(7) for x in (('qa', 'qb', 'ka', 'va', 'vb', 'kb') if u in (2, 3, 4) else ('qa', 'qb', 'ka', 'kb'))]
    GB = opt.get('gb', 22); GJ = opt.get('gj', 19)
    def mk(q):
        ex = {}
        def mread(u): q('ds_read_b128 %s, %s offset:%d' % (V(mem(u), 4), V(vL16), L_MEM + 1024 * KORD[u]), ('m', u))
        def at(g, f, name='x'):
            l = ex.setdefault(g, [])
            fn = f if callable(f) else (lambda: q(f, name))
            if not callable(f) and f.startswith('v_'): l.append(fn)
            else: l.insert(0, fn)
        def run(n0, n1):
            for n in range(n0, n1):
                u, x = flat[n]; t = KORD[u]
                if x == 'kb': a(smf(kb, mem(u), W0 + 8 * (u % 2)))
                else: a(smf({'qa': qa, 'qb': qb, 'ka': ka, 'va': va, 'vb': vb}[x], mem(u), regpos[(x[0], t, int(x[1] == 'b'))]))
                if u and x in ('qa', 'qb'): q(frag_read(q, u + 1, W0 + 8 * ((u + 1) % 2), None)[x == 'qb'], ('kb', u + 1))
                if x == 'ka' and u in (1, 2, 5, 6): mread(u + 2)
                if n + 1 < len(flat) and flat[n + 1][1] == 'kb':
                    if u == 4: q.wait(('kb', u))
                    else: q.wait(('kb', u), ('m', u + 1))
                    if fbase(u + 2)[0] != q.base:
                        a('v_add_u32 %s, 0x10000, %s' % (V(vT16), V(vT16))); q.base += 65536
                for f in ex.pop(n, []): f()
                if (u, x) == (4, 'kb'): q.wait(('m', 5))
            assert not ex, ex
        return mread, at, run
    def head(late):
        a('.p2align 3')
        a((LstepB if late else Lstep) + ':')
        q = Seq(a, vm=['pre']); q.base = 0
        mread, at, run = mk(q)
        a('s_mov_b64 exec, -1')
        if late: q(ldi(VX, sM2a), 'y')
        q.drain(vm=False)
        a('s_barrier')
        st('B0')
        mread(0); mread(1); mread(2)
        kg = opt.get('kg%d' % late, -1)
        if kg < 0: kvm_stores(q, a, KQ, None)[4]()
        else: at(kg, kvm_stores(q, a, KQ, None)[4])
        if not late: at(opt.get('fg', 1), FS)
        at(4, mov2(W3, '0')); at(5, mov2(W3 + 2, '0'))
        if late:
            g = opt.get('gc', 11)
            at(3, lambda: q.wait('pre')); at(7, mov2(YH, '0')); at(8, mov2(YH + 2, '0'))
            wr = ['ds_write_b128 %s, %s offset:%d' % (V(vVb), V(VX + 4 * m, 4), L_MEM + 1024 * m) for m in range(2)]
            if opt.get('nowr'): wr = ['s_nop 0'] * 2
            at(g, lambda: (q.wait('y'), q(wr[0], 'yw'))); at(g + opt.get('gw', 2), wr[1], 'yw')
            for i, x in zip([int(c, 36) for c in opt.get('cg', 'gdefgh')[1:]], chk([VX, VX + 4], vVa)): at(i, x)
            Lr = a.lab('yr'); Lb = a.lab('yb')
            def tail():
                retry(Lr, ldi(VX, sM2a), chk([VX, VX + 4], vVa, 'x'), (17, 0x100))
                a(wr); a('s_waitcnt lgkmcnt(0)'); a('s_branch ' + Lb)
            tails.append(tail)
        q.wait(('m', 0))
        st('m0')
        if late: at(opt.get('gv', 19), lambda: (a('s_cbranch_vccnz ' + Lr), a(Lb + ':')))
        run(0, GJ + 1)
        q.wait('yw')
        return q
    q = head(0)
    lg0 = list(q.lg)
    a('s_branch ' + Ljoin)
    q = head(1)
    assert q.lg == lg0[len(lg0) - len(q.lg):], (q.lg, lg0)
    q.lg = lg0; q.vm = []
    a(Ljoin + ':')
    mread, at, run = mk(q)
    def kxread(kap, tau): q('ds_read_b128 %s, %s offset:%d' % (V(kxr[kap, tau], 4), V(vL16), L_KX + 2048 * kap + 1024 * tau), ('kx', kap, tau))
    at(GB, lambda: (a('s_barrier'), mread(5), st('Bc')))
    at(GB + 1, lambda: mread(6))
    at(opt.get('gx0', 20), ldi(VX, sVXo)[0], 'vx'); at(opt.get('gx1', 21), ldi(VX, sVXo)[1], 'vx')
    at(opt.get('gpf', 25), PF)
    run(GJ + 1, len(flat))
    def pk2(x, y): return [cvt(x, x, y), cvt(x + 1, x + 1, y + 1)]
    def w2(ad, x, o=0): return 'ds_write2_b32 %s, %s, %s offset0:%d offset1:%d' % (V(ad), V(x), V(x + 1), o, o + 16)
    SA, SB, SC_ = W2, W2 + 4, W2 + 8
    def rread(t, slot): q('ds_read_b128 %s, %s offset:%d' % (V(slot, 4), V(vL16), L_MEM + 1024 * KORD[t]), ('r', t))
    kxr.update({(1, 1): SA, (2, 0): R0, (2, 1): SC_, (3, 0): W1, (3, 1): SA})
    rd = frag_read(q, 8, W0, None)
    st('k7')
    a(smf(qa, mem(7), regpos[('q', KORD[7], 0)])); q(rd[0], ('kb', 8))
    a(smf(qb, mem(7), regpos[('q', KORD[7], 1)])); q(rd[1], ('kb', 8)); q.wait(('m', 8))
    a(smf(qa, mem(8), regpos[('q', KORD[8], 0)]))
    a(smf(qb, mem(8), regpos[('q', KORD[8], 1)]))
    pq = pk2(qa, qb)
    vs(6, 0, SA); a('s_nop 0'); a(add(qa, qa, qa + 2))
    vs(6, 1, SA); rread(0, SA); a(add(qa + 1, qa + 1, qa + 3))
    a(smf(ka, mem(7), regpos[('k', KORD[7], 0)])); a(add2(qb, qb))
    a(smf(kb, mem(7), W0 + 8)); q.wait(('kb', 8)); a(pq[0])
    a(smf(ka, mem(8), regpos[('k', KORD[8], 0)])); kxread(1, 0); a(pq[1])
    a(smf(kb, mem(8), W0)); q(w2(vQw, qa), 'w')
    st('p1e')
    wb = [W1, W1 + 8, VX]
    def wo_read(p, hf):
        if fbase(9 + p)[0] != q.base:
            a('v_add_u32 %s, 0x10000, %s' % (V(vT16), V(vT16))); q.base += 65536
        q(frag_read(q, 9 + p, wb[p % 3], None)[hf], ('wo', p))
    vs(7, 0, SB); kxread(0, 0); a(add2(ka, ka))
    vs(7, 1, SB); q.wait(('r', 0))
    a(add2(kb, kb)); a(pk2(ka, kb))
    st('kw')
    if opt.get('kwf', 0):
        vs(0, 0, SA); q(w2(vXw, ka), 'w')
        vs(0, 1, SA); rread(1, SB); a(mov2(Sm, '0'))
        vs(8, 0, SC_); rread(5, SA); a(mov2(Sm + 2, '0'))
        vs(8, 1, SC_); kxread(0, 1)
    else:
        q(w2(vXw, ka), 'w')
        vs(0, 0, SA); rread(1, SB); a(mov2(Sm, '0'))
        vs(0, 1, SA); rread(5, SA); a(mov2(Sm + 2, '0'))
        vs(8, 0, SC_); kxread(0, 1)
        vs(8, 1, SC_)
    q.wait('w')
    a('s_barrier')
    st('B1')
    def qread(k): q('ds_read_b128 %s, %s offset:%d' % (V(W1 + 4 * k, 4), V(vQr), L_Q + 512 * k), ('q', k))
    def xrd(base, dst, tp, name): q('ds_read_b128 %s, %s offset:%d' % (V(dst, 4), V(vXr), base + 2048 * tp), name)
    kmr = [SC_, SB]
    def kmread(tp): xrd(L_KM, kmr[tp], tp, ('km', tp))
    qread(0); q.wait(('r', 1))
    vs(1, 0, SB); qread(1); q.wait(('r', 5))
    vs(1, 1, SB); kmread(0); qread(2)
    vs(5, 0, SA); qread(3)
    vs(5, 1, SA); kxread(1, 1)
    def sx(k, tau):
        q.wait(('q', k), ('kx', k, tau))
        a('v_mfma_f32_16x16x32_bf16 %s, %s, %s, %s' % (V(Sx[tau], 4), V(kxr[k, tau], 4), V(W1 + 4 * k, 4), V(Sx[tau], 4) if k else '0'))
    def sm(tp):
        q.wait(('km', tp), ('q', 2 * tp + 1))
        a(smf(Sm, kmr[tp], W1 + 8 * tp))
    T0, T1, T2, T3, ONE = Sm + 2, Sm + 3, Sm + 1, vPm, R0
    oa, ob, LL = W2, W2 + 4, W2 + 8
    def ex2(x): return 'v_exp_f32 %s, %s' % (V(x), V(x))
    def m16(d, b): return 'v_mfma_f32_16x16x16_bf16 %s, %s, %s, 0' % (V(d, 4), V(vPm, 2), V(b, 2))
    def sm32(d, b): return 'v_smfmac_f32_16x16x32_bf16 %s, %s, %s, %s' % (V(d, 4), V(T0, 2), V(b, 4), V(vIdx))
    cn = [cnd(Sx[0] + r, V(Sx[0] + r), V(Sx[1] + r)) for r in range(4)]
    pm = [cnd(Sm + 1, '0', V(Sm)), cnd(Sm, V(Sm), '0'), cvt(vPm, Sm, Sm + 1)]
    SC = 'v_mul_f32 %s, %s, %s' % (V(Sm), S(sC), V(Sm))
    wacc = [W3, W3 + 4, W0, W0 + 4, W0 + 8, W0 + 12, W2 + 8, W3, W0]
    zer = [mov2(x + 2 * i, '0') for x in wacc[:7] for i in range(2)]
    st('s0')
    sx(0, 0); kmread(1)
    sx(0, 1); a(add2(va, va))
    sx(1, 0); kxread(2, 0); a(cvt(vVa, va, va + 1)); a(add(vb, vb, vb + 2))
    sm(0); kxread(2, 1); kxread(3, 0); a(add(vb + 1, vb + 1, vb + 3))
    sx(1, 1); kxread(3, 1); a(cvt(vVb, vb, vb + 1))
    sm(1); wo_read(0, 1)
    sx(2, 0); a(mov2(ONE, S(sOne, 2))); a(mov2(ONE + 2, S(sOne, 2)))
    sx(2, 1); wo_read(1, 0); a(add2(Sm, Sm))
    sx(3, 0); wo_read(0, 0); a(cnd(Sm, V(Sm), V(Sm + 1))); a(SC)
    sx(3, 1)
    st('Se')
    wo_read(1, 1)
    a(ex2(Sm)); a(zer.pop(0)); a(pm); a(zer.pop(0)); a(zer.pop(0))
    a(cn)
    st('max')
    a(m16(LL, ONE)); q.wait('vx'); a(ex2(Sx[0]))
    a(m16(oa, vVa)); a('s_cmp_eq_u32 %s, 63' % S(sStep)); a(ex2(Sx[0] + 1))
    a(m16(ob, vVb)); a(ex2(Sx[0] + 2)); a(ex2(Sx[0] + 3))
    pk = [cvt(T0, Sx[0], Sx[0] + 1), cvt(T1, Sx[0] + 2, Sx[0] + 3)]
    a(pk)
    a(zer.pop(0)); a(zer.pop(0))
    st('pv')
    for d, b in ((LL, ONE), (oa, VX), (ob, VX + 4)):
        a(sm32(d, b))
        if d == ob: a('s_nop 0')
        elif d == oa: a(zer.pop(0))
        else: a(zer.pop(0)); a(zer.pop(0))
    def norm():
        a(add2(LL, LL))
        for i in range(2): a('v_rcp_f32 %s, %s' % (V(LL + i), V(LL + i)))
        a(add2(oa, oa))
        for i in range(2): a('v_mul_f32 %s, %s, %s' % (V(oa + i), V(oa + i), V(LL + i)))
        a(add2(ob, ob))
        for i in range(2): a('v_mul_f32 %s, %s, %s' % (V(ob + i), V(ob + i), V(LL + i)))
        a(pk2(oa, ob))
    OW = w2(vXw, oa, 128)
    norm()
    q(OW, 'ow')
    R = opt.get('rng', 60)
    for i in range(2): a('v_subrev_u32 %s, 0x%x, %s' % (V(LL + i), (127 - R) << 23, V(LL + i)))
    st('ow')
    a('v_max_u32 %s, %s, %s' % (V(LL), V(LL), V(LL + 1)))
    a('v_cmp_lt_u32 vcc, 0x%x, %s' % ((2 * R) << 23, V(LL)))
    a('s_cbranch_scc1 ' + Lexit)
    Lmx = a.lab('mx'); Lmb = a.lab('mxb')
    PW = vPm
    zer = zer[:4] + p1w_addr(PW, LL) + zer[4:]
    wo01 = frag_read(q, 9, wb[0], None) + frag_read(q, 10, wb[1], None)
    def true_max():
        def mx3(d, x, y, z): return 'v_max3_f32 %s, %s, %s, %s' % (V(d), V(x), V(y), V(z))
        a(Lmx + ':')
        if stamp: a('s_add_u32 s17, s17, 0x100')
        a('s_waitcnt lgkmcnt(0)')
        for k in range(4): a('ds_read_b128 %s, %s offset:%d' % (V(W1 + 4 * k, 4), V(vQr), L_Q + 512 * k))
        a(mov2(Sm, '0')); a(mov2(Sm + 2, '0'))
        for k in range(5):
            for tau in range(2):
                if k < 4: a('ds_read_b128 %s, %s offset:%d' % (V(W2 + 4 * tau, 4), V(vL16), L_KX + 2048 * k + 1024 * tau))
                else: a('ds_read_b128 %s, %s offset:%d' % (V(W2 + 4 * tau, 4), V(vXr), L_KM + 2048 * tau))
            a('s_waitcnt lgkmcnt(0)')
            for tau in range(2):
                if k < 4: a('v_mfma_f32_16x16x32_bf16 %s, %s, %s, %s' % (V(Sx[tau], 4), V(W2 + 4 * tau, 4), V(W1 + 4 * k, 4), V(Sx[tau], 4) if k else '0'))
                else: a(smf(Sm, W2 + 4 * tau, W1 + 8 * tau))
        a(wo01)
        a(mov2(ONE, S(sOne, 2))); a(mov2(ONE + 2, S(sOne, 2))); a('s_nop 1')
        a(add2(Sm, Sm))
        for i in range(2): a('v_mul_f32 %s, %s, %s' % (V(Sm + i), S(sC), V(Sm + i)))
        a('v_max_f32 %s, %s, %s' % (V(T0), V(Sm), V(Sm + 1))); a(cnd(Sm, V(Sm), V(Sm + 1)))
        for i in range(3): a(mx3(T0, T0, Sx[0] + 2 * i, Sx[0] + 2 * i + 1))
        a(mx3(T1, T0, Sx[1] + 2, Sx[1] + 3)); a(mx3(T2, T0, Sx[1] + 2, Sx[1] + 3))
        a(cn[:2])
        a('v_permlane16_swap_b32 %s, %s' % (V(T1), V(T2)))
        a('v_max_f32 %s, %s, %s' % (V(T0), V(T1), V(T2)))
        a('v_max_f32 %s, %s, %s' % (V(T3), V(T1), V(T2)))
        a(cn[2:])
        a('v_permlane32_swap_b32 %s, %s' % (V(T0), V(T3)))
        a('v_max_f32 %s, %s, %s' % (V(T0), V(T0), V(T3)))
        vals = [Sm] + [Sx[0] + r for r in range(4)]
        for x in vals: a('v_sub_f32 %s, %s, %s' % (V(x), V(x), V(T0)))
        for x in vals: a(ex2(x))
        a(pm); a(pk)
        a(m16(LL, ONE)); a(m16(oa, vVa)); a(m16(ob, vVb))
        a(sm32(LL, ONE)); a(sm32(oa, VX)); a(sm32(ob, VX + 4)); a('s_nop 0')
        norm()
        a(OW)
        for i in range(8): a(mov2(W0 + 2 * i, '0'))
        a('s_waitcnt lgkmcnt(0)')
        a('s_branch ' + Lmb)
    tails.append(true_max)
    sal = [sadd(sKXo, 0x80000), sxor(sTag, 1), sadd(sVXo, 0x80000), sadd(sKVM, 0x20000),
           's_cmp_lt_u32 %s, 61' % S(sStep), 's_cselect_b32 %s, 0x80000, 0' % S(sTmp), 's_add_u32 %s, %s, %s' % (S(sPF), S(sPF), S(sTmp)),
           's_add_u32 %s, %s, 1' % (S(sStep), S(sStep)), 's_add_u32 %s, %s, 2' % (S(sTm2), S(sStep)), 's_min_u32 %s, %s, 64' % (S(sTm2), S(sTm2))] + [sxor(x) for x in TOGGLE]
    ords = [0, 1]
    kxl = [0, 1]
    def kxd(): q('buffer_load_dwordx4 %s, %s, %s offen offset:%d sc1 lds' % (V(vL16), WS, S(sKXo), 1024 * kxl.pop(0)), 'kxd')
    def warm(pat):
        for c in pat:
            if c == 'v': a(zer.pop(0))
            elif c == 's': a(sal.pop(0))
            elif c == 'w': wo_read(2, 0); wo_read(2, 1)
            elif c == 'r': tp = ords.pop(0); xrd(L_O, W2 + 4 * tp, tp, ('oa', tp))
            elif c == 'x': wo_read(2, 0)
            elif c == 'y': wo_read(2, 1)
            elif c == 'd': kxd()
            elif c == 'k': a('v_mov_b32 %s, 0' % V(vZero))
            elif c == 'b': a('s_cbranch_vccnz ' + Lmx); a(Lmb + ':')
    warm(opt.get('wa', 'vvvvb'))
    q.wait('ow')
    warm(opt.get('wm', 'v'))
    a('s_barrier')
    st('B2')
    warm(opt.get('wb', 'rvrxvysvssvsv'))
    def fin(p):
        x = wacc[p]
        def tag(d): return 'v_and_or_b32 %s, %s, -2, %s' % (V(d), V(d), S(sTag))
        if p == 0:
            return add2(x, x) + [cvt(x + 1, x + 1, x + 1), cvt(x, x, x), tag(x + 1),
                    'buffer_store_dwordx2 %s, %s, %s, %s offen %s' % (V(x, 2), V(PW), WS, S(sP1w + 2), sf)]
        if p % 2: return add2(x, x)
        y = wacc[p - 1]; r = p // 2 - 1
        return add2(x, x) + [cvt(y + 1, y + 1, x + 1), cvt(y, y, x), tag(y + 1),
                'buffer_store_dwordx2 %s, %s, %s, %s offen offset:%d %s' % (V(y, 2), V(PW), WS, S(sP1w + r // 2), 2048 * (r % 2), sf)]
    order = [(0, 0)]
    for p in range(1, 9): order += [(p, 0), (p - 1, 1)]
    order += [(8, 1)]
    F = [fin(p) for p in range(9)]
    rz = {p: [mov2(wacc[p] + 2 * i, '0') for i in range(2)] for p in (7, 8)}
    ws_ = opt.get('ws', 1)
    if ws_ == 0:
        vw = {4: F[0][:2], 5: F[0][2:4], 6: F[0][4:5] + F[1], 7: rz[7], 8: F[2][:2], 9: F[2][2:4], 10: F[2][4:5] + F[3], 11: rz[8],
              12: F[4][:2], 13: F[4][2:5], 14: F[5][:1], 15: F[5][1:], 16: F[6][:2]}
        sw = {7: F[0][5], 11: F[2][5], 14: F[4][5]}
    else:
        vw = {4: F[0][:3], 5: F[0][3:5], 6: F[1], 7: rz[7], 8: F[2][:3], 9: F[2][3:5], 10: F[3], 11: rz[8],
              12: F[4][:3], 13: F[4][3:5], 14: F[5][:1], 15: F[5][1:], 16: F[6][:2]}
        sw = {6: F[0][5], 10: F[2][5], 14: F[4][5]}
    if opt.get('r2', 0): vw[16] = F[6][:5]
    kxg = [int(c) for c in str(opt.get('kxg', 'g02'))[1:]]
    q.wait(('oa', 0))
    st('wo0')
    for n, (p, tp) in enumerate(order):
        tl = WO_ORDER[p]
        k = 0
        st('w%d' % n)
        if tp == 0: a(smf(wacc[p], W2, regpos[('o', 0, tl)]))
        else: a(smf(wacc[p], W2 + 4, wb[p % 3] if p < 8 else regpos[('o', 1, tl)]))
        if n == 17: break
        if ws_ == 0:
            if tp and p < 5: wo_read(p + 3, 0); wo_read(p + 3, 1); k = 2
        elif 2 <= n < 12: wo_read(n // 2 + 2, n % 2); k = 1
        if n in sw: q(sw[n], 'p1'); k += 2
        if n in kxg and kxl: kxd(); k += 2
        if order[n + 1][1] == 1: k += q.wait(('oa', 1), ('wo', order[n + 1][0]))
        while k < 2 and sal: a(sal.pop(0)); k += 1
        if zer: a(zer.pop(0))
        if n == 3:
            a('v_add_u32 %s, 0x10000, %s' % (V(vT16), V(vT16))); q.base += 65536
        if k == 0: a('s_nop 0')
        a(vw.get(n, []))
    assert not zer
    pend = F[6][2:] + F[7] + ['s_nop 0'] + F[8]
    if opt.get('r2', 0): pend = F[6][5:] + ['s_nop 0'] + F[7] + ['s_nop 2'] + F[8]
    SEL, X, D, XH, DH = W1 + 8, W1, W1 + 12, W0, W0 + 8
    MA, HA, LA, C, TT, NEG = W2, W2 + 1, W2 + 2, W2 + 3, W2 + 6, W2 + 7
    sal_left = list(sal)
    a('s_cmp_eq_u32 s4, 0')
    n8 = len(F[8])
    a(pend[:-n8])
    if opt.get('wn', 0): a('s_nop %d' % (opt['wn'] - 1))
    a(pend[-n8:])
    st('Woe')
    def red(d, x, m): return 'v_mfma_f32_16x16x32_bf16 %s, %s, %s, %s' % (V(d, 4), V(SEL, 4), V(x + 4 * m, 4), V(d, 4) if m else '0')
    def tchk(quads, x=''):
        o = []
        for i, r in enumerate(quads):
            o.append('v_bitop3_b32 %s, %s, %s, %s bitop3:0x7e' % (V(C + min(i, 1) + (i == 2)), V(r + 1), V(r + 3), S(sTag)))
            if i == 2: o.append('v_or3_b32 %s, %s, %s, %s' % (V(C), V(C), V(C + 1), V(C + 2)))
        return o + ['v_bitop3_b32 %s, %s, 1, %s bitop3:0xc8' % (V(C), V(C), V(C + 1)), 'v_cmp%s_ne_u32 vcc, 0, %s' % (x, V(C))]
    def ror(d, n): return 'v_add_f32_dpp %s, %s, %s row_ror:%d row_mask:0xf bank_mask:0xf' % (V(d), V(d), V(d), n)
    def pub(d, ad, so): return [cvt(d, d, d + 1), 'buffer_store_dword %s, %s, %s, %s offen %s' % (V(d), V(ad), WS, S(so), sf)]
    lates = []
    def misc():
        a(sal_left)
        a('v_mov_b32 %s, 0x3f80' % V(SEL + 3))
        a(cnd(SEL + 3, V(SEL + 3), '1.0', sOdd))
        a([cnd(SEL + r, '0', V(SEL + 3), sSel + 2 * r) for r in range(4)])
        a(m2_addr(MA, TT))
        a('v_subrev_u32 %s, 0x20000, %s' % (V(vT16), V(vT16)))
        a('v_mov_b32 %s, -1' % V(NEG))
        a('v_add_u32 %s, %s, %s' % (V(LA), S(sM2b), V(vL16)))
        for f in kvm_stores(Seq(a), a, KQ, TT)[:4]: f()
        a(mov2(W3 + 4, '0')); a(mov2(W3 + 6, '0'))
    def kb01():
        qq = Seq(a); qq.base = 0
        a(frag_read(qq, 0, W0, None)); a(frag_read(qq, 1, W0 + 8, None))
    def hop2(w, pol):
        hx = w == 0
        quads = [YH] if w == 2 else [VX, VX + 4]
        lds = ldi(YH, sM2c, 1) if w == 2 else ldi(VX, sM2a)
        a('buffer_store_dword %s, %s, %s, %s offen %s' % (V(NEG), V(MA), WS, S(sM2x), sf))
        if hx: a('buffer_store_dword %s, %s, %s, %s offen %s' % (V(NEG), V(HA), WS, S(sM2xh), sf))
        a('v_cmp_gt_u32 vcc, %s, %s' % (S(sTm2), V(vDum)))
        if hx: kb01()
        for i in range(8): a(mov2(W1 + 2 * i, '0'))
        Lf = a.lab('fok'); Lfw = a.lab('fw'); L2 = a.lab('p2')
        a('s_cmp_lg_u32 vcc_hi, 0')
        a('s_cbranch_scc1 ' + Lfw)
        a(Lf + ':')
        lates.append((Lfw, Lf))
        a(step_addrs()[:3 if w >= 2 else 7])
        if w >= 2: a('v_mov_b32 %s, %s' % (V(vVb), V(LA)))
        if w == 3:
            if opt.get('diag') == 1:
                a('s_memtime s[90:91]'); a('s_memrealtime s[92:93]'); a('s_lshl_b32 s94, %s, 3' % S(sStep)); a('v_mov_b32 %s, s94' % V(W2 + 10)); a('s_waitcnt lgkmcnt(0)')
                a('v_mov_b32 %s, s90' % V(W2 + 8)); a('v_mov_b32 %s, s92' % V(W2 + 9)); a('ds_write_b64 %s, %s offset:23552' % (V(W2 + 10), V(W2 + 8, 2)))
            a('s_waitcnt vmcnt(0)'); delay(pol[0])
            st('h2e'); a('s_branch ' + LstepB); return
        d, sp, dep = pol
        delay(d)
        for i in range(dep - 1): a(lds); delay(sp)
        a(L2 + ':')
        for u in range(3):
            a(lds)
            if stamp: a('s_add_u32 s17, s17, 1')
            a('s_waitcnt vmcnt(%d)' % (len(lds) * (dep - 1)))
            c = chk(quads, C, 'x')
            a(c[:-1])
            if w == 2: a('ds_write_b128 %s, %s offset:%d' % (V(vL16), V(YH, 4), L_MEM + 8192))
            else:
                for m in range(2): a('ds_write_b128 %s, %s offset:%d' % (V(LA), V(quads[m], 4), L_MEM + 1024 * m))
            a(c[-1])
            st('h2e')
            a('s_cbranch_execz ' + (LstepB if w == 2 else Lstep))
        a('s_sub_u32 %s, %s, 1' % (S(sSpin), S(sSpin)))
        a('s_cbranch_scc0 ' + L2)
        a('s_endpgm')
    def reduce1(ins):
        Lr = a.lab('r1'); Lr2 = a.lab('r2'); Lb = a.lab('b1')
        def attempt(x, young, L):
            a('s_waitcnt vmcnt(%d)' % (young + 1)); a(red(D, x, 0))
            a('s_waitcnt vmcnt(%d)' % young); a(red(D, x, 1))
            st('got1')
            a(tchk([x, x + 4]))
            a('s_nop 3')
            a(ror(D, 4)); a(ror(D + 1, 4))
            a('s_cbranch_vccnz ' + L)
            a(ror(D, 8)); a(ror(D + 1, 8))
            a(pub(D, MA, sM2w))
        attempt(X, 2 * ins, Lr2 if ins else Lr)
        a(Lb + ':')
        st('pub')
        def tail():
            x = VX if ins else X
            if ins:
                a(Lr2 + ':')
                if stamp: a('s_add_u32 s17, s17, 0x100')
                attempt(VX, 0, Lr)
                a('s_branch ' + Lb)
            retry(Lr, ldi(x, sP1r), tchk([x, x + 4], 'x'), (16, 1))
            a('s_nop 2')
            a(red(D, x, 0)); a(red(D, x, 1)); a('s_nop 7')
            a(ror(D, 4)); a(ror(D + 1, 4)); a('s_nop 0'); a(ror(D, 8)); a(ror(D + 1, 8))
            a(pub(D, MA, sM2w))
            if not ins: a('s_waitcnt vmcnt(1)')
            a('s_branch ' + Lb)
        tails.append(tail)
    def P(w, dflt):
        return [int(x) for x in str(opt.get('p%d' % w, dflt)).split('.')]
    LH = a.lab('wH'); Lw = {w: a.lab('w') for w in (1, 2)}
    a('s_cbranch_scc1 ' + LH)
    a('s_cmp_eq_u32 s4, 1'); a('s_cbranch_scc1 ' + Lw[1])
    a('s_cmp_eq_u32 s4, 2'); a('s_cbranch_scc1 ' + Lw[2])
    for w in (3, 2, 1):
        p = P(w, {1: '2.0.5.0.17.24.2', 2: '1.0.28.1.8.24.2', 3: '0.0.28.1.44.0.0'}[w])
        if w < 3: a(Lw[w] + ':')
        if p[3]: misc(); kb01()
        a('s_waitcnt vmcnt(%d)' % p[0])
        delay(p[1])
        st('ack1')
        a(ldi(X, sP1r))
        if not p[3]: misc(); kb01()
        if p[2]: delay(p[2] - 1); a(ldi(VX, sP1r))
        reduce1(1 if p[2] else 0)
        hop2(w, p[4:])
    p = P(0, '3.8.0.0.11.24.2')
    a(LH + ':')
    st('pre1')
    a(h_addr(HA, TT))
    a('s_waitcnt vmcnt(%d)' % p[0]); delay(p[1])
    st('ack1')
    ld3 = ldi(XH, sP1h) + ldi(X, sP1r)
    a(ld3)
    misc()
    Lr = a.lab('r1'); Lb = a.lab('b1')
    quads = [X, X + 4, XH, XH + 4]
    a('s_waitcnt vmcnt(2)'); a(red(DH, XH, 0)); a(red(DH, XH, 1))
    a('s_waitcnt vmcnt(1)'); a(red(D, X, 0))
    a('s_waitcnt vmcnt(0)'); a(red(D, X, 1))
    st('got1')
    a(tchk(quads))
    def fin3(br):
        a(ror(DH + 1, 4)); a(ror(D, 4)); a(ror(D + 1, 4))
        a(ror(DH + 1, 8)); a(ror(D, 8)); a(ror(D + 1, 8))
        if br: a('s_cbranch_vccnz ' + Lr)
        a(pub(D, MA, sM2w))
        a('v_mov_b32_dpp %s, %s quad_perm:[1,0,3,2] row_mask:0xf bank_mask:0xf' % (V(DH + 2), V(DH + 1)))
        a(pub(DH + 1, HA, sM2wh))
    fin3(1)
    a(Lb + ':')
    st('pub')
    hop2(0, p[4:])
    retry(Lr, ld3, tchk(quads, 'x'), (16, 1))
    a('s_nop 2')
    a(red(DH, XH, 0)); a(red(DH, XH, 1)); a(red(D, X, 0)); a(red(D, X, 1)); a('s_nop 6')
    fin3(0)
    a('s_waitcnt vmcnt(2)')
    a('s_branch ' + Lb)
    for t_ in tails: t_()
    for Lfw, Lf in lates:
        a(Lfw + ':')
        wait_flag(a, S(sFPB), S(sTm2), 'pb')
        a('s_branch ' + Lf)
    a(Lfail + ':')
    a('s_endpgm')

def chain(a, opt, flags_ready, wflags='nt', stamp=None, stamp_once=None, force_slow=False):
    srd(a, 8, 'B_wq'); srd(a, 12, 'B_wk'); srd(a, 16, 'B_wv'); srd(a, 24, 'B_wo'); srd(a, 28, 'dbg'); srd(a, 32, 'B_mem0')
    setup(a)
    a('s_waitcnt lgkmcnt(0)')
    load_weights(a, wflags, arrive, (8, opt.get('cL', 57)), early(a, opt, flags_ready))
    if stamp_once: stamp_once(a, 1)
    start(a, (lambda: stamp_once(a, 2)) if stamp_once else None)
    Lslow = a.lab('slow'); Lexit = a.lab('chexit')
    if force_slow: a('s_branch ' + Lslow)
    a('s_cbranch_scc0 ' + Lslow)
    step_loop(a, '', Lexit, opt, stamp)
    a(Lslow + ':')
    step_loop(a, 'sc1', Lexit, opt, stamp)
    a(Lexit + ':')
    q = Seq(a)
    a('s_add_u32 %s, %s, 0x10000' % (S(sKVM), S(sKVM)))
    for f in kvm_stores(q, a, W3, vPm): f()
    a('s_waitcnt vmcnt(0) lgkmcnt(0)')
    a('s_barrier')
    a('v_subrev_u32 %s, 0x10000, %s' % (V(vT16), V(vT16)))
    a('v_min_u32 %s, 16, %s' % (V(vT16), V(vT16))); a('v_lshlrev_b32 %s, 24, %s' % (V(vT16), V(vT16)))
    a('v_mov_b32 %s, 64' % V(vPm))
    a('buffer_store_dword %s, %s, %s, %s offen sc1' % (V(vPm), V(vT16), WS, S(sFCH)))
    if opt.get('diag') == 1:
        a('v_lshrrev_b32 v20, 1, %s' % V(vL16)); a('ds_read_b64 v[22:23], v20 offset:23552')
        a('s_lshl_b32 s94, %s, 9' % S(sH)); a('s_add_u32 s94, s94, 0x%x' % (WS_STAMP + 0x10000)); a('s_waitcnt lgkmcnt(0)')
        a('buffer_store_dwordx2 v[22:23], v20, %s, s94 offen' % WS)
```

```python
import sys, os
from common import *
import pstream as P, chain as C, att as T, qb as Q, ostream as O, hazard

def gen(opt, name):
    a = Asm()
    diag = opt.get('diag')
    perm = [int(c) for c in str(opt.get('perm', 'p02145673'))[1:]]
    ROLE = sum(r << (4 * i) for i, r in enumerate(perm))
    def stamp(a, idx, v=20, who='x'):
        if not diag: return
        if diag == 2:
            slot = {(0, 'x'): 4, (1, 'c'): 6, (2, 'c'): 7, (7, 'c'): 8, (7, 'x'): 9, (1, 'x'): 10, (2, 'x'): 11, (5, 'x'): 12, (6, 'x'): 13}.get((idx, who))
            if slot is None: return
            a('s_load_dwordx2 s[84:85], s[0:1], 112'); a('s_memrealtime s[96:97]'); a('s_mov_b32 s86, 256'); a('s_mov_b32 s87, 0x20000'); a('s_waitcnt lgkmcnt(0)')
            a('v_mbcnt_lo_u32_b32 v%d, -1, s4' % (v + 2)); a('v_min_u32 v%d, 1, v%d' % (v + 2, v + 2)); a('v_lshlrev_b32 v%d, 28, v%d' % (v + 2, v + 2))
            a('v_mov_b32 v%d, s96' % v); a('v_not_b32 v%d, v%d' % (v + 1, v))
            a('buffer_atomic_umax v%d, v%d, s[84:87], 0 offen offset:%d' % (v, v + 2, 4 * slot))
            if idx == 0: a('buffer_atomic_umax v%d, v%d, s[84:87], 0 offen offset:%d' % (v + 1, v + 2, 4 * slot + 4))
            return
        a('s_memrealtime s[96:97]'); a('s_memtime s[98:99]'); a('s_waitcnt lgkmcnt(0)')
        a('v_mov_b32 v%d, s98' % v); a('v_mov_b32 v%d, s96' % (v + 1))
        a('s_lshl_b32 s96, s2, 6'); a('s_add_u32 s96, s96, %d' % (WS_STAMP + idx * 8))
        a('v_mov_b32 v%d, 0' % (v + 2))
        a('buffer_store_dwordx2 v[%d:%d], v%d, s[20:23], s96 offen' % (v, v + 1, v + 2))
    def far(cond, lab):
        a('s_cbranch_%s %s' % (cond, lab))
    def rho_check(a, v=20, loaded=False):
        L = a.lab('rh'); Lc = a.lab('rhc'); Lok = a.lab('rhk')
        if loaded: a('s_branch ' + Lc)
        a(L + ':')
        a(rho_load(v)); a('s_waitcnt vmcnt(0)')
        a(Lc + ':')
        a('v_readfirstlane_b32 s89, v%d' % v)
        a('s_cmp_eq_u32 s89, s88'); a('s_cbranch_scc1 ' + Lok)
        a('s_cmp_lg_u32 s89, 0'); a('s_cbranch_scc1 Lredo')
        a('s_sub_u32 s95, s95, 1'); a('s_cbranch_scc0 ' + L)
        a('s_endpgm')
        a(Lok + ':')
    def rho_load(v):
        return ['v_mbcnt_lo_u32_b32 v%d, -1, 0' % (v + 1), 'v_min_u32 v%d, 1, v%d' % (v + 1, v + 1), 'v_lshlrev_b32 v%d, 28, v%d' % (v + 1, v + 1),
                'buffer_load_dword v%d, v%d, s[28:31], 0 offen offset:4 sc1' % (v, v + 1)]
    def flags_ready(a, v=20, gate=False):
        L = a.lab('fr'); Lok = a.lab('frk')
        rho_check(a, v)
        a('s_cmp_lg_u32 s4, 0'); a('s_cbranch_scc1 ' + Lok)
        a('v_min_u32 v%d, 1, v0' % (v + 1)); a('v_lshlrev_b32 v%d, 28, v%d' % (v + 1, v + 1))
        a(L + ':')
        a('buffer_load_dword v%d, v%d, s[28:31], 0 offen offset:%d sc1' % (v, v + 1, 128 if gate else 0))
        a('s_waitcnt vmcnt(0)')
        a('v_cmp_eq_u32 vcc, %d, v%d' % (1, v))
        a('s_cbranch_vccnz ' + Lok)
        if gate: a('s_sleep 12')
        a('s_sub_u32 s95, s95, 1'); a('s_cbranch_scc0 ' + L)
        a('s_endpgm')
        a(Lok + ':')
    def flag_lane(off_code):
        a(off_code)
        a('v_min_u32 v1, 1, v0'); a('v_lshlrev_b32 v1, 28, v1'); a('v_add_u32 %s, s7, v1' % V(P.vFlagOff))
    def ps_pre(a): flags_ready(a); stamp(a, 1)
    def ps_gate(a): flags_ready(a, gate=opt.get('usegate', 1)); stamp(a, 1)
    xf, wf = opt.get('xf', ''), opt.get('wf', '')
    a('s_cmp_ge_u32 s2, 256'); far('scc1', 'Lend')
    srd(a, 20, 'ws'); srd(a, 28, 'dbg')
    a('v_lshrrev_b32 v1, 6, v0')
    a('s_lshr_b32 s6, s2, 3')
    a('v_readfirstlane_b32 s4, v1')
    a('s_getreg_b32 s73, hwreg(HW_REG_XCC_ID, 0, 3)')
    a('s_sub_u32 s88, s73, s2'); a('s_and_b32 s88, s88, 7'); a('s_add_u32 s88, s88, 1')
    if opt.get('norot'): a('s_mov_b32 s88, 1')
    a('s_mov_b32 s95, 0x%x' % SPIN)
    a('s_waitcnt lgkmcnt(0)')
    a('s_cmp_eq_u32 s2, 0'); a('s_cbranch_scc0 Lrole')
    a('v_min_u32 v1, 1, v0'); a('v_lshlrev_b32 v1, 28, v1'); a('v_mov_b32 v2, s88')
    a('buffer_store_dword v2, v1, s[28:31], 0 offen offset:4 sc1')
    a('Lrole:')
    a('s_add_u32 s5, s2, s88'); a('s_sub_u32 s5, s5, 1'); a('s_and_b32 s5, s5, 7')
    a('s_lshl_b32 s5, s5, 2'); a('s_lshr_b32 s5, 0x%x, s5' % ROLE); a('s_and_b32 s5, s5, 7')
    stamp(a, 0)
    if opt.get('tlb', 0):
        a('s_cmp_eq_u32 s4, 3'); a('s_cbranch_scc0 Ltlb')
        a('v_and_b32 v1, 63, v0'); a('v_lshlrev_b32 v1, 21, v1'); a('s_lshl_b32 s7, s6, 14')
        a('buffer_load_dword v254, v1, s[20:23], s7 offen sc1')
        a('Ltlb:')
    if opt.get('cpf', 0):
        a('s_getpc_b64 s[8:9]'); a('Lpc:')
        a('s_lshl_b32 s7, s6, 13'); a('s_cmp_le_u32 s7, Lend - Lpc'); a('s_cselect_b32 s3, s4, 1')
        a('s_cmp_eq_u32 s3, 0'); a('s_cbranch_scc0 Lcpf')
        a('v_lshl_add_u32 v1, v0, 7, s7'); a('v_min_u32 v1, Lend - Lpc, v1')
        a('global_load_dword v255, v1, s[8:9]')
        a('Lcpf:')
    a('s_cmp_eq_u32 s5, 0'); far('scc1', 'Lchain')
    a('s_cmp_eq_u32 s5, 1'); far('scc1', 'Lpb')
    a('s_cmp_lt_u32 s5, 4'); far('scc1', 'Lqa')
    srd(a, 8, 'A_ckv'); srd(a, 12, 'A_wuk'); srd(a, 16, 'A_wuv')
    a('s_sub_u32 s3, s5, 4'); a('s_lshl_b32 s3, s3, 3'); a('s_lshr_b32 s7, s6, 2'); a('s_add_u32 s3, s3, s7')
    a('s_lshl_b32 s32, s3, 8'); a('s_mov_b32 s33, s32')
    a('s_lshl_b32 s34, s3, 14'); a('s_add_u32 s34, s34, 0x%x' % WS_KVA); a('s_add_u32 s35, s34, 8192')
    a('s_mov_b32 s36, 16'); a('s_and_b32 s37, s6, 3')
    flag_lane(['s_lshl_b32 s7, s3, 5', 's_add_u32 s7, s7, s37', 's_lshl_b32 s7, s7, 2', 's_add_u32 s7, s7, 0x%x' % FLAG(FL_PA)])
    a('s_waitcnt lgkmcnt(0)')
    P.pstream(a, 512, 'kv', 16384 * 32, P.default_next(4), xflags=xf, wflags=wf, pre_loop=ps_gate, xpf=opt.get('xpf', 1), flag='end')
    stamp(a, 2)
    a('s_mov_b32 s32, s3'); a('s_and_b32 s33, s6, 3'); a('s_sub_u32 s34, 7, s33')
    def att_wait(a):
        L = a.lab('aw'); Lok = a.lab('awk')
        a('s_lshl_b32 s7, s3, 7'); a('s_add_u32 s7, s7, 0x%x' % FLAG(FL_PA))
        a('s_lshr_b32 s94, s3, 1'); a('s_lshl_b32 s94, s94, 7'); a('s_add_u32 s94, s94, 0x%x' % FLAG(FL_QA))
        a('v_mov_b32 v8, 0')
        a(L + ':')
        a('buffer_load_dwordx4 v[16:19], v8, s[20:23], s7 offen sc1')
        a('buffer_load_dwordx4 v[20:23], v8, s[20:23], s94 offen sc1')
        a('s_waitcnt vmcnt(0)')
        a('v_min3_u32 v16, v16, v17, v18'); a('v_min3_u32 v16, v16, v19, v20'); a('v_min3_u32 v16, v16, v21, v22'); a('v_min_u32 v16, v16, v23')
        a('v_cmp_le_u32 vcc, 16, v16')
        a('s_cbranch_vccnz ' + Lok)
        a('s_sleep 2')
        a('s_sub_u32 s95, s95, 1'); a('s_cbranch_scc0 ' + L)
        a('s_endpgm')
        a(Lok + ':')
    T.att(a, att_wait, opt, (lambda a, i: stamp(a, i, 8)))
    stamp(a, 5)
    a('s_cmp_ge_u32 s6, 27'); far('scc1', 'Lfin')
    srd(a, 8, 'A_wo')
    a('s_mul_i32 s7, s6, 29'); a('s_lshr_b32 s7, s7, 8'); a('s_mul_i32 s94, s7, 9')
    a('s_sub_u32 %s, s6, s94' % S(O.sCs))
    a('s_mul_i32 %s, s7, 3' % S(O.sRot0))
    a('s_lshl_b32 s7, s7, 2'); a('s_add_u32 s7, s7, s5'); a('s_sub_u32 %s, s7, 4' % S(O.sT0))
    a('s_mov_b32 %s, 12' % S(O.sDT)); a('s_cmp_lt_u32 %s, 4' % S(O.sT0)); a('s_cselect_b32 %s, 6, 5' % S(O.sN))
    a('s_mov_b32 %s, 0x%x' % (S(O.sCtx), WS_CTXA)); a('s_mov_b32 %s, 0' % S(O.sOcol))
    a('s_lshl_b32 %s, s4, 5' % S(O.sFb)); a('s_add_u32 %s, %s, 0x%x' % (S(O.sFb), S(O.sFb), FLAG(FL_AT)))
    a('s_mov_b32 %s, 0' % S(O.sDX))
    a('s_mov_b32 s93, 0x38'); a('s_mov_b32 s92, 7'); a('s_mov_b32 s91, 4'); a('s_mov_b32 s90, 31')
    a('s_branch Los')
    a('Lpb:')
    srd(a, 8, 'B_x'); srd(a, 12, 'B_wk'); srd(a, 16, 'B_wv')
    a('s_lshl_b32 s32, s6, 8'); a('s_mov_b32 s33, s32')
    a('s_lshl_b32 s34, s6, 14'); a('s_add_u32 s34, s34, 0x%x' % WS_KVB); a('s_add_u32 s35, s34, 8192')
    a('s_mov_b32 s36, 64'); a('s_mov_b32 s37, 0')
    flag_lane(['s_lshl_b32 s7, s6, 7', 's_add_u32 s7, s7, 0x%x' % FLAG(FL_PB)])
    a('s_waitcnt lgkmcnt(0)')
    P.pstream(a, 576, 'kv', 16384 * 32, P.default_next(1), xflags=xf, wflags=wf, pre_loop=ps_pre, xpf=opt.get('xpf', 1), soon=opt.get('soon', 1), kscale=1)
    a('s_branch Lfin')
    a('Lqa:')
    srd(a, 8, 'A_x'); srd(a, 12, 'A_wq'); srd(a, 16, 'A_wq')
    a('s_lshl_b32 s7, s5, 5'); a('s_add_u32 s7, s7, s6'); a('s_cmp_eq_u32 s7, %d' % (3 * 32 + 31)); a('s_cbranch_scc0 Lqa1')
    rho_check(a, 4)
    for i in range(4): a('v_mov_b32 v%d, 0' % (4 + i))
    a('v_lshlrev_b32 v1, 4, v0')
    for i in range(5):
        a('s_mov_b32 s7, %d' % (WS_FLAGS + 4096 * i))
        a('buffer_store_dwordx4 v[4:7], v1, s[20:23], s7 offen sc1')
    a('v_min_u32 v1, 1, v0'); a('v_lshlrev_b32 v1, 28, v1'); a('v_mov_b32 v2, 1')
    a('s_waitcnt vmcnt(0)'); a('s_barrier')
    a('buffer_store_dword v2, v1, s[28:31], 0 offen sc1')
    a('Lqa1:')
    a('s_sub_u32 s3, s5, 2'); a('s_lshl_b32 s3, s3, 3'); a('s_lshr_b32 s7, s6, 2'); a('s_add_u32 s3, s3, s7')
    a('s_lshl_b32 s32, s3, 9'); a('s_add_u32 s33, s32, 256')
    a('s_lshl_b32 s34, s3, 14'); a('s_add_u32 s34, s34, 0x%x' % WS_QA); a('s_add_u32 s35, s34, 8192')
    a('s_mov_b32 s36, 16'); a('s_and_b32 s37, s6, 3')
    flag_lane(['s_lshl_b32 s7, s3, 5', 's_add_u32 s7, s7, s37', 's_lshl_b32 s7, s7, 2', 's_add_u32 s7, s7, 0x%x' % FLAG(FL_QA)])
    a('s_waitcnt lgkmcnt(0)')
    P.pstream(a, 576, 'qq', 8192 * 32, P.default_next(4), xflags=xf, wflags=wf, pre_loop=ps_gate, xpf=opt.get('xpf', 1), flag='end')
    stamp(a, 2)
    a('s_sub_u32 s3, s5, 2')
    a('s_add_u32 s7, s6, s3'); a('s_cmp_ge_u32 s7, 30'); far('scc1', 'Lfin')
    a('s_cmp_ge_u32 s6, 16'); far('scc1', 'Lob')
    srd(a, 8, 'B_x'); srd(a, 12, 'B_wq'); srd(a, 16, 'B_wq')
    a('s_lshl_b32 s32, s6, 9'); a('s_add_u32 s33, s32, 256')
    a('s_mov_b32 s36, 32'); a('s_mov_b32 s37, s3')
    a('s_lshl_b32 %s, s6, 1' % S(Q.sHm))
    a('s_lshl_b32 s7, s3, 4'); a('s_add_u32 s7, s7, s6'); a('s_and_b32 s94, s7, 3'); a('s_lshr_b32 s7, s7, 2'); a('s_lshl_b32 s7, s7, 5')
    a('s_add_u32 s7, s7, s94'); a('s_lshl_b32 s7, s7, 2'); a('s_add_u32 %s, s7, 0x%x' % (S(Q.sFq), FLAG(FL_QB)))
    a('s_waitcnt lgkmcnt(0)')
    Q.qb(a, P.default_next(2), xflags=xf, wflags=opt.get('wf2', ''), stamp=stamp)
    a('s_branch Lfin')
    a('Lob:')
    srd(a, 8, 'B_wo')
    a('s_sub_u32 %s, s6, 16' % S(O.sCs))
    a('s_mul_i32 s7, s3, 5'); a('s_add_u32 s7, s7, s6'); a('s_sub_u32 s7, s7, 25')
    a('s_cmp_lt_u32 s6, 25')
    a('s_cselect_b32 %s, %s, s7' % (S(O.sCs), S(O.sCs)))
    a('s_cselect_b32 %s, s3, 4' % S(O.sT0)); a('s_cselect_b32 %s, 2, 1' % S(O.sDT)); a('s_cselect_b32 %s, 6, 4' % S(O.sDX))
    a('s_cselect_b32 %s, 22, 20' % S(O.sN)); a('s_cselect_b32 %s, 0, 4' % S(O.sRot0))
    a('s_mov_b32 %s, 0x%x' % (S(O.sCtx), WS_CTXB)); a('s_mov_b32 %s, 1152' % S(O.sOcol))
    a('s_lshl_b32 s7, s4, 7'); a('s_add_u32 %s, s7, 0x%x' % (S(O.sFb), FLAG(FL_QB)))
    a('s_mov_b32 s93, 1'); a('s_mov_b32 s92, 3'); a('s_mov_b32 s91, 9'); a('s_mov_b32 s90, 1')
    a('Los:')
    srd(a, 24, 'out')
    a('s_waitcnt lgkmcnt(0)')
    O.ostream(a, lambda d, t: ['s_and_b32 %s, %s, s93' % (S(d), S(t)), 's_lshl_b32 %s, %s, s91' % (S(d), S(d)), 's_add_u32 %s, %s, %s' % (S(d), S(d), S(O.sFb)),
                               's_lshr_b32 %s, %s, s90' % (S(O.sNeed), S(t)), 's_add_u32 %s, %s, 1' % (S(O.sNeed), S(O.sNeed))],
              's92', wflags=opt.get('wf2', ''), stamp=stamp, slp=opt.get('slp', 4), oflags=opt.get('of', ''))
    a('s_branch Lfin')
    a('Lchain:')
    C.chain(a, opt, (rho_load, rho_check), wflags=wf, stamp_once=(lambda a, i: stamp(a, i, 20, 'c')) if diag else None, force_slow=opt.get('slow'))
    if diag == 2: stamp(a, 7, 20, 'c')
    a('Lfin:')
    stamp(a, 7)
    a('Lend:')
    a('s_endpgm')
    a('Lredo:')
    a('s_mov_b32 s88, s89')
    a('s_waitcnt vmcnt(0) lgkmcnt(0)')
    a('s_barrier')
    a('s_branch Lrole')
    head = open(os.path.join(os.path.dirname(os.path.abspath(__file__)), 'header.txt')).read()
    t = head + '; @launch grid=(256,1,1) block=(256,1,1) lds=163840\n' + HEAD + kernel_open(name) + a.text() + RODATA + kernel_desc(name)
    assert hazard.check(t) == 0
    return t
if __name__ == '__main__':
    opt = {}
    for x in (sys.argv[1] if len(sys.argv) > 1 else '').split(','):
        if x:
            k, v = x.split('='); opt[k] = int(v) if v.lstrip('-').isdigit() else v
    print(gen(opt, KNAME + '_kernel'), end='')
```

```python
from common import *

WS = 's[20:23]'
vL16, vKa, vVa, vNinf, vFo, vT = 1, 2, 3, 4, 5, 6
vNM = 12
vP, vL, vS, vC, vO = 16, 32, 48, 80, 112
vPK = 240
aQ, aQ2, aK, aV, aOne = 0, 64, 128, 160, 192
sH, sQ1, sQ2 = 32, 33, 34
sDt, sDend, sDo, sDs, sRs, sT, sLo, sHi, sN, sTmp, sBase, sBlk, sN2, sSpin, sTn, sW12 = range(35, 51)
sTri, sM00, sMF, sML = 52, 60, 68, 70
sFl, sBig, sSml = 72, 73, 74
NS = 8
PD = 4

def S_(tau, u): return vS + 8 * u + 4 * tau
def C_(tau, u): return vC + 8 * u + 4 * tau
def O_(f, u): return vO + 32 * u + 4 * f
def P_(u): return vP + 4 * u
def L_(u): return vL + 4 * u
def Q_(u, k): return aQ + 16 * u + 4 * k
MF = 'v_mfma_f32_16x16x32_bf16 %s, %s, %s, %s'

def s_phase(us, taus=(0, 1), czero=False):
    o = []
    for k in range(4):
        for tau in taus:
            for u in us:
                d = V(S_(tau, u), 4)
                c = d if k else ('0' if czero else V(C_(tau, u), 4))
                o.append((MF % (d, A(aK + 4 * (2 * k + tau), 4), A(Q_(u, k), 4), c), 2 * k + tau if u == us[-1] else None))
    return o
def pv_phase(us, czero=False):
    o = []
    for f in range(8):
        for u in us:
            d = V(O_(f, u), 4)
            o.append((MF % (d, A(aV + 4 * f, 4), V(P_(u), 4), '0' if czero else d), f if u == us[-1] else None))
    for u in us:
        d = V(L_(u), 4)
        o.append((MF % (d, A(aOne, 4), V(P_(u), 4), '0' if czero else d), None))
    return o
def soft(u):
    e = lambda tau, r: ['v_exp_f32 %s, %s' % (V(S_(tau, u) + r), V(S_(tau, u) + r))]
    c = lambda j, tau, h: 'v_cvt_pk_bf16_f32 %s, %s, %s' % (V(P_(u) + j), V(S_(tau, u) + 2 * h), V(S_(tau, u) + 2 * h + 1))
    return [e(0, 0), e(0, 1), e(1, 0), e(1, 1), e(0, 2), [c(0, 0, 0), c(1, 1, 0)], e(0, 3), e(1, 2), e(1, 3), [c(2, 0, 1), c(3, 1, 1)]]
def mask_salu(sa):
    return (['s_cmp_lt_u32 %s, %s' % (S(sTn), S(sa)), 's_cselect_b64 %s, -1, 0' % S(sMF, 2),
             's_cmp_le_u32 %s, %s' % (S(sTn), S(sa)), 's_cselect_b64 %s, -1, 0' % S(sML, 2),
             's_cmp_eq_u32 %s, %s' % (S(sTn), S(sa))] +
            ['s_cselect_b64 %s, %s, %s' % (S(sM00 + 2 * r, 2), S(sTri + 2 * r, 2), S(sMF, 2)) for r in range(4)])
def mask_valu(u):
    o = []
    for tau in range(2):
        for r in range(4):
            m = sM00 + 2 * r if tau == u % 2 else (sMF if tau else sML)
            o.append('v_cndmask_b32 %s, %s, %s, %s' % (V(C_(tau, u) + r), V(vNinf), V(vNM + u), S(m, 2)))
    return o
def pairs(l): return [l[i:i + 2] for i in range(0, len(l), 2)]
def kread(f): return 'ds_read_b128 %s, %s offset:%d' % (A(aK + 4 * f, 4), V(vKa), 1024 * f)
def vread(f): return 'ds_read_b128 %s, %s offset:%d' % (A(aV + 4 * f, 4), V(vVa), 8192 + 1024 * f)
def dma_ops():
    return (['s_lshl_b32 %s, %s, 19' % (S(sDo), S(sDt)), 's_add_u32 m0, %s, %s' % (S(sDs), S(sW12)), 's_add_u32 %s, %s, %s' % (S(sDo), S(sDo), S(sBase))] +
            ['buffer_load_dwordx4 %s, %s, %s offen offset:%d sc1 lds' % (V(vL16), WS, S(sDo), 1024 * i) for i in range(4)] +
            ['s_add_u32 %s, %s, 0x4000' % (S(sDs), S(sDs)), 's_and_b32 %s, %s, 0x%x' % (S(sDs), S(sDs), NS * 0x4000 - 1),
             's_add_u32 %s, %s, 1' % (S(sDt), S(sDt)), 's_cmp_eq_u32 %s, %s' % (S(sDt), S(sDend)),
             's_cselect_b32 %s, %s, %s' % (S(sDend), S(sN2), S(sDend)), 's_cselect_b32 %s, 0, %s' % (S(sDt), S(sDt))])
ADV_S = ['s_add_u32 %s, %s, 0x4000' % (S(sRs), S(sRs)), 's_and_b32 %s, %s, 0x%x' % (S(sRs), S(sRs), NS * 0x4000 - 1)]
ADV_V = [['v_mov_b32 %s, %s' % (V(vVa), V(vKa)), 'v_add_u32 %s, %s, %s' % (V(vKa), S(sRs), V(vL16))]]

def emit(a, mf, slots, start=0, other=(), rd=None, pre=(), tail=1):
    n = len(mf)
    gaps = [[[], []] for _ in range(n)]
    for i, (m, f) in enumerate(mf):
        if rd and f is not None: gaps[i][0].append(rd(f))
    gaps[0][0][:0] = list(pre)
    other = list(other)
    free = [g for g in range(n) if not gaps[g][0]] or list(range(n))
    for i, x in enumerate(other): gaps[free[(i * len(free)) // len(other)]][0].append(x)
    span = n - tail - start
    for i, s_ in enumerate(slots): gaps[start + (i * span) // len(slots)][1] += s_
    for (m, f), (nv, vv) in zip(mf, gaps):
        a(m); a(nv); a(vv)

def body(a, mode, masked=False, first=False, end=()):
    g0, g1 = ((0, 1), (2, 3)) if mode == 2 else ((2,), (3,))
    def half(g, h):
        if mode == 2: return soft(g[h])
        s_ = soft(g[0]); return s_[:5] if h == 0 else s_[5:]
    st = 3
    BAR = ['s_waitcnt vmcnt(%d)' % (4 * (PD - 2)), 's_barrier']
    nxt = ['s_add_u32 %s, %s, 1' % (S(sTn), S(sTn))]
    a('s_waitcnt lgkmcnt(0)')
    if first:
        emit(a, s_phase(g0), pairs(['v_mov_b64 %s, 0' % V(O_(0, 3) + 2 * i, 2) for i in range(16)] + ['v_mov_b64 %s, 0' % V(L_(2) + 2 * i, 2) for i in range(4)]),
             other=[vread(f) for f in range(8)])
        emit(a, s_phase(g1), half(g0, 0) + half(g0, 1), st, rd=kread, pre=BAR + list(end), other=nxt + mask_salu(sLo)[:4])
        a('s_waitcnt lgkmcnt(8)')
        emit(a, pv_phase(g0, True), ADV_V + half(g1, 0) + pairs(mask_valu(0) + mask_valu(1)), st, other=ADV_S + mask_salu(sLo)[4:] + dma_ops(), tail=0)
        return
    mA = pairs(mask_valu(3)) if mode == 1 else []
    emit(a, s_phase(g0), half(g1, 1) + mA[:1], 0, other=(nxt + mask_salu(sLo)) if masked and mode == 2 else ())
    mB = pairs(mask_valu(0)) if masked and mode == 2 else mA[1:]
    if mode == 2: emit(a, pv_phase(g1), half(g0, 0) + mB, st, rd=vread)
    else: emit(a, pv_phase(g1), mB + half(g0, 0), 0, rd=vread)
    mC = pairs(mask_valu(1)) if masked and mode == 2 else []
    emit(a, s_phase(g1), half(g0, 1) + mC, 0, rd=kread, pre=BAR, other=ADV_S)
    a('s_waitcnt lgkmcnt(8)')
    phase_d(a, mode, True, end, nxt if not (masked and mode == 2) else [])
def phase_d(a, mode, dma, end=(), nxt=()):
    if mode == 2:
        emit(a, pv_phase((0, 1)), ADV_V + [[], []] + soft(2), 0, other=dma_ops() + list(nxt) + list(end))
    else:
        a(list(nxt) + mask_salu(sHi))
        m = pairs(mask_valu(2))
        emit(a, pv_phase((2,)), (ADV_V if dma else []) + m[:3 - dma] + soft(3)[:5] + m[3 - dma:], 0, other=(dma_ops() if dma else []) + list(end), tail=0)
        if not end: a('s_nop 0')

def cross_max(x, t):
    return ['v_mov_b32 %s, %s' % (V(t), V(x)), 's_nop 1', 'v_permlane16_swap_b32 %s, %s' % (V(x), V(t)),
            'v_max_f32 %s, %s, %s' % (V(x), V(x), V(t)), 'v_mov_b32 %s, %s' % (V(t), V(x)), 's_nop 1',
            'v_permlane32_swap_b32 %s, %s' % (V(x), V(t)), 'v_max_f32 %s, %s, %s' % (V(x), V(x), V(t))]
def inter(lists):
    out = []
    for grp in zip(*lists):
        if grp[0].startswith('s_nop'): continue
        out += grp
    return out

def slow_path(a, Lslow, Lback):
    us = (0, 1, 2, 3)
    a(Lslow + ':')
    a('s_waitcnt vmcnt(0) lgkmcnt(0)')
    def load(dst, off):
        for f in range(8):
            if f % 4 == 0: a('s_add_u32 %s, %s, %d' % (S(sTmp), S(sDo), off + 1024 * f))
            a('buffer_load_dwordx4 %s, %s, %s, %s offen offset:%d sc1' % (A(dst + 4 * f, 4), V(vL16), WS, S(sTmp), 1024 * (f % 4)))
    for ps in range(2):
        L = a.lab('sl')
        if ps == 0:
            for u in us: a('v_mov_b32 %s, 0' % V(vNM + u)); a('v_mov_b32 %s, %s' % (V(vPK + u), V(vNinf)))
        else:
            a(inter([cross_max(vPK + u, vPK + 4 + u) for u in us]))
            for u in us: a('v_sub_f32 %s, 0, %s' % (V(vNM + u), V(vPK + u)))
            for i in range(64): a('v_mov_b64 %s, 0' % V(vO + 2 * i, 2))
            for i in range(8): a('v_mov_b64 %s, 0' % V(vL + 2 * i, 2))
        a('s_mov_b32 %s, 0' % S(sTn))
        a(L + ':')
        a('s_lshl_b32 %s, %s, 19' % (S(sDo), S(sTn)))
        a('s_add_u32 %s, %s, %s' % (S(sDo), S(sDo), S(sBase))); a('s_sub_u32 %s, %s, %s' % (S(sDo), S(sDo), S(sW12)))
        load(aK, 0)
        if ps: load(aV, 8192)
        a(mask_salu(sLo)); a(mask_valu(0) + mask_valu(1))
        a(mask_salu(sHi)); a(mask_valu(2) + mask_valu(3))
        a('s_waitcnt vmcnt(0)'); a('s_nop 0')
        a([m for m, _ in s_phase(us)])
        a('s_nop 7')
        if ps == 0:
            for u in us:
                for i in range(4): a('v_max3_f32 %s, %s, %s, %s' % (V(vPK + u), V(vPK + u), V(S_(0, u) + 2 * i), V(S_(0, u) + 2 * i + 1)))
        else:
            for u in us:
                for s_ in soft(u): a(s_)
            a('s_nop 1')
            a([m for m, _ in pv_phase(us)])
        a('s_add_u32 %s, %s, 1' % (S(sTn), S(sTn)))
        a('s_cmp_le_u32 %s, %s' % (S(sTn), S(sHi)))
        a('s_cbranch_scc1 ' + L)
    for f in range(8): a('ds_read_b128 %s, %s offset:%d' % (A(aK + 4 * f, 4), V(vVa), 1024 * f))
    a('s_branch ' + Lback)

def att(a, wait_inputs, wait_q2, opt={}, stamp=None):
    global PD
    PD = opt.get('pd', 3)
    st = stamp or (lambda a, i: None)
    a('v_and_b32 %s, 63, v0' % V(vL16)); a('v_lshlrev_b32 %s, 4, %s' % (V(vL16), V(vL16)))
    a('v_mov_b32 %s, 0xff800000' % V(vNinf))
    a('v_min_u32 %s, 1, v0' % V(vFo)); a('v_lshlrev_b32 %s, 28, %s' % (V(vFo), V(vFo)))
    a('v_mov_b32 %s, 0x3f803f80' % V(vT))
    for i in range(4): a('v_accvgpr_write_b32 %s, %s' % (A(aOne + i), V(vT)))
    for r in range(4):
        m = sum(1 << l for l in range(64) if 4 * (l // 16) + r <= l % 16)
        a('s_mov_b32 %s, 0x%x' % (S(sTri + 2 * r), m & 0xffffffff)); a('s_mov_b32 %s, 0x%x' % (S(sTri + 2 * r + 1), m >> 32))
    a('s_mov_b32 %s, 0x%x' % (S(sBig), f2u(2.0 ** opt.get('big', 40)))); a('s_mov_b32 %s, 0x%x' % (S(sSml), f2u(2.0 ** -60)))
    a('s_lshl_b32 %s, s4, 12' % S(sW12))
    a('s_lshl_b32 %s, %s, 14' % (S(sBase), S(sH)))
    a('s_add_u32 %s, %s, %s' % (S(sBase), S(sBase), S(sW12))); a('s_add_u32 %s, %s, 0x%x' % (S(sBase), S(sBase), WS_KVA))
    a('s_lshl_b32 %s, %s, 3' % (S(sDend), S(sQ1))); a('s_add_u32 %s, %s, 8' % (S(sDend), S(sDend)))
    a('s_lshl_b32 %s, %s, 3' % (S(sN2), S(sQ2))); a('s_add_u32 %s, %s, 8' % (S(sN2), S(sN2)))
    for s_ in (sDt, sDs, sBlk): a('s_mov_b32 %s, 0' % S(s_))
    wait_inputs(a)
    st(a, 3)
    def qload(sq, dst):
        for hi in range(2):
            a('s_lshl_b32 %s, %s, 3' % (S(sTmp), S(sq)))
            if hi: a('s_add_u32 %s, %s, 7' % (S(sTmp), S(sTmp))); a('s_sub_u32 %s, %s, s4' % (S(sTmp), S(sTmp)))
            else: a('s_add_u32 %s, %s, s4' % (S(sTmp), S(sTmp)))
            a('s_lshl_b32 %s, %s, 5' % (S(sTmp), S(sTmp))); a('s_add_u32 %s, %s, %s' % (S(sTmp), S(sTmp), S(sH)))
            a('s_lshl_b32 %s, %s, 13' % (S(sTmp), S(sTmp))); a('s_add_u32 %s, %s, 0x%x' % (S(sTmp), S(sTmp), WS_QA))
            for b in range(8):
                if b == 4: a('s_add_u32 %s, %s, 4096' % (S(sTmp), S(sTmp)))
                a('buffer_load_dwordx4 %s, %s, %s, %s offen offset:%d sc1' % (A(dst + 16 * (2 * hi + b % 2) + 4 * (b // 2), 4), V(vL16), WS, S(sTmp), 1024 * (b % 4)))
    a(dma_ops()); qload(sQ1, aQ)
    for i in range(PD - 1): a(dma_ops())
    a('s_waitcnt vmcnt(%d)' % (4 * (PD - 1)))
    a('s_barrier')
    a('v_mov_b32 %s, %s' % (V(vKa), V(vL16)))
    a([kread(f) for f in range(8)])
    a('s_mov_b32 %s, 0' % S(sRs)); a(ADV_S); a(ADV_V)
    Lblk = a.lab('ablk'); Lslow = a.lab('aslow'); Lback = a.lab('aback'); Ldone = a.lab('adone')
    a(Lblk + ':')
    a('s_lshl_b32 %s, %s, 3' % (S(sN), S(sQ1)))
    a('s_add_u32 %s, %s, s4' % (S(sLo), S(sN)))
    a('s_add_u32 %s, %s, 7' % (S(sHi), S(sN))); a('s_sub_u32 %s, %s, s4' % (S(sHi), S(sHi)))
    a('s_mov_b32 %s, 0' % S(sTn))
    a('s_waitcnt lgkmcnt(0)')
    us = (0, 1, 2, 3)
    emit(a, s_phase(us, (0,), True), pairs(['v_mov_b64 %s, 0' % V(O_(0, 2) + 2 * i, 2) for i in range(16)]), other=mask_salu(sLo))
    a('s_nop 4')
    for u in us: a('v_max3_f32 %s, %s, %s, %s' % (V(vNM + u), V(S_(0, u)), V(S_(0, u) + 1), V(S_(0, u) + 2)))
    for u in us: a('v_max_f32 %s, %s, %s' % (V(vNM + u), V(vNM + u), V(S_(0, u) + 3)))
    a(inter([cross_max(vNM + u, vT + u) for u in us]))
    for u in us: a('v_sub_f32 %s, 0, %s' % (V(vNM + u), V(vNM + u)))
    a(mask_valu(0) + mask_valu(1))
    for u in (2, 3):
        for i in range(8): a('v_mov_b32 %s, %s' % (V(C_(0, u) + i), V(vNM + u)))
    body(a, 2, first=True)
    Lp = a.lab('apl'); Lm = a.lab('amk'); L1 = a.lab('am1')
    a('s_cmp_eq_u32 %s, 0' % S(sN)); a('s_cbranch_scc1 ' + Lm)
    a('s_sub_u32 %s, %s, 1' % (S(sT), S(sN)))
    a('.p2align 3'); a(Lp + ':')
    body(a, 2, end=['s_cmp_lt_u32 %s, %s' % (S(sTn), S(sT))])
    a('s_cbranch_scc1 ' + Lp)
    a(Lm + ':')
    a('s_add_u32 %s, %s, 4' % (S(sT), S(sN)))
    Lm2 = a.lab('amk')
    a('.p2align 3'); a(Lm2 + ':')
    body(a, 2, masked=True, end=['s_cmp_lt_u32 %s, %s' % (S(sTn), S(sT))])
    a('s_cbranch_scc1 ' + Lm2)
    a('s_add_u32 %s, %s, 8' % (S(sT), S(sN)))
    Lq = a.lab('aq2'); Lq2 = a.lab('aq2')
    a('s_cmp_eq_u32 %s, 0' % S(sBlk)); a('s_cbranch_scc0 ' + Lq)
    wait_q2(a)
    qload(sQ2, aQ2)
    a('s_branch ' + Lq2)
    a(Lq + ':')
    a('v_mov_b32 %s, 1' % V(vT))
    a('buffer_store_dword %s, %s, %s, %s offen sc1' % (V(vT), V(vFo), WS, S(sFl)))
    a(Lq2 + ':')
    phase_d(a, 1, False)
    a('.p2align 3'); a(L1 + ':')
    body(a, 1, masked=True, end=['s_cmp_lt_u32 %s, %s' % (S(sTn), S(sT))])
    a('s_cbranch_scc1 ' + L1)
    for s_ in soft(3)[5:]: a(s_)
    a('s_nop 1')
    pv = pv_phase((3,))
    a([m for m, _ in pv[-1:] + pv[:-1]])
    for u in us:
        a('v_cmp_ngt_f32 %s, %s, %s' % (S(sM00 + 2 * u, 2), S(sBig), V(L_(u))))
        a('v_cmp_nlt_f32 vcc, %s, %s' % (S(sSml), V(L_(u))))
        a('s_or_b64 %s, %s, vcc' % (S(sM00 + 2 * u, 2), S(sM00 + 2 * u, 2)))
    a('s_or_b64 %s, %s, %s' % (S(sM00, 2), S(sM00, 2), S(sM00 + 2, 2)))
    a('s_or_b64 %s, %s, %s' % (S(sM00 + 4, 2), S(sM00 + 4, 2), S(sM00 + 6, 2)))
    a('s_or_b64 %s, %s, %s' % (S(sM00, 2), S(sM00, 2), S(sM00 + 4, 2)))
    a('s_cbranch_scc1 ' + Lslow)
    a(Lback + ':')
    for u in us: a('v_rcp_f32 %s, %s' % (V(L_(u)), V(L_(u))))
    n = 0
    for u in us:
        if u % 2 == 0:
            a('s_lshl_b32 %s, %s, 5' % (S(sT), S(sHi if u else sLo))); a('s_add_u32 %s, %s, %s' % (S(sT), S(sT), S(sH)))
            a('s_lshl_b32 %s, %s, 13' % (S(sT), S(sT))); a('s_add_u32 %s, %s, 0x%x' % (S(sT), S(sT), WS_CTXA))
            a('s_add_u32 %s, %s, 4096' % (S(sTmp), S(sT)))
        for k in range(4):
            pk = vPK + 4 * (n % 4); n += 1
            x = O_(2 * k, u)
            for i in range(4): a('v_pk_mul_f32 %s, %s, %s op_sel_hi:[1,0]' % (V(x + 2 * i, 2), V(x + 2 * i, 2), V(L_(u), 2)))
            for j, o in enumerate((0, 4, 2, 6)): a('v_cvt_pk_bf16_f32 %s, %s, %s' % (V(pk + j), V(x + o), V(x + o + 1)))
            b = 2 * k + u % 2
            a('buffer_store_dwordx4 %s, %s, %s, %s offen offset:%d sc1' % (V(pk, 4), V(vL16), WS, S(sTmp if b >= 4 else sT), 1024 * (b % 4)))
    a('s_lshl_b32 %s, %s, 5' % (S(sFl), S(sQ1))); a('s_add_u32 %s, %s, %s' % (S(sFl), S(sFl), S(sH)))
    a('s_lshl_b32 %s, %s, 2' % (S(sFl), S(sFl))); a('s_add_u32 %s, %s, 0x%x' % (S(sFl), S(sFl), FLAG(FL_AT)))
    a('s_cmp_eq_u32 %s, 1' % S(sBlk)); a('s_cbranch_scc1 ' + Ldone)
    a('s_mov_b32 %s, 1' % S(sBlk)); a('s_mov_b32 %s, %s' % (S(sQ1), S(sQ2)))
    a('s_waitcnt vmcnt(16)')
    for i in range(64): a('v_accvgpr_mov_b32 %s, %s' % (A(aQ + i), A(aQ2 + i)))
    st(a, 4)
    a('s_branch ' + Lblk)
    slow_path(a, Lslow, Lback)
    a(Ldone + ':')
    a('s_waitcnt vmcnt(0) lgkmcnt(0)')
    a('s_barrier')
    a('v_mov_b32 %s, 1' % V(vT))
    a('buffer_store_dword %s, %s, %s, %s offen sc1' % (V(vT), V(vFo), WS, S(sFl)))
```

```python
from common import *

L_MEM, L_KX, L_Q, L_KM, L_O, L_F = 0, 9216, 17408, 19456, 19968, 24576
M2SZ = P1_BUF
vT16, vDum, vVa, vL16, vVb, vIdx, vPm, vZero, vXw, vXr, vQw, vQr = range(12)
VX, W0, W1, W2, W3 = 12, 20, 36, 52, 64
WREG = 72
sH = 6
sStep, sKV, sKVM, sP1r, sP1h, sM2a, sM2b, sM2c, sM2w, sM2x = 36, 37, 38, 39, 40, 41, 42, 43, 44, 45
sTmp, sSpin, sC, sFPB, sFCH, sTm2, sVXo = 47, 54, 55, 56, 57, 58, 59
sHf = 48
sTag = 46
sP1w = 60
sM2wh, sM2xh, sKXo, sPF, sXq = 65, 66, 67, 68, 69
sLo = 70
sSel, sOdd, sOne = 24, 32, 34
TOGGLE = (sM2w, sM2x, sM2wh, sM2xh, sM2a, sM2c)
WS = 's[20:23]'

WO_ORDER = [8, 0, 1, 2, 3, 4, 5, 6, 7]
frags = [(m, t, tau) for t in range(9) for m in 'qkv' for tau in range(2)] + [('o', tp, tl) for tl in range(9) for tp in range(2)]
KORD = [8, 0, 1, 2, 3, 4, 5, 6, 7]
lds_frags = [('k', t, 1) for t in KORD] + [('o', 1, tl) for tl in WO_ORDER[:8]]
reg_frags = [f for f in frags if f not in lds_frags]
assert len(reg_frags) == 55
regpos = {f: (WREG + 8 * i) for i, f in enumerate(reg_frags)}
def fbase(f):
    off = L_F + 8192 * f
    return (off // 65536) * 65536, off % 65536
def smf(d, a_, b): return 'v_smfmac_f32_16x16x64_bf16 %s, %s, %s, %s' % (V(d, 4), V(a_, 4), U(b, 8), V(vIdx))

def spin_fail(a, lab):
    a('s_sub_u32 %s, %s, 1' % (S(sSpin), S(sSpin)))
    a('s_cbranch_scc0 ' + lab)
    a('s_endpgm')

def setup(a):
    a('v_and_b32 v20, 63, v0')
    a('v_lshlrev_b32 %s, 4, v20' % V(vL16))
    a('v_mov_b32 %s, 0' % V(vZero))
    a('s_mov_b32 %s, 0xcccccccc' % S(sHf)); a('s_mov_b32 %s, 0xcccccccc' % S(sHf + 1))
    a('v_mov_b32 v21, 0x44444444'); a('v_mov_b32 v22, 0xeeeeeeee')
    a('v_cndmask_b32 %s, v21, v22, %s' % (V(vIdx), S(sHf, 2)))
    a('s_lshl_b32 %s, s4, 10' % S(sTmp)); a('s_add_u32 %s, %s, %d' % (S(sTmp), S(sTmp), L_KM))
    a('v_and_b32 v21, 48, v20'); a('v_lshl_add_u32 v21, v21, 3, %s' % S(sTmp))
    a('v_and_b32 v22, 8, v20'); a('v_lshl_add_u32 v21, v22, 2, v21')
    a('v_and_b32 v22, 1, v20'); a('v_lshl_add_u32 v21, v22, 4, v21')
    a('v_and_b32 v22, 6, v20'); a('v_lshl_add_u32 %s, v22, 1, v21' % V(vXw))
    a('v_and_b32 v21, 32, v20'); a('v_lshlrev_b32 v21, 5, v21')
    a('v_and_b32 v22, 12, v20'); a('v_lshl_add_u32 v21, v22, 5, v21')
    a('v_and_b32 v22, 1, v20'); a('v_lshl_add_u32 v21, v22, 6, v21')
    a('v_and_b32 v22, 16, v20'); a('v_lshl_add_u32 v21, v22, 1, v21')
    a('v_and_b32 v22, 2, v20'); a('v_lshl_add_u32 %s, v22, 3, v21' % V(vXr))
    a('v_lshrrev_b32 v21, 4, v0'); a('v_lshlrev_b32 v21, 7, v21')
    a('v_and_b32 v22, 15, v20'); a('v_lshl_add_u32 v21, v22, 2, v21')
    a('v_add_u32 %s, %d, v21' % (V(vQw), L_Q))
    a('v_and_b32 v22, 1, v20')
    a('v_and_b32 v21, 12, v20'); a('v_lshlrev_b32 v21, 5, v21')
    a('v_lshl_add_u32 v21, v22, 6, v21')
    a('v_and_b32 v22, 48, v20'); a('v_add_u32 %s, v21, v22' % V(vQr))
    a('s_mov_b32 %s, 0x%x' % (S(sC), QSCALE))
    a('s_mov_b32 %s, 0x%x' % (S(sSpin), SPIN))
    a('s_lshl_b32 %s, %s, 6' % (S(sTmp), S(sH)))
    for r in range(3): a('s_add_u32 %s, %s, 0x%x' % (S(sP1w + r), S(sTmp), WS_P1 + 4096 * r))
    a('s_lshl_b32 %s, %s, 7' % (S(sTmp), S(sH)))
    a('s_add_u32 %s, %s, 0x%x' % (S(sFPB), S(sTmp), FLAG(FL_PB)))
    a('s_add_u32 %s, %s, 0x%x' % (S(sFCH), S(sTmp), FLAG(FL_CH)))
    a('s_mul_i32 %s, %s, %d' % (S(sTmp), S(sH), P1_STRIDE))
    a('s_add_u32 %s, %s, 0x%x' % (S(sP1h), S(sTmp), WS_P1 + 4 * 2048))
    a('s_lshl_b32 %s, s4, 11' % S(sTm2))
    a('s_add_u32 %s, %s, %s' % (S(sTmp), S(sTmp), S(sTm2)))
    a('s_add_u32 %s, %s, 0x%x' % (S(sP1r), S(sTmp), WS_P1))
    a('s_lshl_b32 %s, s4, 11' % S(sM2b))
    a('s_add_u32 %s, %s, 0x%x' % (S(sM2a), S(sM2b), WS_M2 + M2SZ))
    a('s_mov_b32 %s, 0x%x' % (S(sM2c), WS_M2 + M2SZ + 8192))
    a('s_lshr_b32 %s, s4, 1' % S(sXq)); a('s_lshl_b32 %s, %s, 11' % (S(sXq), S(sXq)))
    a('s_and_b32 %s, s4, 1' % S(sTmp)); a('s_lshl_b32 %s, %s, 3' % (S(sTmp), S(sTmp)))
    a('s_add_u32 %s, %s, %s' % (S(sXq), S(sXq), S(sTmp)))
    a('s_lshl_b32 %s, %s, 5' % (S(sTmp), S(sH)))
    a('s_add_u32 %s, %s, 0x%x' % (S(sM2wh), S(sTmp), WS_M2 + M2SZ + 8192))
    a('s_add_u32 %s, %s, 0x%x' % (S(sM2xh), S(sTmp), WS_M2 + 8192))
    a('s_lshr_b32 %s, %s, 3' % (S(sTmp), S(sH))); a('s_lshl_b32 %s, %s, 9' % (S(sTmp), S(sTmp)))
    a('s_and_b32 %s, %s, 1' % (S(sTm2), S(sH))); a('s_lshl_b32 %s, %s, 8' % (S(sTm2), S(sTm2)))
    a('s_add_u32 %s, %s, %s' % (S(sTmp), S(sTmp), S(sTm2)))
    a('s_and_b32 %s, %s, 6' % (S(sTm2), S(sH))); a('s_lshl_b32 %s, %s, 5' % (S(sTm2), S(sTm2)))
    a('s_add_u32 %s, %s, %s' % (S(sTmp), S(sTmp), S(sTm2)))
    a('s_lshl_b32 %s, s4, 11' % S(sTm2))
    a('s_add_u32 %s, %s, %s' % (S(sTmp), S(sTmp), S(sTm2)))
    a('s_add_u32 %s, %s, 0x%x' % (S(sM2w), S(sTmp), WS_M2 + M2SZ))
    a('s_add_u32 %s, %s, 0x%x' % (S(sM2x), S(sTmp), WS_M2))
    a('s_lshl_b32 %s, %s, 14' % (S(sTmp), S(sH)))
    a('s_add_u32 %s, %s, 0x%x' % (S(sKV), S(sTmp), WS_KVB))
    a('s_add_u32 %s, %s, %s' % (S(sKXo), S(sKV), S(sTm2)))
    a('s_add_u32 %s, %s, 8192' % (S(sVXo), S(sKXo)))
    a('s_lshl_b32 %s, %s, 12' % (S(sTmp), S(sH)))
    a('s_add_u32 %s, %s, 0x%x' % (S(sKVM), S(sTmp), WS_KVM - 0x20000))
    a('s_mov_b32 %s, 0' % S(sStep))
    a('s_mov_b32 %s, 0' % S(sTag))

def h_addr(d, t):
    x = V(vL16)
    return ['v_bfe_u32 %s, %s, 8, 1' % (V(d), x), 'v_bfe_u32 %s, %s, 9, 1' % (V(t), x),
            'v_lshl_or_b32 %s, %s, 1, %s' % (V(d), V(d), V(t)), 'v_bfe_u32 %s, %s, 5, 1' % (V(t), x),
            'v_lshl_or_b32 %s, %s, 1, %s' % (V(d), V(d), V(t)), 'v_and_b32 %s, 0xd0, %s' % (V(t), x),
            'v_lshlrev_b32 %s, 24, %s' % (V(t), V(t)), 'v_lshl_or_b32 %s, %s, 2, %s' % (V(d), V(d), V(t))]
def m2_addr(d, t):
    x = V(vL16)
    return ['v_bfe_u32 %s, %s, 8, 2' % (V(d), x), 'v_bfe_u32 %s, %s, 2, 4' % (V(t), x),
            'v_lshl_or_b32 %s, %s, 4, %s' % (V(d), V(d), V(t)), 'v_and_b32 %s, 0xc0, %s' % (V(t), x),
            'v_lshl_or_b32 %s, %s, 24, %s' % (V(d), V(t), V(d))]
def p1w_addr(d, t):
    return ['v_bfe_u32 %s, %s, 7, 5' % (V(d), V(vT16)), 'v_mul_u32_u24 %s, %d, %s' % (V(d), P1_STRIDE, V(d)),
            'v_bfe_u32 %s, %s, 4, 3' % (V(t), V(vL16)), 'v_lshl_add_u32 %s, %s, 3, %s' % (V(d), V(t), V(d))]

def init_handoff(a, q):
    for i in range(4): a('v_mov_b32 %s, 0' % V(W0 + i))
    a('v_mov_b32 %s, -1' % V(W0 + 7))
    a(h_addr(W0 + 4, W0 + 5)); a(m2_addr(W0 + 6, W0 + 5))
    for s_ in (sP1r, sP1h):
        for m in range(2):
            q('buffer_store_dwordx4 %s, %s, %s, %s offen offset:%d sc1' % (V(W0, 4), V(vL16), WS, S(s_), 1024 * m), 'init')
    for s_ in (sM2w, sM2x):
        q('buffer_store_dword %s, %s, %s, %s offen sc1' % (V(W0 + 7), V(W0 + 6), WS, S(s_)), 'init')
    for s_ in (sM2wh, sM2xh):
        q('buffer_store_dword %s, %s, %s, %s offen sc1' % (V(W0 + 7), V(W0 + 4), WS, S(s_)), 'init')

def load_weights(a, wflags, arrive, lead, mid):
    vA, vB, vR, vWb, T, vC = 12, 14, 16, 60, 40, 56
    a('v_and_b32 v30, 63, v0')
    a('v_bfe_u32 v31, v30, 1, 2'); a('v_lshrrev_b32 v32, 5, v30'); a('v_xor_b32 v31, v31, v32')
    a('v_lshlrev_b32 v31, 5, v31'); a('v_and_b32 v32, 1, v30'); a('v_lshl_add_u32 v31, v32, 4, v31')
    a('v_xor_b32 v33, 64, v31')
    a('v_lshrrev_b32 v32, 3, v30')
    a('s_lshl_b32 %s, s4, 4' % S(sTmp))
    a('v_and_b32 v34, 3, v32'); a('v_lshrrev_b32 v35, 2, v32'); a('v_lshl_add_u32 v34, v34, 1, v35')
    a('v_add_u32 v34, %s, v34' % S(sTmp))
    a('v_lshl_add_u32 %s, v34, 13, v31' % V(vA))
    a('v_add_u32 v34, 8, v34')
    a('v_lshl_add_u32 %s, v34, 13, v33' % V(vA + 1))
    a('v_and_b32 v34, 1, v32'); a('v_lshlrev_b32 v34, 6, v34'); a('v_and_b32 v35, 6, v32')
    a('s_lshl_b32 %s, s4, 3' % S(sTmp))
    a('v_add3_u32 v34, v34, v35, %s' % S(sTmp))
    a('v_lshl_add_u32 %s, v34, 13, v31' % V(vC))
    a('v_mul_u32_u24 v35, 1152, v34'); a('v_add_u32 %s, v35, v31' % V(vB))
    a('v_add_u32 v34, 1, v34')
    a('v_lshl_add_u32 %s, v34, 13, v33' % V(vC + 1))
    a('v_mul_u32_u24 v35, 1152, v34'); a('v_add_u32 %s, v35, v33' % V(vB + 1))
    a('v_bfe_u32 v31, v30, 4, 1'); a('v_bfe_u32 v32, v30, 3, 1')
    a('v_lshl_add_u32 v33, v32, 1, v31'); a('v_xor_b32 v33, s4, v33'); a('v_lshlrev_b32 v33, 5, v33')
    a('v_lshl_add_u32 v33, v31, 9, v33'); a('v_lshl_add_u32 v33, v32, 10, v33')
    a('v_bfe_u32 v31, v30, 2, 1'); a('v_lshl_add_u32 v33, v31, 7, v33')
    a('v_lshrrev_b32 v31, 5, v30'); a('v_lshl_add_u32 v33, v31, 11, v33')
    a('v_and_b32 v31, 3, v30'); a('v_lshl_add_u32 %s, v31, 3, v33' % V(vR))
    a('v_add_u32 %s, 0x10000, %s' % (V(vR + 1), V(vR))); a('v_add_u32 %s, 0x20000, %s' % (V(vR + 2), V(vR)))
    a('v_lshlrev_b32 %s, 4, v0' % V(vWb))
    a('v_add_u32 %s, 0x10000, %s' % (V(vWb + 1), V(vWb))); a('v_add_u32 %s, 0x20000, %s' % (V(vWb + 2), V(vWb)))
    sA, sB, sM = 70, 71, 72
    a('s_lshl_b32 %s, %s, 8' % (S(sA), S(sH)))
    a('s_mul_i32 %s, %s, 147456' % (S(sB), S(sH)))
    a('s_lshl_b32 %s, s4, 11' % S(sM))
    vTx, vTn, vTo, vTd, sGA, sGB = 19, 58, 59, 63, 76, 80
    a('s_lshl_b32 %s, s4, 4' % S(sTmp)); a('v_add_u32 v31, %s, v30' % S(sTmp))
    a('s_lshr_b32 %s, s4, 1' % S(sTmp)); a('s_lshl_b32 %s, %s, 5' % (S(sTmp), S(sTmp))); a('v_add_u32 v32, %s, v31' % S(sTmp))
    a('v_lshrrev_b32 v33, 4, v30'); a('v_lshlrev_b32 v33, 28, v33')
    a('v_lshl_or_b32 %s, v31, 13, v33' % V(vTn)); a('v_lshl_or_b32 %s, v32, 13, v33' % V(vTx))
    a('v_mul_u32_u24 v32, 1152, v32'); a('v_or_b32 %s, v32, v33' % V(vTo))
    def touch(n):
        m, t, tau = seq[n]
        if m == 'o':
            a('s_add_u32 %s, %s, %d' % (S(sTmp), S(sGB), 32 * t * 1152 + 128 * tau))
            a('buffer_load_dword %s, %s, s[24:27], %s offen' % (V(vTd), V(vTo), S(sTmp)))
        else:
            row = 512 if t == 8 else 128 * (t // 2) + 32 * (t % 2)
            a('s_add_u32 %s, %s, %d' % (S(sTmp), S(sGA), row * 8192 + 128 * tau))
            a('buffer_load_dword %s, %s, %s, %s offen' % (V(vTd), V(vTn if t == 8 else vTx), S(8 + 4 * 'qkv'.index(m), 4), S(sTmp)))
    def help_others(first):
        for d in range(1, 4):
            L = a.lab('hlp')
            a('s_add_u32 %s, %s, %d' % (S(sTm2), S(sH), d)); a('s_and_b32 %s, %s, 31' % (S(sTm2), S(sTm2)))
            a('s_bitcmp1_b32 s77, %s' % S(sTm2)); a('s_cbranch_scc1 ' + L)
            a('s_lshl_b32 %s, %s, 8' % (S(sGA), S(sTm2))); a('s_mul_i32 %s, %s, 147456' % (S(sGB), S(sTm2)))
            for n in range(first + d - 1, 72, 3): touch(n)
            a(L + ':')
    seq = list(reg_frags)
    n0 = len(seq)
    seq += [lds_frags[n % 17] for n in range(n0, n0 + 17)]
    D = lead[0]
    q = Seq(a)
    def dma(n):
        m, t, tau = seq[n]
        for zz in range(2):
            a('s_add_u32 m0, %s, %d' % (S(sM), L_F + 8192 * (n % 17) + 1024 * zz))
            if m == 'o':
                if zz == 0: a('s_add_u32 %s, %s, %d' % (S(sTmp), S(sB), 32 * t * 1152 + 128 * tau))
                else: a('s_nop 0')
                q('buffer_load_dwordx4 %s, s[24:27], %s offen %s lds' % (V(vB + zz), S(sTmp), wflags), n)
            else:
                row = 512 if t == 8 else 128 * (t // 2) + 32 * (t % 2)
                if zz == 0: a('s_add_u32 %s, %s, %d' % (S(sTmp), S(sA), row * 8192 + 128 * tau))
                else: a('s_nop 0')
                q('buffer_load_dwordx4 %s, %s, %s offen %s lds' % (V((vA if t == 8 else vC) + zz), S(8 + 4 * 'qkv'.index(m), 4), S(sTmp), wflags), n)
    def finish(n):
        f = seq[n]; t = T + 8 * (n % 2)
        if f in lds_frags:
            b, o = fbase(n % 17)
            for hf in range(2):
                a('ds_write_b128 %s, %s offset:%d' % (V(vWb + b // 65536), V(t + 4 * hf, 4), o + 4096 * hf))
    for n in range(D): dma(n)
    for n in range(72):
        q.wait(n)
        a('s_waitcnt lgkmcnt(0)')
        a('s_barrier')
        if n + D < 72: dma(n + D)
        mid(n, q)
        if n == 72 - D and lead[1]: help_others(lead[1])
        if n: finish(n - 1)
        f = seq[n]
        dst = regpos.get(f, T + 8 * (n % 2))
        b, o = fbase(n % 17)
        for y in range(4):
            a('ds_read_b64_tr_b16 %s, %s offset:%d' % (U(dst + 2 * y, 2), V(vR + b // 65536), o + 4096 * (y // 2) + 256 * (y % 2)))
    a('s_waitcnt lgkmcnt(0)')
    a('s_barrier')
    finish(71)

def arrive(a, q):
    L = a.lab('arr')
    a('s_getreg_b32 s73, hwreg(HW_REG_XCC_ID, 0, 3)')
    a('s_lshl_b32 s73, s73, 3')
    a('s_lshl_b64 s[74:75], 1, s73')
    a('v_mov_b32 v64, s74'); a('v_mov_b32 v65, s75')
    a('v_mov_b32 v66, 0x7ff00000'); a('v_cmp_eq_u32 vcc, 0, v0'); a('s_nop 1')
    a('v_cndmask_b32 v66, v66, %s, vcc' % V(vZero))
    q('buffer_atomic_add_x2 v[64:65], v66, s[28:31], 0 offen offset:8', 'arr')

def wait_flag(a, soff, need, lab):
    L = a.lab(lab); Lok = a.lab(lab + 'ok')
    a(L + ':')
    a('buffer_load_dword %s, %s, %s, %s offen sc1' % (V(vDum), V(vZero), WS, soff))
    a('s_waitcnt vmcnt(0)')
    a('v_cmp_le_u32 vcc, %s, %s' % (need, V(vDum)))
    a('s_cbranch_vccnz ' + Lok)
    spin_fail(a, L)
    a(Lok + ':')

def frag_read(q, f, dst, name):
    b, o = fbase(f)
    assert b == q.base, (f, b, q.base)
    return ['ds_read_b128 %s, %s offset:%d' % (V(dst + 4 * hf, 4), V(vT16), o + 4096 * hf) for hf in range(2)]

def early(a, opt, rho):
    M = 20
    def dbg_load(q, name): q('buffer_load_dwordx4 v[68:71], v65, s[28:31], 0 offen sc1', name)
    def mid(n, q):
        if n == 0 and rho: q(rho[0](68), 'rho')
        if n == 9:
            if rho: q.wait('rho'); rho[1](a, 68, True)
            init_handoff(a, q)
        if n == 19: q.wait('init')
        if n == 20: arrive(a, q)
        if n == opt.get('nm', 11):
            a('v_lshrrev_b32 v68, 4, %s' % V(vL16))
            a('v_bfe_u32 v69, v68, 2, 2'); a('v_and_b32 v70, 1, v68'); a('v_lshl_add_u32 v69, v69, 1, v70')
            a('v_mul_u32_u24 v69, 1152, v69')
            a('v_and_b32 v70, 48, v68'); a('v_and_b32 v71, 2, v68'); a('v_lshl_add_u32 v71, v71, 2, v70')
            a('v_lshl_add_u32 v71, v71, 1, v69'); a('v_add_u32 v69, v70, v69')
            a('s_lshr_b32 %s, s4, 1' % S(sTmp)); a('s_lshl_b32 %s, %s, 8' % (S(sTmp), S(sTmp)))
            a('s_and_b32 %s, s4, 1' % S(sTm2)); a('s_lshl_b32 %s, %s, 6' % (S(sTm2), S(sTm2)))
            a('s_add_u32 %s, %s, %s' % (S(sTmp), S(sTmp), S(sTm2)))
            for m in range(2):
                for tl in range(2):
                    q('buffer_load_dwordx4 %s, v69, s[32:35], %s offen offset:%d' % (V(M + 8 * m + 4 * tl, 4), S(sTmp), 512 * m + 128 * tl), 'm0')
            q('buffer_load_dwordx4 %s, v71, s[32:35], 0 offen offset:1024' % V(M + 16, 4), 'm0')
        if n == opt.get('nm', 11) + 10:
            q.wait('m0')
            a('v_mov_b32 v68, 0x05040100'); a('v_mov_b32 v69, 0x07060302')
            a('v_cndmask_b32 v70, v68, v69, %s' % S(sHf, 2))
            for m in range(2):
                for i in range(4):
                    a('v_perm_b32 %s, %s, %s, v70' % (V(M + 8 * m + i), V(M + 8 * m + 4 + i), V(M + 8 * m + i)))
            for i in range(4):
                a('v_perm_b32 %s, %s, %s, v%d' % (V(M + 4 + i), V(M + 16 + 2 * (i % 2) + 1), V(M + 16 + 2 * (i % 2)), 68 + i // 2))
            a('ds_write_b128 v60, %s' % V(M, 4))
            a('ds_write_b128 v60, %s offset:4096' % V(M + 8, 4))
            a('ds_write_b128 %s, %s offset:8192' % (V(vL16), V(M + 4, 4)))
        if n == 34:
            a('v_min_u32 v65, 16, %s' % V(vL16)); a('v_lshlrev_b32 v65, 24, v65')
            dbg_load(q, 'd0')
        if n == 44:
            L = a.lab('hs'); Lc = a.lab('hsc'); Lok = a.lab('hsok')
            q.wait('d0')
            a('s_branch ' + Lc)
            a(L + ':')
            dbg_load(Seq(a), None); a('s_waitcnt vmcnt(0)')
            a(Lc + ':')
            a('v_sad_u8 v69, v70, 0, 0'); a('v_sad_u8 v69, v71, 0, v69'); a('v_lshrrev_b32 v69, 5, v69'); a('v_min_u32 v68, v68, v69')
            a('v_cmp_ne_u32 vcc, 0, v68')
            a('s_cbranch_vccnz ' + Lok)
            spin_fail(a, L)
            a(Lok + ':')
            a('v_readfirstlane_b32 s74, v70'); a('v_readfirstlane_b32 s75, v71')
            for s_ in (sP1r, sP1h):
                for m in range(2):
                    q('buffer_load_dwordx4 %s, %s, %s, %s offen offset:%d sc1' % (V(M, 4), V(vL16), WS, S(s_), 1024 * m), 'x')
            a('v_min_u32 v67, 3, v0'); a('v_add_u32 v68, 1, v67'); a('v_and_b32 v68, 4, v68'); a('v_lshlrev_b32 v68, 26, v68')
            a('v_lshl_or_b32 v68, v67, 7, v68')
            for b in range(2):
                a('s_mul_i32 %s, %s, 384' % (S(sTmp), S(sH))); a('s_add_u32 %s, %s, 0x%x' % (S(sTmp), S(sTmp), WS_M2 + M2SZ * b))
                q('buffer_load_dword %s, v68, %s, %s offen sc1' % (V(M), WS, S(sTmp)), 'x')
            a('v_lshlrev_b32 v67, 6, v0')
        if n == opt.get('mark', 48):
            a('s_lshl_b32 %s, %s, 2' % (S(sTmp), S(sH))); a('s_add_u32 %s, %s, 0x%x' % (S(sTmp), S(sTmp), FLAG(FL_LD)))
            a('v_mov_b32 v64, 1')
            q('buffer_store_dword v64, v66, %s, %s offen' % (WS, S(sTmp)), 'g')
        if n == opt.get('hm', 55):
            a('v_lshrrev_b32 v68, 2, %s' % V(vL16)); a('s_mov_b32 %s, 0x%x' % (S(sTmp), FLAG(FL_LD)))
            q('buffer_load_dword v68, v68, %s, %s offen sc1' % (WS, S(sTmp)), 'd1')
        if n == 63: q('buffer_load_dword %s, v65, %s, %s offen sc1' % (V(vDum), WS, S(sFPB)), 'pb')
        if n == 64: q.wait('d1'); a('v_cmp_ne_u32 vcc, 0, v68'); a('s_mov_b32 s77, vcc_lo')
        if n == opt.get('gate', 52):
            L = a.lab('gt')
            a('s_and_b32 %s, %s, 29' % (S(sTmp), S(sH))); a('s_cbranch_scc1 ' + L)
            a('buffer_store_dword v64, v66, s[28:31], 0 offen offset:128 sc1')
            a(L + ':')
    return mid

def start(a, st=None):
    a('v_lshlrev_b32 %s, 4, v0' % V(vT16))
    Lok = a.lab('pbk')
    a('s_waitcnt vmcnt(0)')
    a('v_cmp_le_u32 vcc, 2, %s' % V(vDum))
    a('s_cbranch_vccnz ' + Lok)
    wait_flag(a, S(sFPB), '2', 'pb0')
    a(Lok + ':')
    if st: st()
    a('s_lshl_b32 %s, s4, 11' % S(sTmp))
    a('s_add_u32 m0, %s, %d' % (S(sTmp), L_KX))
    a('s_add_u32 %s, %s, 0x80000' % (S(sPF), S(sKV)))
    for tau in range(2):
        a('buffer_load_dwordx4 %s, %s, %s offen offset:%d sc1 lds' % (V(vL16), WS, S(sKXo), 1024 * tau))
    a('buffer_load_dword %s, v67, %s, %s offen sc1' % (V(VX), WS, S(sKV)))
    a('buffer_load_dword %s, v67, %s, %s offen sc1' % (V(VX), WS, S(sPF)))
    for i in range(2): a('v_mov_b64 %s, 0' % V(W3 + 4 + 2 * i, 2))
    a('s_add_u32 %s, %s, 0x80000' % (S(sPF), S(sPF)))
    for r in range(4):
        a('s_mov_b32 %s, 0x%x' % (S(sSel + 2 * r), 0x000f000f << (4 * r))); a('s_mov_b32 %s, 0x%x' % (S(sSel + 2 * r + 1), 0x000f000f << (4 * r)))
    a('s_mov_b32 %s, 0xaaaaaaaa' % S(sOdd)); a('s_mov_b32 %s, 0xaaaaaaaa' % S(sOdd + 1))
    a('s_mov_b32 %s, 0x3f803f80' % S(sOne)); a('s_mov_b32 %s, 0x3f803f80' % S(sOne + 1))
    a('s_mov_b32 %s, -1' % S(sLo)); a('s_mov_b32 %s, 0' % S(sLo + 1))
    a('s_lshl_b32 %s, s4, 12' % S(sTmp)); a('s_add_u32 %s, %s, %s' % (S(sPF), S(sPF), S(sTmp)))
    a('v_mov_b32 %s, 0' % V(vVa)); a('v_mov_b32 %s, 0' % V(vVb))
    q = Seq(a); q.base = 0
    a('s_waitcnt lgkmcnt(0)')
    a(frag_read(q, 0, W0, None)); a(frag_read(q, 1, W0 + 8, None))
    for i in range(8): a('v_mov_b64 %s, 0' % V(W1 + 2 * i, 2))
    a(step_addrs())
    for s_ in TOGGLE:
        a('s_xor_b32 %s, %s, 0x%x' % (S(s_), S(s_), P1_BUF))
    a('s_lshr_b64 s[74:75], s[74:75], s73')
    a('s_and_b32 s74, s74, 0xff')
    a('s_cmp_eq_u32 s74, 32')
    a('s_waitcnt vmcnt(2)')

def step_addrs():
    return ['v_lshl_add_u32 %s, %s, 3, %s' % (V(vDum), V(vL16), S(sPF)), 'v_mov_b32 %s, %s' % (V(vPm), S(sFPB)),
            'v_cndmask_b32 %s, %s, %s, %s' % (V(vDum), V(vPm), V(vDum), S(sLo, 2)),
            'v_min_u32 %s, 16, %s' % (V(vPm), V(vT16)), 'v_lshlrev_b32 %s, 24, %s' % (V(vPm), V(vPm)),
            's_max_u32 %s, %s, 1' % (S(sTmp), S(sStep)), 'v_add_u32 %s, -1, %s' % (V(vVa), S(sTmp))]

def kvm_stores(q, a, tmp, addr):
    return [lambda: a('v_add_u32 %s, %s, %s' % (V(addr), S(sXq), V(vXr))),
            lambda: q('ds_read_b64 %s, %s offset:%d' % (V(tmp, 2), V(addr), L_KM), 'kmr'),
            lambda: a('v_mov_b32 %s, %s' % (V(tmp + 2), V(vVa))),
            lambda: a('v_mov_b32 %s, %s' % (V(tmp + 3), V(vVb))),
            lambda: (q.wait('kmr'), q('buffer_store_dwordx4 %s, %s, %s, %s offen sc1' % (V(tmp, 4), V(vT16), WS, S(sKVM)), 'kvs'))]

def step_loop(a, sf, Lexit, opt, stamp=None):
    def add(d, x, y): return 'v_add_f32 %s, %s, %s' % (V(d), V(x), V(y))
    def add2(d, x): return [add(d, x, x + 2), add(d + 1, x + 1, x + 3)]
    def cvt(d, x, y): return 'v_cvt_pk_bf16_f32 %s, %s, %s' % (V(d), V(x), V(y))
    def cnd(d, x, y, m=sHf): return 'v_cndmask_b32 %s, %s, %s, %s' % (V(d), x, y, S(m, 2))
    def mov2(d, x): return 'v_mov_b64 %s, %s' % (V(d, 2), x)
    def sadd(d, x):
        if opt.get('nopf') and d in (sVXo, sKXo): x = 0
        return 's_add_u32 %s, %s, 0x%x' % (S(d), S(d), x)
    def sxor(d, x=P1_BUF): return 's_xor_b32 %s, %s, 0x%x' % (S(d), S(d), x)
    def delay(n):
        while n > 0: a('s_nop %d' % (min(n, 16) - 1)); n -= 16
    st = stamp or (lambda i: None)
    Lstep = a.lab('step'); Lfail = a.lab('fail')
    Sx = [W0, W0 + 4]; Sm = W0 + 8; R0 = W0 + 12; R1 = W2 + 8
    kxr = {(0, 0): Sx[0], (0, 1): Sx[1], (1, 0): R0, (1, 1): R0, (2, 0): W1, (2, 1): W1 + 4, (3, 0): R0, (3, 1): R1}
    qa, qb, ka, kb = W1, W1 + 4, W1 + 8, W1 + 12
    va, vb = W3, W3 + 4
    KQ, YH, FV = W3, W3 + 4, vVa
    tails = []
    def mem(u): return W2 + 4 * (u % 3 if u < 12 else u % 2)
    def mu3(d, x, y, z): return 'v_max3_u32 %s, %s, %s, %s' % (V(d), V(x), V(y), V(z))
    def ldi(x, so, n=2):
        return ['buffer_load_dwordx4 %s, %s, %s, %s offen offset:%d sc1' % (V(x + 4 * m, 4), V(vL16), WS, S(so), 1024 * m) for m in range(n)]
    def chk(quads, C, x=''):
        regs = [r + i for r in quads for i in range(4)]
        o = [mu3(C, *regs[:3])]; regs = regs[3:]
        while len(regs) > 1: o.append(mu3(C, C, regs[0], regs[1])); regs = regs[2:]
        o.append('v_max_u32 %s, %s, %s' % (V(C), V(C), V(regs[0])))
        return o + ['v_cmp%s_eq_u32 vcc, -1, %s' % (x, V(C))]
    def retry(L, loads, check, cnt, first=None):
        L1 = a.lab('rt'); Le = a.lab('rte')
        a(L + ':')
        a('s_mov_b64 exec, vcc')
        a(L1 + ':')
        for u in range(3):
            a(loads)
            if stamp: a('s_add_u32 s%d, s%d, %d' % (cnt[0], cnt[0], cnt[1]))
            a('s_waitcnt vmcnt(%d)' % (len(loads) * (opt.get('dep', 2) - 1)))
            a(check)
            a('s_cbranch_execz ' + Le)
        a('s_sub_u32 %s, %s, 1' % (S(sSpin), S(sSpin))); a('s_cbranch_scc0 ' + L1)
        a('s_endpgm')
        a(Le + ':')
        a('s_mov_b64 exec, -1')
    LstepB = a.lab('stepB'); Ljoin = a.lab('join')
    PF = 'buffer_load_dword %s, %s, %s, 0 offen sc1' % (V(vDum), V(vDum), WS)
    FS = 'buffer_store_dword %s, %s, %s, %s offen sc1' % (V(FV), V(vPm), WS, S(sFCH))
    def vs(u, tau, slot): a(smf(va + 4 * tau, slot, regpos[('v', KORD[u], tau)]))
    flat = [(u, x) for u in range(7) for x in (('qa', 'qb', 'ka', 'va', 'vb', 'kb') if u in (2, 3, 4) else ('qa', 'qb', 'ka', 'kb'))]
    GB = opt.get('gb', 22); GJ = opt.get('gj', 19)
    def mk(q):
        ex = {}
        def mread(u): q('ds_read_b128 %s, %s offset:%d' % (V(mem(u), 4), V(vL16), L_MEM + 1024 * KORD[u]), ('m', u))
        def at(g, f, name='x'):
            l = ex.setdefault(g, [])
            fn = f if callable(f) else (lambda: q(f, name))
            if not callable(f) and f.startswith('v_'): l.append(fn)
            else: l.insert(0, fn)
        def run(n0, n1):
            for n in range(n0, n1):
                u, x = flat[n]; t = KORD[u]
                if x == 'kb': a(smf(kb, mem(u), W0 + 8 * (u % 2)))
                else: a(smf({'qa': qa, 'qb': qb, 'ka': ka, 'va': va, 'vb': vb}[x], mem(u), regpos[(x[0], t, int(x[1] == 'b'))]))
                if u and x in ('qa', 'qb'): q(frag_read(q, u + 1, W0 + 8 * ((u + 1) % 2), None)[x == 'qb'], ('kb', u + 1))
                if x == 'ka' and u in (1, 2, 5, 6): mread(u + 2)
                if n + 1 < len(flat) and flat[n + 1][1] == 'kb':
                    if u == 4: q.wait(('kb', u))
                    else: q.wait(('kb', u), ('m', u + 1))
                    if fbase(u + 2)[0] != q.base:
                        a('v_add_u32 %s, 0x10000, %s' % (V(vT16), V(vT16))); q.base += 65536
                for f in ex.pop(n, []): f()
                if (u, x) == (4, 'kb'): q.wait(('m', 5))
            assert not ex, ex
        return mread, at, run
    def head(late):
        a('.p2align 3')
        a((LstepB if late else Lstep) + ':')
        q = Seq(a, vm=['pre']); q.base = 0
        mread, at, run = mk(q)
        a('s_mov_b64 exec, -1')
        if late: q(ldi(VX, sM2a), 'y')
        q.drain(vm=False)
        a('s_barrier')
        st('B0')
        mread(0); mread(1); mread(2)
        kg = opt.get('kg%d' % late, -1)
        if kg < 0: kvm_stores(q, a, KQ, None)[4]()
        else: at(kg, kvm_stores(q, a, KQ, None)[4])
        if not late: at(opt.get('fg', 1), FS)
        at(4, mov2(W3, '0')); at(5, mov2(W3 + 2, '0'))
        if late:
            g = opt.get('gc', 11)
            at(3, lambda: q.wait('pre')); at(7, mov2(YH, '0')); at(8, mov2(YH + 2, '0'))
            wr = ['ds_write_b128 %s, %s offset:%d' % (V(vVb), V(VX + 4 * m, 4), L_MEM + 1024 * m) for m in range(2)]
            if opt.get('nowr'): wr = ['s_nop 0'] * 2
            at(g, lambda: (q.wait('y'), q(wr[0], 'yw'))); at(g + opt.get('gw', 2), wr[1], 'yw')
            for i, x in zip([int(c, 36) for c in opt.get('cg', 'gdefgh')[1:]], chk([VX, VX + 4], vVa)): at(i, x)
            Lr = a.lab('yr'); Lb = a.lab('yb')
            def tail():
                retry(Lr, ldi(VX, sM2a), chk([VX, VX + 4], vVa, 'x'), (17, 0x100))
                a(wr); a('s_waitcnt lgkmcnt(0)'); a('s_branch ' + Lb)
            tails.append(tail)
        q.wait(('m', 0))
        st('m0')
        if late: at(opt.get('gv', 19), lambda: (a('s_cbranch_vccnz ' + Lr), a(Lb + ':')))
        run(0, GJ + 1)
        q.wait('yw')
        return q
    q = head(0)
    lg0 = list(q.lg)
    a('s_branch ' + Ljoin)
    q = head(1)
    assert q.lg == lg0[len(lg0) - len(q.lg):], (q.lg, lg0)
    q.lg = lg0; q.vm = []
    a(Ljoin + ':')
    mread, at, run = mk(q)
    def kxread(kap, tau): q('ds_read_b128 %s, %s offset:%d' % (V(kxr[kap, tau], 4), V(vL16), L_KX + 2048 * kap + 1024 * tau), ('kx', kap, tau))
    at(GB, lambda: (a('s_barrier'), mread(5), st('Bc')))
    at(GB + 1, lambda: mread(6))
    at(opt.get('gx0', 20), ldi(VX, sVXo)[0], 'vx'); at(opt.get('gx1', 21), ldi(VX, sVXo)[1], 'vx')
    at(opt.get('gpf', 25), PF)
    run(GJ + 1, len(flat))
    def pk2(x, y): return [cvt(x, x, y), cvt(x + 1, x + 1, y + 1)]
    def w2(ad, x, o=0): return 'ds_write2_b32 %s, %s, %s offset0:%d offset1:%d' % (V(ad), V(x), V(x + 1), o, o + 16)
    SA, SB, SC_ = W2, W2 + 4, W2 + 8
    def rread(t, slot): q('ds_read_b128 %s, %s offset:%d' % (V(slot, 4), V(vL16), L_MEM + 1024 * KORD[t]), ('r', t))
    kxr.update({(1, 1): SA, (2, 0): R0, (2, 1): SC_, (3, 0): W1, (3, 1): SA})
    rd = frag_read(q, 8, W0, None)
    st('k7')
    a(smf(qa, mem(7), regpos[('q', KORD[7], 0)])); q(rd[0], ('kb', 8))
    a(smf(qb, mem(7), regpos[('q', KORD[7], 1)])); q(rd[1], ('kb', 8)); q.wait(('m', 8))
    a(smf(qa, mem(8), regpos[('q', KORD[8], 0)]))
    a(smf(qb, mem(8), regpos[('q', KORD[8], 1)]))
    pq = pk2(qa, qb)
    vs(6, 0, SA); a('s_nop 0'); a(add(qa, qa, qa + 2))
    vs(6, 1, SA); rread(0, SA); a(add(qa + 1, qa + 1, qa + 3))
    a(smf(ka, mem(7), regpos[('k', KORD[7], 0)])); a(add2(qb, qb))
    a(smf(kb, mem(7), W0 + 8)); q.wait(('kb', 8)); a(pq[0])
    a(smf(ka, mem(8), regpos[('k', KORD[8], 0)])); kxread(1, 0); a(pq[1])
    a(smf(kb, mem(8), W0)); q(w2(vQw, qa), 'w')
    st('p1e')
    wb = [W1, W1 + 8, VX]
    def wo_read(p, hf):
        if fbase(9 + p)[0] != q.base:
            a('v_add_u32 %s, 0x10000, %s' % (V(vT16), V(vT16))); q.base += 65536
        q(frag_read(q, 9 + p, wb[p % 3], None)[hf], ('wo', p))
    vs(7, 0, SB); kxread(0, 0); a(add2(ka, ka))
    vs(7, 1, SB); q.wait(('r', 0))
    a(add2(kb, kb)); a(pk2(ka, kb))
    st('kw')
    if opt.get('kwf', 0):
        vs(0, 0, SA); q(w2(vXw, ka), 'w')
        vs(0, 1, SA); rread(1, SB); a(mov2(Sm, '0'))
        vs(8, 0, SC_); rread(5, SA); a(mov2(Sm + 2, '0'))
        vs(8, 1, SC_); kxread(0, 1)
    else:
        q(w2(vXw, ka), 'w')
        vs(0, 0, SA); rread(1, SB); a(mov2(Sm, '0'))
        vs(0, 1, SA); rread(5, SA); a(mov2(Sm + 2, '0'))
        vs(8, 0, SC_); kxread(0, 1)
        vs(8, 1, SC_)
    q.wait('w')
    a('s_barrier')
    st('B1')
    def qread(k): q('ds_read_b128 %s, %s offset:%d' % (V(W1 + 4 * k, 4), V(vQr), L_Q + 512 * k), ('q', k))
    def xrd(base, dst, tp, name): q('ds_read_b128 %s, %s offset:%d' % (V(dst, 4), V(vXr), base + 2048 * tp), name)
    kmr = [SC_, SB]
    def kmread(tp): xrd(L_KM, kmr[tp], tp, ('km', tp))
    qread(0); q.wait(('r', 1))
    vs(1, 0, SB); qread(1); q.wait(('r', 5))
    vs(1, 1, SB); kmread(0); qread(2)
    vs(5, 0, SA); qread(3)
    vs(5, 1, SA); kxread(1, 1)
    def sx(k, tau):
        q.wait(('q', k), ('kx', k, tau))
        a('v_mfma_f32_16x16x32_bf16 %s, %s, %s, %s' % (V(Sx[tau], 4), V(kxr[k, tau], 4), V(W1 + 4 * k, 4), V(Sx[tau], 4) if k else '0'))
    def sm(tp):
        q.wait(('km', tp), ('q', 2 * tp + 1))
        a(smf(Sm, kmr[tp], W1 + 8 * tp))
    T0, T1, T2, T3, ONE = Sm + 2, Sm + 3, Sm + 1, vPm, R0
    oa, ob, LL = W2, W2 + 4, W2 + 8
    def ex2(x): return 'v_exp_f32 %s, %s' % (V(x), V(x))
    def m16(d, b): return 'v_mfma_f32_16x16x16_bf16 %s, %s, %s, 0' % (V(d, 4), V(vPm, 2), V(b, 2))
    def sm32(d, b): return 'v_smfmac_f32_16x16x32_bf16 %s, %s, %s, %s' % (V(d, 4), V(T0, 2), V(b, 4), V(vIdx))
    cn = [cnd(Sx[0] + r, V(Sx[0] + r), V(Sx[1] + r)) for r in range(4)]
    pm = [cnd(Sm + 1, '0', V(Sm)), cnd(Sm, V(Sm), '0'), cvt(vPm, Sm, Sm + 1)]
    SC = 'v_mul_f32 %s, %s, %s' % (V(Sm), S(sC), V(Sm))
    wacc = [W3, W3 + 4, W0, W0 + 4, W0 + 8, W0 + 12, W2 + 8, W3, W0]
    zer = [mov2(x + 2 * i, '0') for x in wacc[:7] for i in range(2)]
    st('s0')
    sx(0, 0); kmread(1)
    sx(0, 1); a(add2(va, va))
    sx(1, 0); kxread(2, 0); a(cvt(vVa, va, va + 1)); a(add(vb, vb, vb + 2))
    sm(0); kxread(2, 1); kxread(3, 0); a(add(vb + 1, vb + 1, vb + 3))
    sx(1, 1); kxread(3, 1); a(cvt(vVb, vb, vb + 1))
    sm(1); wo_read(0, 1)
    sx(2, 0); a(mov2(ONE, S(sOne, 2))); a(mov2(ONE + 2, S(sOne, 2)))
    sx(2, 1); wo_read(1, 0); a(add2(Sm, Sm))
    sx(3, 0); wo_read(0, 0); a(cnd(Sm, V(Sm), V(Sm + 1))); a(SC)
    sx(3, 1)
    st('Se')
    wo_read(1, 1)
    a(ex2(Sm)); a(zer.pop(0)); a(pm); a(zer.pop(0)); a(zer.pop(0))
    a(cn)
    st('max')
    a(m16(LL, ONE)); q.wait('vx'); a(ex2(Sx[0]))
    a(m16(oa, vVa)); a('s_cmp_eq_u32 %s, 63' % S(sStep)); a(ex2(Sx[0] + 1))
    a(m16(ob, vVb)); a(ex2(Sx[0] + 2)); a(ex2(Sx[0] + 3))
    pk = [cvt(T0, Sx[0], Sx[0] + 1), cvt(T1, Sx[0] + 2, Sx[0] + 3)]
    a(pk)
    a(zer.pop(0)); a(zer.pop(0))
    st('pv')
    for d, b in ((LL, ONE), (oa, VX), (ob, VX + 4)):
        a(sm32(d, b))
        if d == ob: a('s_nop 0')
        elif d == oa: a(zer.pop(0))
        else: a(zer.pop(0)); a(zer.pop(0))
    def norm():
        a(add2(LL, LL))
        for i in range(2): a('v_rcp_f32 %s, %s' % (V(LL + i), V(LL + i)))
        a(add2(oa, oa))
        for i in range(2): a('v_mul_f32 %s, %s, %s' % (V(oa + i), V(oa + i), V(LL + i)))
        a(add2(ob, ob))
        for i in range(2): a('v_mul_f32 %s, %s, %s' % (V(ob + i), V(ob + i), V(LL + i)))
        a(pk2(oa, ob))
    OW = w2(vXw, oa, 128)
    norm()
    q(OW, 'ow')
    R = opt.get('rng', 60)
    for i in range(2): a('v_subrev_u32 %s, 0x%x, %s' % (V(LL + i), (127 - R) << 23, V(LL + i)))
    st('ow')
    a('v_max_u32 %s, %s, %s' % (V(LL), V(LL), V(LL + 1)))
    a('v_cmp_lt_u32 vcc, 0x%x, %s' % ((2 * R) << 23, V(LL)))
    a('s_cbranch_scc1 ' + Lexit)
    Lmx = a.lab('mx'); Lmb = a.lab('mxb')
    PW = vPm
    zer = zer[:4] + p1w_addr(PW, LL) + zer[4:]
    wo01 = frag_read(q, 9, wb[0], None) + frag_read(q, 10, wb[1], None)
    def true_max():
        def mx3(d, x, y, z): return 'v_max3_f32 %s, %s, %s, %s' % (V(d), V(x), V(y), V(z))
        a(Lmx + ':')
        if stamp: a('s_add_u32 s17, s17, 0x100')
        a('s_waitcnt lgkmcnt(0)')
        for k in range(4): a('ds_read_b128 %s, %s offset:%d' % (V(W1 + 4 * k, 4), V(vQr), L_Q + 512 * k))
        a(mov2(Sm, '0')); a(mov2(Sm + 2, '0'))
        for k in range(5):
            for tau in range(2):
                if k < 4: a('ds_read_b128 %s, %s offset:%d' % (V(W2 + 4 * tau, 4), V(vL16), L_KX + 2048 * k + 1024 * tau))
                else: a('ds_read_b128 %s, %s offset:%d' % (V(W2 + 4 * tau, 4), V(vXr), L_KM + 2048 * tau))
            a('s_waitcnt lgkmcnt(0)')
            for tau in range(2):
                if k < 4: a('v_mfma_f32_16x16x32_bf16 %s, %s, %s, %s' % (V(Sx[tau], 4), V(W2 + 4 * tau, 4), V(W1 + 4 * k, 4), V(Sx[tau], 4) if k else '0'))
                else: a(smf(Sm, W2 + 4 * tau, W1 + 8 * tau))
        a(wo01)
        a(mov2(ONE, S(sOne, 2))); a(mov2(ONE + 2, S(sOne, 2))); a('s_nop 1')
        a(add2(Sm, Sm))
        for i in range(2): a('v_mul_f32 %s, %s, %s' % (V(Sm + i), S(sC), V(Sm + i)))
        a('v_max_f32 %s, %s, %s' % (V(T0), V(Sm), V(Sm + 1))); a(cnd(Sm, V(Sm), V(Sm + 1)))
        for i in range(3): a(mx3(T0, T0, Sx[0] + 2 * i, Sx[0] + 2 * i + 1))
        a(mx3(T1, T0, Sx[1] + 2, Sx[1] + 3)); a(mx3(T2, T0, Sx[1] + 2, Sx[1] + 3))
        a(cn[:2])
        a('v_permlane16_swap_b32 %s, %s' % (V(T1), V(T2)))
        a('v_max_f32 %s, %s, %s' % (V(T0), V(T1), V(T2)))
        a('v_max_f32 %s, %s, %s' % (V(T3), V(T1), V(T2)))
        a(cn[2:])
        a('v_permlane32_swap_b32 %s, %s' % (V(T0), V(T3)))
        a('v_max_f32 %s, %s, %s' % (V(T0), V(T0), V(T3)))
        vals = [Sm] + [Sx[0] + r for r in range(4)]
        for x in vals: a('v_sub_f32 %s, %s, %s' % (V(x), V(x), V(T0)))
        for x in vals: a(ex2(x))
        a(pm); a(pk)
        a(m16(LL, ONE)); a(m16(oa, vVa)); a(m16(ob, vVb))
        a(sm32(LL, ONE)); a(sm32(oa, VX)); a(sm32(ob, VX + 4)); a('s_nop 0')
        norm()
        a(OW)
        for i in range(8): a(mov2(W0 + 2 * i, '0'))
        a('s_waitcnt lgkmcnt(0)')
        a('s_branch ' + Lmb)
    tails.append(true_max)
    sal = [sadd(sKXo, 0x80000), sxor(sTag, 1), sadd(sVXo, 0x80000), sadd(sKVM, 0x20000),
           's_cmp_lt_u32 %s, 61' % S(sStep), 's_cselect_b32 %s, 0x80000, 0' % S(sTmp), 's_add_u32 %s, %s, %s' % (S(sPF), S(sPF), S(sTmp)),
           's_add_u32 %s, %s, 1' % (S(sStep), S(sStep)), 's_add_u32 %s, %s, 2' % (S(sTm2), S(sStep)), 's_min_u32 %s, %s, 64' % (S(sTm2), S(sTm2))] + [sxor(x) for x in TOGGLE]
    ords = [0, 1]
    kxl = [0, 1]
    def kxd(): q('buffer_load_dwordx4 %s, %s, %s offen offset:%d sc1 lds' % (V(vL16), WS, S(sKXo), 1024 * kxl.pop(0)), 'kxd')
    def warm(pat):
        for c in pat:
            if c == 'v': a(zer.pop(0))
            elif c == 's': a(sal.pop(0))
            elif c == 'w': wo_read(2, 0); wo_read(2, 1)
            elif c == 'r': tp = ords.pop(0); xrd(L_O, W2 + 4 * tp, tp, ('oa', tp))
            elif c == 'x': wo_read(2, 0)
            elif c == 'y': wo_read(2, 1)
            elif c == 'd': kxd()
            elif c == 'k': a('v_mov_b32 %s, 0' % V(vZero))
            elif c == 'b': a('s_cbranch_vccnz ' + Lmx); a(Lmb + ':')
    warm(opt.get('wa', 'vvvvb'))
    q.wait('ow')
    warm(opt.get('wm', 'v'))
    a('s_barrier')
    st('B2')
    warm(opt.get('wb', 'rvrxvysvssvsv'))
    def fin(p):
        x = wacc[p]
        def tag(d): return 'v_and_or_b32 %s, %s, -2, %s' % (V(d), V(d), S(sTag))
        if p == 0:
            return add2(x, x) + [cvt(x + 1, x + 1, x + 1), cvt(x, x, x), tag(x + 1),
                    'buffer_store_dwordx2 %s, %s, %s, %s offen %s' % (V(x, 2), V(PW), WS, S(sP1w + 2), sf)]
        if p % 2: return add2(x, x)
        y = wacc[p - 1]; r = p // 2 - 1
        return add2(x, x) + [cvt(y + 1, y + 1, x + 1), cvt(y, y, x), tag(y + 1),
                'buffer_store_dwordx2 %s, %s, %s, %s offen offset:%d %s' % (V(y, 2), V(PW), WS, S(sP1w + r // 2), 2048 * (r % 2), sf)]
    order = [(0, 0)]
    for p in range(1, 9): order += [(p, 0), (p - 1, 1)]
    order += [(8, 1)]
    F = [fin(p) for p in range(9)]
    rz = {p: [mov2(wacc[p] + 2 * i, '0') for i in range(2)] for p in (7, 8)}
    ws_ = opt.get('ws', 1)
    if ws_ == 0:
        vw = {4: F[0][:2], 5: F[0][2:4], 6: F[0][4:5] + F[1], 7: rz[7], 8: F[2][:2], 9: F[2][2:4], 10: F[2][4:5] + F[3], 11: rz[8],
              12: F[4][:2], 13: F[4][2:5], 14: F[5][:1], 15: F[5][1:], 16: F[6][:2]}
        sw = {7: F[0][5], 11: F[2][5], 14: F[4][5]}
    else:
        vw = {4: F[0][:3], 5: F[0][3:5], 6: F[1], 7: rz[7], 8: F[2][:3], 9: F[2][3:5], 10: F[3], 11: rz[8],
              12: F[4][:3], 13: F[4][3:5], 14: F[5][:1], 15: F[5][1:], 16: F[6][:2]}
        sw = {6: F[0][5], 10: F[2][5], 14: F[4][5]}
    if opt.get('r2', 0): vw[16] = F[6][:5]
    kxg = [int(c) for c in str(opt.get('kxg', 'g02'))[1:]]
    q.wait(('oa', 0))
    st('wo0')
    for n, (p, tp) in enumerate(order):
        tl = WO_ORDER[p]
        k = 0
        st('w%d' % n)
        if tp == 0: a(smf(wacc[p], W2, regpos[('o', 0, tl)]))
        else: a(smf(wacc[p], W2 + 4, wb[p % 3] if p < 8 else regpos[('o', 1, tl)]))
        if n == 17: break
        if ws_ == 0:
            if tp and p < 5: wo_read(p + 3, 0); wo_read(p + 3, 1); k = 2
        elif 2 <= n < 12: wo_read(n // 2 + 2, n % 2); k = 1
        if n in sw: q(sw[n], 'p1'); k += 2
        if n in kxg and kxl: kxd(); k += 2
        if order[n + 1][1] == 1: k += q.wait(('oa', 1), ('wo', order[n + 1][0]))
        while k < 2 and sal: a(sal.pop(0)); k += 1
        if zer: a(zer.pop(0))
        if n == 3:
            a('v_add_u32 %s, 0x10000, %s' % (V(vT16), V(vT16))); q.base += 65536
        if k == 0: a('s_nop 0')
        a(vw.get(n, []))
    assert not zer
    pend = F[6][2:] + F[7] + ['s_nop 0'] + F[8]
    if opt.get('r2', 0): pend = F[6][5:] + ['s_nop 0'] + F[7] + ['s_nop 2'] + F[8]
    SEL, X, D, XH, DH = W1 + 8, W1, W1 + 12, W0, W0 + 8
    MA, HA, LA, C, TT, NEG = W2, W2 + 1, W2 + 2, W2 + 3, W2 + 6, W2 + 7
    sal_left = list(sal)
    a('s_cmp_eq_u32 s4, 0')
    n8 = len(F[8])
    a(pend[:-n8])
    if opt.get('wn', 0): a('s_nop %d' % (opt['wn'] - 1))
    a(pend[-n8:])
    st('Woe')
    def red(d, x, m): return 'v_mfma_f32_16x16x32_bf16 %s, %s, %s, %s' % (V(d, 4), V(SEL, 4), V(x + 4 * m, 4), V(d, 4) if m else '0')
    def tchk(quads, x=''):
        o = []
        for i, r in enumerate(quads):
            o.append('v_bitop3_b32 %s, %s, %s, %s bitop3:0x7e' % (V(C + min(i, 1) + (i == 2)), V(r + 1), V(r + 3), S(sTag)))
            if i == 2: o.append('v_or3_b32 %s, %s, %s, %s' % (V(C), V(C), V(C + 1), V(C + 2)))
        return o + ['v_bitop3_b32 %s, %s, 1, %s bitop3:0xc8' % (V(C), V(C), V(C + 1)), 'v_cmp%s_ne_u32 vcc, 0, %s' % (x, V(C))]
    def ror(d, n): return 'v_add_f32_dpp %s, %s, %s row_ror:%d row_mask:0xf bank_mask:0xf' % (V(d), V(d), V(d), n)
    def pub(d, ad, so): return [cvt(d, d, d + 1), 'buffer_store_dword %s, %s, %s, %s offen %s' % (V(d), V(ad), WS, S(so), sf)]
    lates = []
    def misc():
        a(sal_left)
        a('v_mov_b32 %s, 0x3f80' % V(SEL + 3))
        a(cnd(SEL + 3, V(SEL + 3), '1.0', sOdd))
        a([cnd(SEL + r, '0', V(SEL + 3), sSel + 2 * r) for r in range(4)])
        a(m2_addr(MA, TT))
        a('v_subrev_u32 %s, 0x20000, %s' % (V(vT16), V(vT16)))
        a('v_mov_b32 %s, -1' % V(NEG))
        a('v_add_u32 %s, %s, %s' % (V(LA), S(sM2b), V(vL16)))
        for f in kvm_stores(Seq(a), a, KQ, TT)[:4]: f()
        a(mov2(W3 + 4, '0')); a(mov2(W3 + 6, '0'))
    def kb01():
        qq = Seq(a); qq.base = 0
        a(frag_read(qq, 0, W0, None)); a(frag_read(qq, 1, W0 + 8, None))
    def hop2(w, pol):
        hx = w == 0
        quads = [YH] if w == 2 else [VX, VX + 4]
        lds = ldi(YH, sM2c, 1) if w == 2 else ldi(VX, sM2a)
        a('buffer_store_dword %s, %s, %s, %s offen %s' % (V(NEG), V(MA), WS, S(sM2x), sf))
        if hx: a('buffer_store_dword %s, %s, %s, %s offen %s' % (V(NEG), V(HA), WS, S(sM2xh), sf))
        a('v_cmp_gt_u32 vcc, %s, %s' % (S(sTm2), V(vDum)))
        if hx: kb01()
        for i in range(8): a(mov2(W1 + 2 * i, '0'))
        Lf = a.lab('fok'); Lfw = a.lab('fw'); L2 = a.lab('p2')
        a('s_cmp_lg_u32 vcc_hi, 0')
        a('s_cbranch_scc1 ' + Lfw)
        a(Lf + ':')
        lates.append((Lfw, Lf))
        a(step_addrs()[:3 if w >= 2 else 7])
        if w >= 2: a('v_mov_b32 %s, %s' % (V(vVb), V(LA)))
        if w == 3:
            if opt.get('diag') == 1:
                a('s_memtime s[90:91]'); a('s_memrealtime s[92:93]'); a('s_lshl_b32 s94, %s, 3' % S(sStep)); a('v_mov_b32 %s, s94' % V(W2 + 10)); a('s_waitcnt lgkmcnt(0)')
                a('v_mov_b32 %s, s90' % V(W2 + 8)); a('v_mov_b32 %s, s92' % V(W2 + 9)); a('ds_write_b64 %s, %s offset:23552' % (V(W2 + 10), V(W2 + 8, 2)))
            a('s_waitcnt vmcnt(0)'); delay(pol[0])
            st('h2e'); a('s_branch ' + LstepB); return
        d, sp, dep = pol
        delay(d)
        for i in range(dep - 1): a(lds); delay(sp)
        a(L2 + ':')
        for u in range(3):
            a(lds)
            if stamp: a('s_add_u32 s17, s17, 1')
            a('s_waitcnt vmcnt(%d)' % (len(lds) * (dep - 1)))
            c = chk(quads, C, 'x')
            a(c[:-1])
            if w == 2: a('ds_write_b128 %s, %s offset:%d' % (V(vL16), V(YH, 4), L_MEM + 8192))
            else:
                for m in range(2): a('ds_write_b128 %s, %s offset:%d' % (V(LA), V(quads[m], 4), L_MEM + 1024 * m))
            a(c[-1])
            st('h2e')
            a('s_cbranch_execz ' + (LstepB if w == 2 else Lstep))
        a('s_sub_u32 %s, %s, 1' % (S(sSpin), S(sSpin)))
        a('s_cbranch_scc0 ' + L2)
        a('s_endpgm')
    def reduce1(ins):
        Lr = a.lab('r1'); Lr2 = a.lab('r2'); Lb = a.lab('b1')
        def attempt(x, young, L):
            a('s_waitcnt vmcnt(%d)' % (young + 1)); a(red(D, x, 0))
            a('s_waitcnt vmcnt(%d)' % young); a(red(D, x, 1))
            st('got1')
            a(tchk([x, x + 4]))
            a('s_nop 3')
            a(ror(D, 4)); a(ror(D + 1, 4))
            a('s_cbranch_vccnz ' + L)
            a(ror(D, 8)); a(ror(D + 1, 8))
            a(pub(D, MA, sM2w))
        attempt(X, 2 * ins, Lr2 if ins else Lr)
        a(Lb + ':')
        st('pub')
        def tail():
            x = VX if ins else X
            if ins:
                a(Lr2 + ':')
                if stamp: a('s_add_u32 s17, s17, 0x100')
                attempt(VX, 0, Lr)
                a('s_branch ' + Lb)
            retry(Lr, ldi(x, sP1r), tchk([x, x + 4], 'x'), (16, 1))
            a('s_nop 2')
            a(red(D, x, 0)); a(red(D, x, 1)); a('s_nop 7')
            a(ror(D, 4)); a(ror(D + 1, 4)); a('s_nop 0'); a(ror(D, 8)); a(ror(D + 1, 8))
            a(pub(D, MA, sM2w))
            if not ins: a('s_waitcnt vmcnt(1)')
            a('s_branch ' + Lb)
        tails.append(tail)
    def P(w, dflt):
        return [int(x) for x in str(opt.get('p%d' % w, dflt)).split('.')]
    LH = a.lab('wH'); Lw = {w: a.lab('w') for w in (1, 2)}
    a('s_cbranch_scc1 ' + LH)
    a('s_cmp_eq_u32 s4, 1'); a('s_cbranch_scc1 ' + Lw[1])
    a('s_cmp_eq_u32 s4, 2'); a('s_cbranch_scc1 ' + Lw[2])
    for w in (3, 2, 1):
        p = P(w, {1: '2.0.5.0.17.24.2', 2: '1.0.28.1.8.24.2', 3: '0.0.28.1.44.0.0'}[w])
        if w < 3: a(Lw[w] + ':')
        if p[3]: misc(); kb01()
        a('s_waitcnt vmcnt(%d)' % p[0])
        delay(p[1])
        st('ack1')
        a(ldi(X, sP1r))
        if not p[3]: misc(); kb01()
        if p[2]: delay(p[2] - 1); a(ldi(VX, sP1r))
        reduce1(1 if p[2] else 0)
        hop2(w, p[4:])
    p = P(0, '3.8.0.0.11.24.2')
    a(LH + ':')
    st('pre1')
    a(h_addr(HA, TT))
    a('s_waitcnt vmcnt(%d)' % p[0]); delay(p[1])
    st('ack1')
    ld3 = ldi(XH, sP1h) + ldi(X, sP1r)
    a(ld3)
    misc()
    Lr = a.lab('r1'); Lb = a.lab('b1')
    quads = [X, X + 4, XH, XH + 4]
    a('s_waitcnt vmcnt(2)'); a(red(DH, XH, 0)); a(red(DH, XH, 1))
    a('s_waitcnt vmcnt(1)'); a(red(D, X, 0))
    a('s_waitcnt vmcnt(0)'); a(red(D, X, 1))
    st('got1')
    a(tchk(quads))
    def fin3(br):
        a(ror(DH + 1, 4)); a(ror(D, 4)); a(ror(D + 1, 4))
        a(ror(DH + 1, 8)); a(ror(D, 8)); a(ror(D + 1, 8))
        if br: a('s_cbranch_vccnz ' + Lr)
        a(pub(D, MA, sM2w))
        a('v_mov_b32_dpp %s, %s quad_perm:[1,0,3,2] row_mask:0xf bank_mask:0xf' % (V(DH + 2), V(DH + 1)))
        a(pub(DH + 1, HA, sM2wh))
    fin3(1)
    a(Lb + ':')
    st('pub')
    hop2(0, p[4:])
    retry(Lr, ld3, tchk(quads, 'x'), (16, 1))
    a('s_nop 2')
    a(red(DH, XH, 0)); a(red(DH, XH, 1)); a(red(D, X, 0)); a(red(D, X, 1)); a('s_nop 6')
    fin3(0)
    a('s_waitcnt vmcnt(2)')
    a('s_branch ' + Lb)
    for t_ in tails: t_()
    for Lfw, Lf in lates:
        a(Lfw + ':')
        wait_flag(a, S(sFPB), S(sTm2), 'pb')
        a('s_branch ' + Lf)
    a(Lfail + ':')
    a('s_endpgm')

def chain(a, opt, flags_ready, wflags='nt', stamp=None, stamp_once=None, force_slow=False):
    srd(a, 8, 'B_wq'); srd(a, 12, 'B_wk'); srd(a, 16, 'B_wv'); srd(a, 24, 'B_wo'); srd(a, 28, 'dbg'); srd(a, 32, 'B_mem0')
    setup(a)
    a('s_waitcnt lgkmcnt(0)')
    load_weights(a, wflags, arrive, (8, opt.get('cL', 57)), early(a, opt, flags_ready))
    if stamp_once: stamp_once(a, 1)
    start(a, (lambda: stamp_once(a, 2)) if stamp_once else None)
    Lslow = a.lab('slow'); Lexit = a.lab('chexit')
    if force_slow: a('s_branch ' + Lslow)
    a('s_cbranch_scc0 ' + Lslow)
    step_loop(a, '', Lexit, opt, stamp)
    a(Lslow + ':')
    step_loop(a, 'sc1', Lexit, opt, stamp)
    a(Lexit + ':')
    q = Seq(a)
    a('s_add_u32 %s, %s, 0x10000' % (S(sKVM), S(sKVM)))
    for f in kvm_stores(q, a, W3, vPm): f()
    a('s_waitcnt vmcnt(0) lgkmcnt(0)')
    a('s_barrier')
    a('v_subrev_u32 %s, 0x10000, %s' % (V(vT16), V(vT16)))
    a('v_min_u32 %s, 16, %s' % (V(vT16), V(vT16))); a('v_lshlrev_b32 %s, 24, %s' % (V(vT16), V(vT16)))
    a('v_mov_b32 %s, 64' % V(vPm))
    a('buffer_store_dword %s, %s, %s, %s offen sc1' % (V(vPm), V(vT16), WS, S(sFCH)))
    if opt.get('diag') == 1:
        a('v_lshrrev_b32 v20, 1, %s' % V(vL16)); a('ds_read_b64 v[22:23], v20 offset:23552')
        a('s_lshl_b32 s94, %s, 9' % S(sH)); a('s_add_u32 s94, s94, 0x%x' % (WS_STAMP + 0x10000)); a('s_waitcnt lgkmcnt(0)')
        a('buffer_store_dwordx2 v[22:23], v20, %s, s94 offen' % WS)
```

```python
from common import *
WS = 's[20:23]'
sCs, sT0, sDT, sN, sCtx, sOcol, sFb, sDX, sRot0 = range(32, 41)
sT, sTn, sCnt, sRot, sTmp, sA, sB, sNb, sLb, sSpin, sNeed, sHh, sFo, sOo = range(41, 55)
vL16, vFl, vFa, vRa, vWa, vOa, vRb, vPk = 1, 2, 3, 4, 5, 6, 7, 8
vW2 = 14
vWb = 16
vX, vAcc = 32, 96
WAVE = 40960
def wreg(j, ct, z=None):
    i = (3 * j + ct) * 4
    i = 256 + i if i < 256 else 128 + i - 256
    return U(i, 4) if z is None else U(i + 2 * z, 2)

def load_weights(a, wflags, D):
    vD, vR = 8, 10
    a('v_bfe_u32 v14, v15, 5, 1'); a('v_bfe_u32 v16, v15, 3, 1'); a('v_lshl_add_u32 v14, v14, 1, v16')
    a('v_bfe_u32 v16, v15, 4, 1'); a('v_lshl_add_u32 v14, v16, 6, v14'); a('v_mul_u32_u24 v14, 1152, v14')
    a('v_bfe_u32 v17, v15, 1, 2'); a('v_xor_b32 v17, v17, v16'); a('v_lshlrev_b32 v17, 5, v17')
    a('v_and_b32 v16, 1, v15'); a('v_lshl_add_u32 v17, v16, 4, v17')
    a('v_add_u32 %s, v14, v17' % V(vD))
    a('v_xor_b32 v17, 64, v17'); a('v_add_u32 %s, v14, v17' % V(vD + 1))
    a('v_lshrrev_b32 v14, 4, v15'); a('v_bfe_u32 v16, v15, 2, 2'); a('v_lshl_add_u32 v14, v14, 3, v16'); a('v_lshlrev_b32 v14, 7, v14')
    a('v_bfe_u32 v16, v15, 3, 2'); a('v_lshl_add_u32 v14, v16, 5, v14')
    a('v_and_b32 v16, 3, v15'); a('v_lshl_add_u32 v14, v16, 3, v14')
    for ct in range(4):
        a('v_xor_b32 v16, %d, v14' % (32 * ct)); a('v_add_u32 %s, %s, v16' % (V(vR + ct), S(sLb)))
    a('s_lshl_b32 %s, %s, 7' % (S(sB), S(sCs)))
    def slot(j): return 8192 + 4096 * (j % 8)
    def dma(j):
        if j % 4 == 0:
            a('s_add_u32 %s, %s, %d' % (S(sA), S(sRot), j // 4)); a('s_and_b32 %s, %s, 7' % (S(sA), S(sA)))
            a('s_lshl_b32 %s, s4, 3' % S(sTmp)); a('s_add_u32 %s, %s, %s' % (S(sA), S(sA), S(sTmp)))
            a('s_mul_i32 %s, %s, 147456' % (S(sA), S(sA))); a('s_add_u32 %s, %s, %s' % (S(sA), S(sA), S(sB)))
        for y in range(4):
            a('s_add_u32 m0, %s, %d' % (S(sLb), slot(j) + 1024 * y))
            a('s_add_u32 %s, %s, %d' % (S(sTmp), S(sA), (16 * (j % 4) + 4 * y) * 1152))
            a('buffer_load_dwordx4 %s, s[8:11], %s offen %s lds' % (V(vD + y % 2), S(sTmp), wflags))
    def held(j): return vWb + 4 * (j % 2) if j < 8 else vX + 4 * (j - 8)
    for j in range(D): dma(j)
    for j in range(32):
        a('s_waitcnt vmcnt(%d) lgkmcnt(0)' % (4 * min(D - 1, 31 - j)))
        if j + D < 32: dma(j + D)
        if 1 <= j <= 8: a('ds_write_b128 %s, %s offset:%d' % (V(vWa), V(held(j - 1), 4), 1024 * (j - 1)))
        for ct in range(4):
            for z in range(2):
                dst = wreg(j, ct, z) if ct < 3 else V(held(j) + 2 * z, 2)
                a('ds_read_b64_tr_b16 %s, %s offset:%d' % (dst, V(vR + ct), slot(j) + 512 * z))
    a('s_waitcnt lgkmcnt(0)')
    for j in range(8, 32): a('ds_write_b128 %s, %s offset:%d' % (V(vWa), V(held(j), 4), 1024 * j))
    a('s_waitcnt lgkmcnt(0)')

def ostream(a, flag_off, fcnt, wflags='', pre=None, stamp=None, slp=4, oflags='', D=6):
    st = stamp or (lambda a, i: None)
    a('v_and_b32 v15, 63, v0'); a('v_lshlrev_b32 %s, 4, v15' % V(vL16))
    a('v_and_b32 %s, %s, v15' % (V(vFa), fcnt)); a('v_lshlrev_b32 %s, 2, %s' % (V(vFa), V(vFa)))
    a('v_lshrrev_b32 v14, 4, v15'); a('v_min_u32 v14, 1, v14'); a('v_lshl_or_b32 %s, v14, 28, %s' % (V(vFa), V(vFa)))
    a('s_add_u32 %s, %s, %s' % (S(sRot), S(sCs), S(sRot0))); a('s_and_b32 %s, %s, 7' % (S(sRot), S(sRot)))
    a('s_mov_b32 %s, 0x%x' % (S(sSpin), SPIN))
    a('s_mul_i32 %s, s4, %d' % (S(sLb), WAVE))
    a('v_add_u32 %s, %s, %s' % (V(vWa), S(sLb), V(vL16)))
    load_weights(a, wflags, D)
    a('v_lshrrev_b32 v13, 2, v15'); a('v_and_b32 v14, 3, v15')
    a('s_lshr_b32 %s, s4, 1' % S(sTmp)); a('s_mul_i32 %s, %s, %d' % (S(sTmp), S(sTmp), 16 * 2304))
    a('s_and_b32 %s, s4, 1' % S(sA)); a('s_lshl_b32 %s, %s, 6' % (S(sA), S(sA))); a('s_add_u32 %s, %s, %s' % (S(sTmp), S(sTmp), S(sA)))
    a('s_add_u32 %s, %s, %s' % (S(sOcol), S(sOcol), S(sTmp)))
    a('v_mul_u32_u24 %s, 2304, v13' % V(vOa)); a('v_lshl_add_u32 %s, v14, 4, %s' % (V(vOa), V(vOa)))
    a('v_lshl_add_u32 v13, v14, 2, v13'); a('v_and_b32 v13, 15, v13'); a('v_lshlrev_b32 v13, 4, v13')
    a('s_lshl_b32 %s, s4, 11' % S(sTmp))
    a('v_lshl_add_u32 v12, v14, 9, v13'); a('v_add_u32 v12, %s, v12' % S(sTmp))
    a('v_lshrrev_b32 v13, 5, v15'); a('v_lshl_add_u32 v13, v13, 2, v15'); a('v_and_b32 v13, 15, v13')
    a('v_and_or_b32 v13, v15, 48, v13'); a('v_lshlrev_b32 v13, 4, v13')
    a('v_xor_b32 v14, 0x80, v13')
    a('v_add_u32 %s, %s, v14' % (V(vW2 + 1), S(sLb))); a('v_add_u32 %s, %s, v13' % (V(vW2), S(sLb)))
    a('v_add_u32 %s, %d, v12' % (V(vRa), 32768)); a('v_add_u32 %s, %d, v12' % (V(vRb), 32768 + 2 * WAVE))
    a('s_lshl_b32 %s, %s, 7' % (S(sTmp), S(sCs))); a('s_add_u32 %s, %s, %s' % (S(sOcol), S(sOcol), S(sTmp)))
    a('s_lshl_b32 %s, s4, 16' % S(sTmp)); a('s_add_u32 %s, %s, %s' % (S(sCtx), S(sCtx), S(sTmp)))
    a('s_mov_b32 %s, %s' % (S(sTn), S(sT0)))
    a('s_mov_b32 %s, 0' % S(sCnt))
    if pre: pre(a)
    st(a, 6)
    FL = 'buffer_load_dword %s, %s, %s, %s offen sc1' % (V(vFl), V(vFa), WS, S(sFo))
    CK = ['v_cmp_gt_u32 vcc, %s, %s' % (S(sNeed), V(vFl)), 's_and_b32 %s, vcc_lo, 0xffff' % S(sHh)]
    def spin(L, Lok):
        a(L + ':'); a(FL)
        a('s_waitcnt vmcnt(0)')
        a(CK)
        a('s_cbranch_scc0 ' + Lok)
        a('s_sleep %d' % slp)
        a('s_sub_u32 %s, %s, 1' % (S(sSpin), S(sSpin))); a('s_cbranch_scc0 ' + L)
        a('s_endpgm')
    def head_off(hh):
        return ['s_add_u32 %s, %s, %d' % (S(sHh), S(sRot), hh), 's_and_b32 %s, %s, 7' % (S(sHh), S(sHh)),
                's_lshl_b32 %s, %s, 13' % (S(sHh), S(sHh)), 's_add_u32 %s, %s, %s' % (S(sA), S(sNb), S(sHh)),
                's_add_u32 %s, %s, 4096' % (S(sB), S(sA))]
    def xload(j, tt):
        b = 2 * (j % 4) + tt
        return 'buffer_load_dwordx4 %s, %s, %s, %s offen offset:%d sc1' % (V(vX + 8 * (j % 8) + 4 * tt, 4), V(vL16), WS, S(sB if b >= 4 else sA), 1024 * (b % 4))
    def wread(j): return 'ds_read_b128 %s, %s offset:%d' % (V(vWb + 4 * (j % 4), 4), V(vWa), 1024 * (j % 32))
    NB = ['s_lshl_b32 %s, %s, 18' % (S(sNb), S(sTn)), 's_add_u32 %s, %s, %s' % (S(sNb), S(sNb), S(sCtx))]
    L0 = a.lab('os0'); L0k = a.lab('os0k')
    a(flag_off(sFo, sTn))
    a(wread(0)); a(wread(1))
    spin(L0, L0k)
    a(L0k + ':')
    a(NB)
    for j in range(8):
        if j % 4 == 0: a(head_off(j // 4))
        a(xload(j, 0)); a(xload(j, 1))
    Lloop = a.lab('osl'); Lw = a.lab('osw'); Lwk = a.lab('oswk'); Lend = a.lab('ose')
    a('.p2align 3'); a(Lloop + ':')
    for j in range(32):
        sal = []
        if j == 1:
            sal = ['s_mov_b32 %s, %s' % (S(sT), S(sTn)), 's_add_u32 %s, %s, 1' % (S(sCnt), S(sCnt)), 's_cmp_lt_u32 %s, %s' % (S(sCnt), S(sN)),
                   's_cselect_b32 %s, %s, 0' % (S(sTmp), S(sDT)), 's_xor_b32 %s, %s, %s' % (S(sDT), S(sDT), S(sDX)),
                   's_add_u32 %s, %s, %s' % (S(sTn), S(sTn), S(sTmp))]
        if j == 2: sal = flag_off(sFo, sTn)
        if j == 3: sal = ['s_mul_i32 %s, %s, %d' % (S(sOo), S(sT), 32 * 2304), 's_add_u32 %s, %s, %s' % (S(sOo), S(sOo), S(sOcol))]
        if j == 10: sal = ['s_barrier']
        if j == 13: sal = [FL]
        if j == 22: sal = CK[:1]
        if j == 23: sal = CK[1:] + [['s_cbranch_scc1 ' + Lw, Lwk + ':']] + NB
        if j % 4 == 0: sal = head_off((j // 4 + 2) % 8)
        a('s_waitcnt vmcnt(14) lgkmcnt(1)')
        for tt in range(2):
            for ct in range(4):
                d = V(vAcc + 16 * tt + 4 * ct, 4)
                w = wreg(j, ct) if ct < 3 else V(vWb + 4 * (j % 4), 4)
                a('v_mfma_f32_16x16x32_bf16 %s, %s, %s, %s' % (d, w, V(vX + 8 * (j % 8) + 4 * tt, 4), d if j else '0'))
                if ct == 3: a(xload(j + 8, tt))
                elif tt == 0: a(sal[2 * ct:2 * ct + 2])
                elif ct == 0: a(wread(j + 2))
    a('s_cmp_lt_u32 %s, %s' % (S(sCnt), S(sN)))
    for t in range(8): a('ds_write_b128 %s, %s offset:%d' % (V(vW2 + t % 2), V(vAcc + 4 * t, 4), 32768 + 1024 * t))
    a('s_waitcnt lgkmcnt(0)')
    a('s_barrier')
    for w in range(4):
        for gg in range(2): a('ds_read_b128 %s, %s offset:%d' % (V(vAcc + 8 * w + 4 * gg, 4), V(vRb if w >= 2 else vRa), WAVE * (w % 2) + 256 * gg))
    for w in range(1, 4):
        a('s_waitcnt lgkmcnt(%d)' % (6 - 2 * w))
        for i in range(4): a('v_pk_add_f32 %s, %s, %s' % (V(vAcc + 2 * i, 2), V(vAcc + 2 * i, 2), V(vAcc + 8 * w + 2 * i, 2)))
    for i in range(4): a('v_cvt_pk_bf16_f32 %s, %s, %s' % (V(vPk + i), V(vAcc + 2 * i), V(vAcc + 2 * i + 1)))
    a('buffer_store_dwordx4 %s, %s, s[24:27], %s offen %s' % (V(vPk, 4), V(vOa), S(sOo), oflags))
    a('s_cbranch_scc1 ' + Lloop)
    a('s_branch ' + Lend)
    spin(Lw, Lwk)
    a(Lend + ':')
    a('s_waitcnt vmcnt(0)')
```

```python
import sys, os
from common import *
import pstream as P, chain as C, att as T, qb as Q, ostream as O, hazard

def gen(opt, name):
    a = Asm()
    diag = opt.get('diag')
    perm = [int(c) for c in str(opt.get('perm', 'p02145673'))[1:]]
    ROLE = sum(r << (4 * i) for i, r in enumerate(perm))
    def stamp(a, idx, v=20, who='x'):
        if not diag: return
        if diag == 2:
            slot = {(0, 'x'): 4, (1, 'c'): 6, (2, 'c'): 7, (7, 'c'): 8, (7, 'x'): 9, (1, 'x'): 10, (2, 'x'): 11, (5, 'x'): 12, (6, 'x'): 13}.get((idx, who))
            if slot is None: return
            a('s_load_dwordx2 s[84:85], s[0:1], 112'); a('s_memrealtime s[96:97]'); a('s_mov_b32 s86, 256'); a('s_mov_b32 s87, 0x20000'); a('s_waitcnt lgkmcnt(0)')
            a('v_mbcnt_lo_u32_b32 v%d, -1, s4' % (v + 2)); a('v_min_u32 v%d, 1, v%d' % (v + 2, v + 2)); a('v_lshlrev_b32 v%d, 28, v%d' % (v + 2, v + 2))
            a('v_mov_b32 v%d, s96' % v); a('v_not_b32 v%d, v%d' % (v + 1, v))
            a('buffer_atomic_umax v%d, v%d, s[84:87], 0 offen offset:%d' % (v, v + 2, 4 * slot))
            if idx == 0: a('buffer_atomic_umax v%d, v%d, s[84:87], 0 offen offset:%d' % (v + 1, v + 2, 4 * slot + 4))
            return
        a('s_memrealtime s[96:97]'); a('s_memtime s[98:99]'); a('s_waitcnt lgkmcnt(0)')
        a('v_mov_b32 v%d, s98' % v); a('v_mov_b32 v%d, s96' % (v + 1))
        a('s_lshl_b32 s96, s2, 6'); a('s_add_u32 s96, s96, %d' % (WS_STAMP + idx * 8))
        a('v_mov_b32 v%d, 0' % (v + 2))
        a('buffer_store_dwordx2 v[%d:%d], v%d, s[20:23], s96 offen' % (v, v + 1, v + 2))
    def far(cond, lab):
        a('s_cbranch_%s %s' % (cond, lab))
    def rho_check(a, v=20, loaded=False):
        L = a.lab('rh'); Lc = a.lab('rhc'); Lok = a.lab('rhk')
        if loaded: a('s_branch ' + Lc)
        a(L + ':')
        a(rho_load(v)); a('s_waitcnt vmcnt(0)')
        a(Lc + ':')
        a('v_readfirstlane_b32 s89, v%d' % v)
        a('s_cmp_eq_u32 s89, s88'); a('s_cbranch_scc1 ' + Lok)
        a('s_cmp_lg_u32 s89, 0'); a('s_cbranch_scc1 Lredo')
        a('s_sub_u32 s95, s95, 1'); a('s_cbranch_scc0 ' + L)
        a('s_endpgm')
        a(Lok + ':')
    def rho_load(v):
        return ['v_mbcnt_lo_u32_b32 v%d, -1, 0' % (v + 1), 'v_min_u32 v%d, 1, v%d' % (v + 1, v + 1), 'v_lshlrev_b32 v%d, 28, v%d' % (v + 1, v + 1),
                'buffer_load_dword v%d, v%d, s[28:31], 0 offen offset:4 sc1' % (v, v + 1)]
    def flags_ready(a, v=20, gate=False):
        L = a.lab('fr'); Lok = a.lab('frk')
        rho_check(a, v)
        a('s_cmp_lg_u32 s4, 0'); a('s_cbranch_scc1 ' + Lok)
        a('v_min_u32 v%d, 1, v0' % (v + 1)); a('v_lshlrev_b32 v%d, 28, v%d' % (v + 1, v + 1))
        a(L + ':')
        if gate == 2:
            a('s_cmp_eq_u32 s5, 2'); a('s_cselect_b32 s7, 0, 0x80')
            a('buffer_load_dword v%d, v%d, s[28:31], s7 offen sc1' % (v, v + 1))
        else: a('buffer_load_dword v%d, v%d, s[28:31], 0 offen offset:%d sc1' % (v, v + 1, 128 if gate else 0))
        a('s_waitcnt vmcnt(0)')
        a('v_cmp_eq_u32 vcc, %d, v%d' % (1, v))
        a('s_cbranch_vccnz ' + Lok)
        if gate: a('s_sleep 12')
        a('s_sub_u32 s95, s95, 1'); a('s_cbranch_scc0 ' + L)
        a('s_endpgm')
        a(Lok + ':')
    def flag_lane(off_code):
        a(off_code)
        a('v_min_u32 v1, 1, v0'); a('v_lshlrev_b32 v1, 28, v1'); a('v_add_u32 %s, s7, v1' % V(P.vFlagOff))
    def ps_pre(a): flags_ready(a); stamp(a, 1)
    def ps_gate(a): flags_ready(a, gate=opt.get('usegate', 1)); stamp(a, 1)
    xf, wf = opt.get('xf', ''), opt.get('wf', '')
    a('s_cmp_ge_u32 s2, 256'); far('scc1', 'Lend')
    srd(a, 20, 'ws'); srd(a, 28, 'dbg')
    a('v_lshrrev_b32 v1, 6, v0')
    a('s_lshr_b32 s6, s2, 3')
    a('v_readfirstlane_b32 s4, v1')
    a('s_getreg_b32 s73, hwreg(HW_REG_XCC_ID, 0, 3)')
    a('s_sub_u32 s88, s73, s2'); a('s_and_b32 s88, s88, 7'); a('s_add_u32 s88, s88, 1')
    if opt.get('norot'): a('s_mov_b32 s88, 1')
    a('s_mov_b32 s95, 0x%x' % SPIN)
    a('s_waitcnt lgkmcnt(0)')
    a('s_cmp_eq_u32 s2, 0'); a('s_cbranch_scc0 Lrole')
    a('v_min_u32 v1, 1, v0'); a('v_lshlrev_b32 v1, 28, v1'); a('v_mov_b32 v2, s88')
    a('buffer_store_dword v2, v1, s[28:31], 0 offen offset:4 sc1')
    a('Lrole:')
    a('s_add_u32 s5, s2, s88'); a('s_sub_u32 s5, s5, 1'); a('s_and_b32 s5, s5, 7')
    a('s_lshl_b32 s5, s5, 2'); a('s_lshr_b32 s5, 0x%x, s5' % ROLE); a('s_and_b32 s5, s5, 7')
    stamp(a, 0)
    if opt.get('tlb', 0):
        a('s_cmp_eq_u32 s4, 3'); a('s_cbranch_scc0 Ltlb')
        a('v_and_b32 v1, 63, v0'); a('v_lshlrev_b32 v1, 21, v1'); a('s_lshl_b32 s7, s6, 14')
        a('buffer_load_dword v254, v1, s[20:23], s7 offen sc1')
        a('Ltlb:')
    if opt.get('cpf', 0):
        a('s_getpc_b64 s[8:9]'); a('Lpc:')
        a('s_lshl_b32 s7, s6, 13'); a('s_cmp_le_u32 s7, Lend - Lpc'); a('s_cselect_b32 s3, s4, 1')
        a('s_cmp_eq_u32 s3, 0'); a('s_cbranch_scc0 Lcpf')
        a('v_lshl_add_u32 v1, v0, 7, s7'); a('v_min_u32 v1, Lend - Lpc, v1')
        a('global_load_dword v255, v1, s[8:9]')
        a('Lcpf:')
    a('s_cmp_eq_u32 s5, 0'); far('scc1', 'Lchain')
    a('s_cmp_eq_u32 s5, 1'); far('scc1', 'Lpb')
    a('s_cmp_lt_u32 s5, 4'); far('scc1', 'Lqa')
    srd(a, 8, 'A_ckv'); srd(a, 12, 'A_wuk'); srd(a, 16, 'A_wuv')
    a('s_sub_u32 s3, s5, 4'); a('s_lshl_b32 s3, s3, 3'); a('s_lshr_b32 s7, s6, 2'); a('s_add_u32 s3, s3, s7')
    a('s_lshl_b32 s32, s3, 8'); a('s_mov_b32 s33, s32')
    a('s_lshl_b32 s34, s3, 14'); a('s_add_u32 s34, s34, 0x%x' % WS_KVA); a('s_add_u32 s35, s34, 8192')
    a('s_mov_b32 s36, 16'); a('s_and_b32 s37, s6, 3')
    flag_lane(['s_lshl_b32 s7, s3, 5', 's_add_u32 s7, s7, s37', 's_lshl_b32 s7, s7, 2', 's_add_u32 s7, s7, 0x%x' % FLAG(FL_PA)])
    a('s_waitcnt lgkmcnt(0)')
    P.pstream(a, 512, 'kv', 16384 * 32, P.default_next(4), xflags=xf, wflags=wf, pre_loop=ps_gate, xpf=opt.get('xpf', 1), flag='end')
    stamp(a, 2)
    a('s_mov_b32 s32, s3'); a('s_and_b32 s33, s6, 3'); a('s_sub_u32 s34, 7, s33')
    def att_wait(first):
        def f(a):
            L = a.lab('aw'); Lok = a.lab('awk')
            if first:
                a('s_lshl_b32 s7, s3, 7'); a('s_add_u32 s7, s7, 0x%x' % FLAG(FL_PA))
                a('s_lshr_b32 s94, s3, 1'); a('s_lshl_b32 s94, s94, 7'); a('s_add_u32 s94, s94, 0x%x' % FLAG(FL_QA))
            a('v_min_u32 v10, 16, v1'); a('v_lshlrev_b32 v10, 24, v10')
            a(L + ':')
            a('buffer_load_dwordx4 v[240:243], v10, s[20:23], s94 offen sc1')
            if first: a('buffer_load_dwordx4 v[244:247], v10, s[20:23], s7 offen sc1')
            a('s_waitcnt vmcnt(0)')
            a('v_min3_u32 v240, v240, v241, v242'); a('v_min_u32 v240, v240, v243')
            if first: a('v_lshlrev_b32 v240, 1, v240'); a('v_min3_u32 v240, v240, v244, v245'); a('v_min3_u32 v240, v240, v246, v247')
            a('v_cmp_le_u32 vcc, 16, v240')
            a('s_cbranch_vccnz ' + Lok)
            a('s_sleep 2')
            a('s_sub_u32 s95, s95, 1'); a('s_cbranch_scc0 ' + L)
            a('s_endpgm')
            a(Lok + ':')
        return f
    T.att(a, att_wait(1), att_wait(0), opt, (lambda a, i: stamp(a, i, 8)))
    stamp(a, 5)
    a('s_cmp_ge_u32 s6, 27'); far('scc1', 'Lfin')
    srd(a, 8, 'A_wo')
    a('s_mul_i32 s7, s6, 29'); a('s_lshr_b32 s7, s7, 8'); a('s_mul_i32 s94, s7, 9')
    a('s_sub_u32 %s, s6, s94' % S(O.sCs))
    a('s_mul_i32 %s, s7, 3' % S(O.sRot0))
    a('s_lshl_b32 s7, s7, 2'); a('s_add_u32 s7, s7, s5'); a('s_sub_u32 %s, s7, 4' % S(O.sT0))
    a('s_mov_b32 %s, 12' % S(O.sDT)); a('s_cmp_lt_u32 %s, 4' % S(O.sT0)); a('s_cselect_b32 %s, 6, 5' % S(O.sN))
    a('s_mov_b32 %s, 0x%x' % (S(O.sCtx), WS_CTXA)); a('s_mov_b32 %s, 0' % S(O.sOcol))
    a('s_lshl_b32 %s, s4, 5' % S(O.sFb)); a('s_add_u32 %s, %s, 0x%x' % (S(O.sFb), S(O.sFb), FLAG(FL_AT)))
    a('s_mov_b32 %s, 0' % S(O.sDX))
    a('s_mov_b32 s93, 0x38'); a('s_mov_b32 s92, 7'); a('s_mov_b32 s91, 4'); a('s_mov_b32 s90, 31')
    a('s_branch Los')
    a('Lpb:')
    srd(a, 8, 'B_x'); srd(a, 12, 'B_wk'); srd(a, 16, 'B_wv')
    a('s_lshl_b32 s32, s6, 8'); a('s_mov_b32 s33, s32')
    a('s_lshl_b32 s34, s6, 14'); a('s_add_u32 s34, s34, 0x%x' % WS_KVB); a('s_add_u32 s35, s34, 8192')
    a('s_mov_b32 s36, 64'); a('s_mov_b32 s37, 0')
    flag_lane(['s_lshl_b32 s7, s6, 7', 's_add_u32 s7, s7, 0x%x' % FLAG(FL_PB)])
    a('s_waitcnt lgkmcnt(0)')
    P.pstream(a, 576, 'kv', 16384 * 32, P.default_next(1), xflags=xf, wflags=wf, pre_loop=ps_pre, xpf=opt.get('xpf', 1), soon=opt.get('soon', 1), kscale=1)
    a('s_branch Lfin')
    a('Lqa:')
    srd(a, 8, 'A_x'); srd(a, 12, 'A_wq'); srd(a, 16, 'A_wq')
    a('s_lshl_b32 s7, s5, 5'); a('s_add_u32 s7, s7, s6'); a('s_cmp_eq_u32 s7, %d' % (3 * 32 + 31)); a('s_cbranch_scc0 Lqa1')
    rho_check(a, 4)
    for i in range(4): a('v_mov_b32 v%d, 0' % (4 + i))
    a('v_lshlrev_b32 v1, 4, v0')
    for i in range(5):
        a('s_mov_b32 s7, %d' % (WS_FLAGS + 4096 * i))
        a('buffer_store_dwordx4 v[4:7], v1, s[20:23], s7 offen sc1')
    a('v_min_u32 v1, 1, v0'); a('v_lshlrev_b32 v1, 28, v1'); a('v_mov_b32 v2, 1')
    a('s_waitcnt vmcnt(0)'); a('s_barrier')
    a('buffer_store_dword v2, v1, s[28:31], 0 offen sc1')
    a('Lqa1:')
    a('s_sub_u32 s3, s5, 2'); a('s_lshl_b32 s3, s3, 3'); a('s_lshr_b32 s7, s6, 2'); a('s_add_u32 s3, s3, s7')
    a('s_lshl_b32 s32, s3, 9'); a('s_add_u32 s33, s32, 256')
    a('s_lshl_b32 s34, s3, 14'); a('s_add_u32 s34, s34, 0x%x' % WS_QA); a('s_add_u32 s35, s34, 8192')
    a('s_mov_b32 s36, 16'); a('s_and_b32 s37, s6, 3')
    flag_lane(['s_lshl_b32 s7, s3, 5', 's_add_u32 s7, s7, s37', 's_lshl_b32 s7, s7, 2', 's_add_u32 s7, s7, 0x%x' % FLAG(FL_QA)])
    a('s_waitcnt lgkmcnt(0)')
    P.pstream(a, 576, 'qq', 8192 * 32, P.default_next(4), xflags=xf, wflags=wf, pre_loop=lambda a: (flags_ready(a, gate=opt.get('gq', 2)), stamp(a, 1)), xpf=opt.get('xpf', 1))
    stamp(a, 2)
    a('s_sub_u32 s3, s5, 2')
    a('s_add_u32 s7, s6, s3'); a('s_cmp_ge_u32 s7, 30'); far('scc1', 'Lfin')
    a('s_cmp_ge_u32 s6, 16'); far('scc1', 'Lob')
    srd(a, 8, 'B_x'); srd(a, 12, 'B_wq'); srd(a, 16, 'B_wq')
    a('s_lshl_b32 s32, s6, 9'); a('s_add_u32 s33, s32, 256')
    a('s_mov_b32 s36, 32'); a('s_mov_b32 s37, s3')
    a('s_lshl_b32 %s, s6, 1' % S(Q.sHm))
    a('s_lshl_b32 s7, s3, 4'); a('s_add_u32 s7, s7, s6'); a('s_and_b32 s94, s7, 3'); a('s_lshr_b32 s7, s7, 2'); a('s_lshl_b32 s7, s7, 5')
    a('s_add_u32 s7, s7, s94'); a('s_lshl_b32 s7, s7, 2'); a('s_add_u32 %s, s7, 0x%x' % (S(Q.sFq), FLAG(FL_QB)))
    a('s_waitcnt lgkmcnt(0)')
    Q.qb(a, P.default_next(2), xflags=xf, wflags=opt.get('wf2', ''), stamp=stamp)
    a('s_branch Lfin')
    a('Lob:')
    srd(a, 8, 'B_wo')
    a('s_sub_u32 %s, s6, 16' % S(O.sCs))
    a('s_mul_i32 s7, s3, 5'); a('s_add_u32 s7, s7, s6'); a('s_sub_u32 s7, s7, 25')
    a('s_cmp_lt_u32 s6, 25')
    a('s_cselect_b32 %s, %s, s7' % (S(O.sCs), S(O.sCs)))
    a('s_cselect_b32 %s, s3, 4' % S(O.sT0)); a('s_cselect_b32 %s, 2, 1' % S(O.sDT)); a('s_cselect_b32 %s, 6, 4' % S(O.sDX))
    a('s_cselect_b32 %s, 22, 20' % S(O.sN)); a('s_cselect_b32 %s, 0, 4' % S(O.sRot0))
    a('s_mov_b32 %s, 0x%x' % (S(O.sCtx), WS_CTXB)); a('s_mov_b32 %s, 1152' % S(O.sOcol))
    a('s_lshl_b32 s7, s4, 7'); a('s_add_u32 %s, s7, 0x%x' % (S(O.sFb), FLAG(FL_QB)))
    a('s_mov_b32 s93, 1'); a('s_mov_b32 s92, 3'); a('s_mov_b32 s91, 9'); a('s_mov_b32 s90, 1')
    a('Los:')
    srd(a, 24, 'out')
    a('s_waitcnt lgkmcnt(0)')
    O.ostream(a, lambda d, t: ['s_and_b32 %s, %s, s93' % (S(d), S(t)), 's_lshl_b32 %s, %s, s91' % (S(d), S(d)), 's_add_u32 %s, %s, %s' % (S(d), S(d), S(O.sFb)),
                               's_lshr_b32 %s, %s, s90' % (S(O.sNeed), S(t)), 's_add_u32 %s, %s, 1' % (S(O.sNeed), S(O.sNeed))],
              's92', wflags=opt.get('wf2', ''), stamp=stamp, slp=opt.get('slp', 4), oflags=opt.get('of', ''), D=opt.get('od', 6))
    a('s_branch Lfin')
    a('Lchain:')
    C.chain(a, opt, (rho_load, rho_check), wflags=wf, stamp_once=(lambda a, i: stamp(a, i, 20, 'c')) if diag else None, force_slow=opt.get('slow'))
    if diag == 2: stamp(a, 7, 20, 'c')
    a('Lfin:')
    stamp(a, 7)
    a('Lend:')
    a('s_endpgm')
    a('Lredo:')
    a('s_mov_b32 s88, s89')
    a('s_waitcnt vmcnt(0) lgkmcnt(0)')
    a('s_barrier')
    a('s_branch Lrole')
    head = open(os.path.join(os.path.dirname(os.path.abspath(__file__)), 'header.txt')).read()
    t = head + '; @launch grid=(256,1,1) block=(256,1,1) lds=163840\n' + HEAD + kernel_open(name) + a.text() + RODATA + kernel_desc(name)
    assert hazard.check(t) == 0
    return t
if __name__ == '__main__':
    opt = {}
    for x in (sys.argv[1] if len(sys.argv) > 1 else '').split(','):
        if x:
            k, v = x.split('='); opt[k] = int(v) if v.lstrip('-').isdigit() else v
    print(gen(opt, KNAME + '_kernel'), end='')
```

```python
import sys, os
from common import *
import pstream as P, chain as C, att as T, qb as Q, ostream as O, hazard

def gen(opt, name):
    a = Asm()
    diag = opt.get('diag')
    perm = [int(c) for c in str(opt.get('perm', 'p14023567'))[1:]]
    ROLE = sum(r << (4 * i) for i, r in enumerate(perm))
    def stamp(a, idx, v=20, who='x'):
        if not diag: return
        if diag == 2:
            slot = {(0, 'x'): 4, (1, 'c'): 6, (2, 'c'): 7, (7, 'c'): 8, (7, 'x'): 9, (1, 'x'): 10, (2, 'x'): 11, (5, 'x'): 12, (6, 'x'): 13}.get((idx, who))
            if slot is None: return
            a('s_load_dwordx2 s[84:85], s[0:1], 112'); a('s_memrealtime s[96:97]'); a('s_mov_b32 s86, 256'); a('s_mov_b32 s87, 0x20000'); a('s_waitcnt lgkmcnt(0)')
            a('v_mbcnt_lo_u32_b32 v%d, -1, s4' % (v + 2)); a('v_min_u32 v%d, 1, v%d' % (v + 2, v + 2)); a('v_lshlrev_b32 v%d, 28, v%d' % (v + 2, v + 2))
            a('v_mov_b32 v%d, s96' % v); a('v_not_b32 v%d, v%d' % (v + 1, v))
            a('buffer_atomic_umax v%d, v%d, s[84:87], 0 offen offset:%d' % (v, v + 2, 4 * slot))
            if idx == 0: a('buffer_atomic_umax v%d, v%d, s[84:87], 0 offen offset:%d' % (v + 1, v + 2, 4 * slot + 4))
            return
        a('s_memrealtime s[96:97]'); a('s_memtime s[98:99]'); a('s_waitcnt lgkmcnt(0)')
        a('v_mov_b32 v%d, s98' % v); a('v_mov_b32 v%d, s96' % (v + 1))
        a('s_lshl_b32 s96, s2, 6'); a('s_add_u32 s96, s96, %d' % (WS_STAMP + idx * 8))
        a('v_mov_b32 v%d, 0' % (v + 2))
        a('buffer_store_dwordx2 v[%d:%d], v%d, s[20:23], s96 offen' % (v, v + 1, v + 2))
    def probe(k):
        for i in range(opt.get(k, 0)): a('s_sleep 64')
    def far(cond, lab):
        a('s_cbranch_%s %s' % (cond, lab))
    def rho_check(a, v=20, loaded=False):
        L = a.lab('rh'); Lc = a.lab('rhc'); Lok = a.lab('rhk')
        if loaded: a('s_branch ' + Lc)
        a(L + ':')
        a(rho_load(v)); a('s_waitcnt vmcnt(0)')
        a(Lc + ':')
        a('v_readfirstlane_b32 s89, v%d' % v)
        a('s_cmp_eq_u32 s89, s88'); a('s_cbranch_scc1 ' + Lok)
        a('s_cmp_lg_u32 s89, 0'); a('s_cbranch_scc1 Lredo')
        a('s_sub_u32 s95, s95, 1'); a('s_cbranch_scc0 ' + L)
        a('s_endpgm')
        a(Lok + ':')
    def rho_load(v):
        return ['v_mbcnt_lo_u32_b32 v%d, -1, 0' % (v + 1), 'v_min_u32 v%d, 1, v%d' % (v + 1, v + 1), 'v_lshlrev_b32 v%d, 28, v%d' % (v + 1, v + 1),
                'buffer_load_dword v%d, v%d, s[28:31], 0 offen offset:4 sc1' % (v, v + 1)]
    def flags_ready(a, v=20, gate=False):
        L = a.lab('fr'); Lok = a.lab('frk')
        rho_check(a, v)
        a('s_cmp_lg_u32 s4, 0'); a('s_cbranch_scc1 ' + Lok)
        a('v_min_u32 v%d, 1, v0' % (v + 1)); a('v_lshlrev_b32 v%d, 28, v%d' % (v + 1, v + 1))
        a(L + ':')
        if gate == 2:
            a('s_cmp_eq_u32 s5, 2'); a('s_cselect_b32 s7, 0, 0x80')
            a('buffer_load_dword v%d, v%d, s[28:31], s7 offen sc1' % (v, v + 1))
        else: a('buffer_load_dword v%d, v%d, s[28:31], 0 offen offset:%d sc1' % (v, v + 1, 128 if gate else 0))
        a('s_waitcnt vmcnt(0)')
        a('v_cmp_eq_u32 vcc, %d, v%d' % (1, v))
        a('s_cbranch_vccnz ' + Lok)
        if gate: a('s_sleep 12')
        a('s_sub_u32 s95, s95, 1'); a('s_cbranch_scc0 ' + L)
        a('s_endpgm')
        a(Lok + ':')
    def flag_lane(off_code):
        a(off_code)
        a('v_min_u32 v1, 1, v0'); a('v_lshlrev_b32 v1, 28, v1'); a('v_add_u32 %s, s7, v1' % V(P.vFlagOff))
    def ps_pre(a): flags_ready(a); stamp(a, 1)
    def ps_gate(a): flags_ready(a, gate=opt.get('usegate', 1)); stamp(a, 1)
    xf, wf = opt.get('xf', ''), opt.get('wf', '')
    a('s_cmp_ge_u32 s2, 256'); far('scc1', 'Lend')
    srd(a, 20, 'ws'); srd(a, 28, 'dbg')
    a('v_lshrrev_b32 v1, 6, v0')
    a('s_lshr_b32 s6, s2, 3')
    a('v_readfirstlane_b32 s4, v1')
    a('s_getreg_b32 s73, hwreg(HW_REG_XCC_ID, 0, 3)')
    a('s_sub_u32 s88, s73, s2'); a('s_and_b32 s88, s88, 7'); a('s_add_u32 s88, s88, 1')
    if opt.get('norot'): a('s_mov_b32 s88, 1')
    a('s_mov_b32 s95, 0x%x' % SPIN)
    a('s_waitcnt lgkmcnt(0)')
    a('s_cmp_eq_u32 s2, 0'); a('s_cbranch_scc0 Lrole')
    a('v_min_u32 v1, 1, v0'); a('v_lshlrev_b32 v1, 28, v1'); a('v_mov_b32 v2, s88')
    a('buffer_store_dword v2, v1, s[28:31], 0 offen offset:4 sc1')
    a('Lrole:')
    a('s_add_u32 s5, s2, s88'); a('s_sub_u32 s5, s5, 1'); a('s_and_b32 s5, s5, 7')
    a('s_lshl_b32 s5, s5, 2'); a('s_lshr_b32 s5, 0x%x, s5' % ROLE); a('s_and_b32 s5, s5, 7')
    stamp(a, 0)
    if opt.get('tlb', 0):
        a('s_cmp_eq_u32 s4, 3'); a('s_cbranch_scc0 Ltlb')
        a('v_and_b32 v1, 63, v0'); a('v_lshlrev_b32 v1, 21, v1'); a('s_lshl_b32 s7, s6, 14')
        a('buffer_load_dword v254, v1, s[20:23], s7 offen sc1')
        a('Ltlb:')
    if opt.get('cpf', 1):
        a('s_getpc_b64 s[8:9]'); a('Lpc:')
        a('s_lshl_b32 s7, s6, 13'); a('s_cmp_le_u32 s7, Lend - Lpc'); a('s_cselect_b32 s3, s4, 1')
        a('s_cmp_eq_u32 s3, 0'); a('s_cbranch_scc0 Lcpf')
        a('v_lshl_add_u32 v1, v0, 7, s7'); a('v_min_u32 v1, Lend - Lpc, v1')
        a('global_load_dword v255, v1, s[8:9]')
        a('Lcpf:')
    a('s_cmp_eq_u32 s5, 0'); far('scc1', 'Lchain')
    a('s_cmp_eq_u32 s5, 1'); far('scc1', 'Lpb')
    a('s_cmp_lt_u32 s5, 4'); far('scc1', 'Lqa')
    srd(a, 8, 'A_ckv'); srd(a, 12, 'A_wuk'); srd(a, 16, 'A_wuv')
    a('s_sub_u32 s3, s5, 4'); a('s_lshl_b32 s3, s3, 3'); a('s_lshr_b32 s7, s6, 2'); a('s_add_u32 s3, s3, s7')
    a('s_lshl_b32 s32, s3, 8'); a('s_mov_b32 s33, s32')
    a('s_lshl_b32 s34, s3, 14'); a('s_add_u32 s34, s34, 0x%x' % WS_KVA); a('s_add_u32 s35, s34, 8192')
    a('s_mov_b32 s36, 16'); a('s_and_b32 s37, s6, 3')
    flag_lane(['s_lshl_b32 s7, s3, 5', 's_add_u32 s7, s7, s37', 's_lshl_b32 s7, s7, 2', 's_add_u32 s7, s7, 0x%x' % FLAG(FL_PA)])
    a('s_waitcnt lgkmcnt(0)')
    P.pstream(a, 512, 'kv', 16384 * 32, P.default_next(4), xflags=xf, wflags=wf, pre_loop=ps_gate, xpf=opt.get('xpf', 1), flag='end')
    stamp(a, 2)
    probe('zA')
    a('s_mov_b32 s32, s3'); a('s_and_b32 s33, s6, 3'); a('s_sub_u32 s34, 7, s33')
    def att_wait(first):
        def f(a):
            L = a.lab('aw'); Lok = a.lab('awk')
            if first:
                a('s_lshl_b32 s7, s3, 7'); a('s_add_u32 s7, s7, 0x%x' % FLAG(FL_PA))
                a('s_lshr_b32 s94, s3, 1'); a('s_lshl_b32 s94, s94, 7'); a('s_add_u32 s94, s94, 0x%x' % FLAG(FL_QA))
            a('v_min_u32 v10, 16, v1'); a('v_lshlrev_b32 v10, 24, v10')
            a(L + ':')
            a('buffer_load_dwordx4 v[240:243], v10, s[20:23], s94 offen sc1')
            if first: a('buffer_load_dwordx4 v[244:247], v10, s[20:23], s7 offen sc1')
            a('s_waitcnt vmcnt(0)')
            a('v_min3_u32 v240, v240, v241, v242'); a('v_min_u32 v240, v240, v243')
            if first: a('v_lshlrev_b32 v240, 1, v240'); a('v_min3_u32 v240, v240, v244, v245'); a('v_min3_u32 v240, v240, v246, v247')
            a('v_cmp_le_u32 vcc, 16, v240')
            a('s_cbranch_vccnz ' + Lok)
            a('s_sleep 2')
            a('s_sub_u32 s95, s95, 1'); a('s_cbranch_scc0 ' + L)
            a('s_endpgm')
            a(Lok + ':')
        return f
    T.att(a, att_wait(1), att_wait(0), opt, (lambda a, i: stamp(a, i, 8)))
    stamp(a, 5)
    a('s_cmp_ge_u32 s6, 27'); far('scc1', 'Lfin')
    srd(a, 8, 'A_wo')
    a('s_mul_i32 s7, s6, 29'); a('s_lshr_b32 s7, s7, 8'); a('s_mul_i32 s94, s7, 9')
    a('s_sub_u32 %s, s6, s94' % S(O.sCs))
    a('s_mul_i32 %s, s7, 3' % S(O.sRot0))
    a('s_lshl_b32 s7, s7, 2'); a('s_add_u32 s7, s7, s5'); a('s_sub_u32 %s, s7, 4' % S(O.sT0))
    a('s_mov_b32 %s, 12' % S(O.sDT)); a('s_cmp_lt_u32 %s, 4' % S(O.sT0)); a('s_cselect_b32 %s, 6, 5' % S(O.sN))
    a('s_mov_b32 %s, 0x%x' % (S(O.sCtx), WS_CTXA)); a('s_mov_b32 %s, 0' % S(O.sOcol))
    a('s_lshl_b32 %s, s4, 5' % S(O.sFb)); a('s_add_u32 %s, %s, 0x%x' % (S(O.sFb), S(O.sFb), FLAG(FL_AT)))
    a('s_mov_b32 %s, 0' % S(O.sDX))
    a('s_mov_b32 s93, 0x38'); a('s_mov_b32 s92, 7'); a('s_mov_b32 s91, 4'); a('s_mov_b32 s90, 31')
    a('s_branch Los')
    a('Lpb:')
    srd(a, 8, 'B_x'); srd(a, 12, 'B_wk'); srd(a, 16, 'B_wv')
    a('s_lshl_b32 s32, s6, 8'); a('s_mov_b32 s33, s32')
    a('s_lshl_b32 s34, s6, 14'); a('s_add_u32 s34, s34, 0x%x' % WS_KVB); a('s_add_u32 s35, s34, 8192')
    a('s_mov_b32 s36, 64'); a('s_mov_b32 s37, 0')
    flag_lane(['s_lshl_b32 s7, s6, 7', 's_add_u32 s7, s7, 0x%x' % FLAG(FL_PB)])
    a('s_waitcnt lgkmcnt(0)')
    P.pstream(a, 576, 'kv', 16384 * 32, P.default_next(1), xflags=xf, wflags=wf, pre_loop=ps_pre, xpf=opt.get('xpf', 1), soon=opt.get('soon', 1), kscale=1)
    a('s_branch Lfin')
    a('Lqa:')
    srd(a, 8, 'A_x'); srd(a, 12, 'A_wq'); srd(a, 16, 'A_wq')
    a('s_lshl_b32 s7, s5, 5'); a('s_add_u32 s7, s7, s6'); a('s_cmp_eq_u32 s7, %d' % (3 * 32 + 31)); a('s_cbranch_scc0 Lqa1')
    rho_check(a, 4)
    for i in range(4): a('v_mov_b32 v%d, 0' % (4 + i))
    a('v_lshlrev_b32 v1, 4, v0')
    for i in range(5):
        a('s_mov_b32 s7, %d' % (WS_FLAGS + 4096 * i))
        a('buffer_store_dwordx4 v[4:7], v1, s[20:23], s7 offen sc1')
    a('v_min_u32 v1, 1, v0'); a('v_lshlrev_b32 v1, 28, v1'); a('v_mov_b32 v2, 1')
    a('s_waitcnt vmcnt(0)'); a('s_barrier')
    a('buffer_store_dword v2, v1, s[28:31], 0 offen sc1')
    a('Lqa1:')
    a('s_sub_u32 s3, s5, 2'); a('s_lshl_b32 s3, s3, 3'); a('s_lshr_b32 s7, s6, 2'); a('s_add_u32 s3, s3, s7')
    a('s_lshl_b32 s32, s3, 9'); a('s_add_u32 s33, s32, 256')
    a('s_lshl_b32 s34, s3, 14'); a('s_add_u32 s34, s34, 0x%x' % WS_QA); a('s_add_u32 s35, s34, 8192')
    a('s_mov_b32 s36, 16'); a('s_and_b32 s37, s6, 3')
    flag_lane(['s_lshl_b32 s7, s3, 5', 's_add_u32 s7, s7, s37', 's_lshl_b32 s7, s7, 2', 's_add_u32 s7, s7, 0x%x' % FLAG(FL_QA)])
    a('s_waitcnt lgkmcnt(0)')
    P.pstream(a, 576, 'qq', 8192 * 32, P.default_next(4), xflags=xf, wflags=wf, pre_loop=lambda a: (flags_ready(a, gate=opt.get('gq', 0)), stamp(a, 1)), xpf=opt.get('xpf', 1))
    stamp(a, 2)
    a('s_sub_u32 s3, s5, 2')
    a('s_add_u32 s7, s6, s3'); a('s_cmp_ge_u32 s7, 30'); far('scc1', 'Lfin')
    probe('zQ')
    a('s_cmp_ge_u32 s6, 16'); far('scc1', 'Lob')
    srd(a, 8, 'B_x'); srd(a, 12, 'B_wq'); srd(a, 16, 'B_wq')
    a('s_lshl_b32 s32, s6, 9'); a('s_add_u32 s33, s32, 256')
    a('s_mov_b32 s36, 32'); a('s_mov_b32 s37, s3')
    a('s_lshl_b32 %s, s6, 1' % S(Q.sHm))
    a('s_lshl_b32 s7, s3, 4'); a('s_add_u32 s7, s7, s6'); a('s_and_b32 s94, s7, 3'); a('s_lshr_b32 s7, s7, 2'); a('s_lshl_b32 s7, s7, 5')
    a('s_add_u32 s7, s7, s94'); a('s_lshl_b32 s7, s7, 2'); a('s_add_u32 %s, s7, 0x%x' % (S(Q.sFq), FLAG(FL_QB)))
    a('s_waitcnt lgkmcnt(0)')
    Q.qb(a, P.default_next(2), xflags=xf, wflags=opt.get('wf2', ''), stamp=stamp)
    a('s_branch Lfin')
    a('Lob:')
    srd(a, 8, 'B_wo')
    a('s_sub_u32 %s, s6, 16' % S(O.sCs))
    a('s_mul_i32 s7, s3, 5'); a('s_add_u32 s7, s7, s6'); a('s_sub_u32 s7, s7, 25')
    a('s_cmp_lt_u32 s6, 25')
    a('s_cselect_b32 %s, %s, s7' % (S(O.sCs), S(O.sCs)))
    a('s_cselect_b32 %s, s3, 4' % S(O.sT0)); a('s_cselect_b32 %s, 2, 1' % S(O.sDT)); a('s_cselect_b32 %s, 6, 4' % S(O.sDX))
    a('s_cselect_b32 %s, 22, 20' % S(O.sN)); a('s_cselect_b32 %s, 0, 4' % S(O.sRot0))
    a('s_mov_b32 %s, 0x%x' % (S(O.sCtx), WS_CTXB)); a('s_mov_b32 %s, 1152' % S(O.sOcol))
    a('s_lshl_b32 s7, s4, 7'); a('s_add_u32 %s, s7, 0x%x' % (S(O.sFb), FLAG(FL_QB)))
    a('s_mov_b32 s93, 1'); a('s_mov_b32 s92, 3'); a('s_mov_b32 s91, 9'); a('s_mov_b32 s90, 1')
    a('Los:')
    srd(a, 24, 'out')
    a('s_waitcnt lgkmcnt(0)')
    O.ostream(a, lambda d, t: ['s_and_b32 %s, %s, s93' % (S(d), S(t)), 's_lshl_b32 %s, %s, s91' % (S(d), S(d)), 's_add_u32 %s, %s, %s' % (S(d), S(d), S(O.sFb)),
                               's_lshr_b32 %s, %s, s90' % (S(O.sNeed), S(t)), 's_add_u32 %s, %s, 1' % (S(O.sNeed), S(O.sNeed))],
              's92', wflags=opt.get('wf2', ''), stamp=stamp, slp=opt.get('slp', 4), oflags=opt.get('of', ''), D=opt.get('od', 6))
    a('s_branch Lfin')
    a('Lchain:')
    C.chain(a, opt, (rho_load, rho_check), wflags=wf, stamp_once=(lambda a, i: stamp(a, i, 20, 'c')) if diag else None, force_slow=opt.get('slow'))
    if diag == 2: stamp(a, 7, 20, 'c')
    a('Lfin:')
    stamp(a, 7)
    a('Lend:')
    a('s_endpgm')
    a('Lredo:')
    a('s_mov_b32 s88, s89')
    a('s_waitcnt vmcnt(0) lgkmcnt(0)')
    a('s_barrier')
    a('s_branch Lrole')
    head = open(os.path.join(os.path.dirname(os.path.abspath(__file__)), 'header.txt')).read()
    t = head + '; @launch grid=(256,1,1) block=(256,1,1) lds=163840\n' + HEAD + kernel_open(name) + a.text() + RODATA + kernel_desc(name)
    assert hazard.check(t) == 0
    return t
if __name__ == '__main__':
    opt = {}
    for x in (sys.argv[1] if len(sys.argv) > 1 else '').split(','):
        if x:
            k, v = x.split('='); opt[k] = int(v) if v.lstrip('-').isdigit() else v
    print(gen(opt, KNAME + '_kernel'), end='')
```

```python
from common import *

L_MEM, L_KX, L_Q, L_KM, L_O, L_F = 0, 9216, 17408, 19456, 19968, 24576
M2SZ = P1_BUF
vT16, vDum, vVa, vL16, vVb, vIdx, vPm, vZero, vXw, vXr, vQw, vQr = range(12)
VX, W0, W1, W2, W3 = 12, 20, 36, 52, 64
WREG = 72
sH = 6
sStep, sKV, sKVM, sP1r, sP1h, sM2a, sM2b, sM2c, sM2w, sM2x = 36, 37, 38, 39, 40, 41, 42, 43, 44, 45
sTmp, sSpin, sC, sFPB, sFCH, sTm2, sVXo = 47, 54, 55, 56, 57, 58, 59
sHf = 48
sTag, sOdd1 = 46, 50
sP1w = 60
sM2wh, sM2xh, sKXo, sPF, sXq = 65, 66, 67, 68, 69
sLo = 70
sSel, sOdd, sOne = 24, 32, 34
TOGGLE = (sM2w, sM2x, sM2wh, sM2xh, sM2a, sM2c)
WS = 's[20:23]'

WO_ORDER = [8, 0, 1, 2, 3, 4, 5, 6, 7]
frags = [(m, t, tau) for t in range(9) for m in 'qkv' for tau in range(2)] + [('o', tp, tl) for tl in range(9) for tp in range(2)]
KORD = [8, 0, 1, 2, 3, 4, 5, 6, 7]
lds_frags = [('k', t, 1) for t in KORD] + [('o', 1, tl) for tl in WO_ORDER[:8]]
reg_frags = [f for f in frags if f not in lds_frags]
assert len(reg_frags) == 55
regpos = {f: (WREG + 8 * i) for i, f in enumerate(reg_frags)}
def fbase(f):
    off = L_F + 8192 * f
    return (off // 65536) * 65536, off % 65536
def smf(d, a_, b): return 'v_smfmac_f32_16x16x64_bf16 %s, %s, %s, %s' % (V(d, 4), V(a_, 4), U(b, 8), V(vIdx))

def spin_fail(a, lab):
    a('s_sub_u32 %s, %s, 1' % (S(sSpin), S(sSpin)))
    a('s_cbranch_scc0 ' + lab)
    a('s_endpgm')

def setup(a):
    a('v_and_b32 v20, 63, v0')
    a('v_lshlrev_b32 %s, 4, v20' % V(vL16))
    a('v_mov_b32 %s, 0' % V(vZero))
    a('s_mov_b32 %s, 0xcccccccc' % S(sHf)); a('s_mov_b32 %s, 0xcccccccc' % S(sHf + 1))
    a('v_mov_b32 v21, 0x44444444'); a('v_mov_b32 v22, 0xeeeeeeee')
    a('v_cndmask_b32 %s, v21, v22, %s' % (V(vIdx), S(sHf, 2)))
    a('s_lshl_b32 %s, s4, 10' % S(sTmp)); a('s_add_u32 %s, %s, %d' % (S(sTmp), S(sTmp), L_KM))
    a('v_and_b32 v21, 48, v20'); a('v_lshl_add_u32 v21, v21, 3, %s' % S(sTmp))
    a('v_and_b32 v22, 8, v20'); a('v_lshl_add_u32 v21, v22, 2, v21')
    a('v_and_b32 v22, 1, v20'); a('v_lshl_add_u32 v21, v22, 4, v21')
    a('v_and_b32 v22, 6, v20'); a('v_lshl_add_u32 %s, v22, 1, v21' % V(vXw))
    a('v_and_b32 v21, 32, v20'); a('v_lshlrev_b32 v21, 5, v21')
    a('v_and_b32 v22, 12, v20'); a('v_lshl_add_u32 v21, v22, 5, v21')
    a('v_and_b32 v22, 1, v20'); a('v_lshl_add_u32 v21, v22, 6, v21')
    a('v_and_b32 v22, 16, v20'); a('v_lshl_add_u32 v21, v22, 1, v21')
    a('v_and_b32 v22, 2, v20'); a('v_lshl_add_u32 %s, v22, 3, v21' % V(vXr))
    a('v_lshrrev_b32 v21, 4, v0'); a('v_lshlrev_b32 v21, 7, v21')
    a('v_and_b32 v22, 15, v20'); a('v_lshl_add_u32 v21, v22, 2, v21')
    a('v_add_u32 %s, %d, v21' % (V(vQw), L_Q))
    a('v_and_b32 v22, 1, v20')
    a('v_and_b32 v21, 12, v20'); a('v_lshlrev_b32 v21, 5, v21')
    a('v_lshl_add_u32 v21, v22, 6, v21')
    a('v_and_b32 v22, 48, v20'); a('v_add_u32 %s, v21, v22' % V(vQr))
    a('s_mov_b32 %s, 0x%x' % (S(sC), QSCALE))
    a('s_mov_b32 %s, 0x%x' % (S(sSpin), SPIN))
    a('s_lshl_b32 %s, %s, 6' % (S(sTmp), S(sH)))
    for r in range(3): a('s_add_u32 %s, %s, 0x%x' % (S(sP1w + r), S(sTmp), WS_P1 + 4096 * r))
    a('s_lshl_b32 %s, %s, 7' % (S(sTmp), S(sH)))
    a('s_add_u32 %s, %s, 0x%x' % (S(sFPB), S(sTmp), FLAG(FL_PB)))
    a('s_add_u32 %s, %s, 0x%x' % (S(sFCH), S(sTmp), FLAG(FL_CH)))
    a('s_mul_i32 %s, %s, %d' % (S(sTmp), S(sH), P1_STRIDE))
    a('s_add_u32 %s, %s, 0x%x' % (S(sP1h), S(sTmp), WS_P1 + 4 * 2048))
    a('s_lshl_b32 %s, s4, 11' % S(sTm2))
    a('s_add_u32 %s, %s, %s' % (S(sTmp), S(sTmp), S(sTm2)))
    a('s_add_u32 %s, %s, 0x%x' % (S(sP1r), S(sTmp), WS_P1))
    a('s_lshl_b32 %s, s4, 11' % S(sM2b))
    a('s_add_u32 %s, %s, 0x%x' % (S(sM2a), S(sM2b), WS_M2 + M2SZ))
    a('s_mov_b32 %s, 0x%x' % (S(sM2c), WS_M2 + M2SZ + 8192))
    a('s_lshr_b32 %s, s4, 1' % S(sXq)); a('s_lshl_b32 %s, %s, 11' % (S(sXq), S(sXq)))
    a('s_and_b32 %s, s4, 1' % S(sTmp)); a('s_lshl_b32 %s, %s, 3' % (S(sTmp), S(sTmp)))
    a('s_add_u32 %s, %s, %s' % (S(sXq), S(sXq), S(sTmp)))
    a('s_lshl_b32 %s, %s, 5' % (S(sTmp), S(sH)))
    a('s_add_u32 %s, %s, 0x%x' % (S(sM2wh), S(sTmp), WS_M2 + M2SZ + 8192))
    a('s_add_u32 %s, %s, 0x%x' % (S(sM2xh), S(sTmp), WS_M2 + 8192))
    a('s_lshr_b32 %s, %s, 3' % (S(sTmp), S(sH))); a('s_lshl_b32 %s, %s, 9' % (S(sTmp), S(sTmp)))
    a('s_and_b32 %s, %s, 1' % (S(sTm2), S(sH))); a('s_lshl_b32 %s, %s, 8' % (S(sTm2), S(sTm2)))
    a('s_add_u32 %s, %s, %s' % (S(sTmp), S(sTmp), S(sTm2)))
    a('s_and_b32 %s, %s, 6' % (S(sTm2), S(sH))); a('s_lshl_b32 %s, %s, 5' % (S(sTm2), S(sTm2)))
    a('s_add_u32 %s, %s, %s' % (S(sTmp), S(sTmp), S(sTm2)))
    a('s_lshl_b32 %s, s4, 11' % S(sTm2))
    a('s_add_u32 %s, %s, %s' % (S(sTmp), S(sTmp), S(sTm2)))
    a('s_add_u32 %s, %s, 0x%x' % (S(sM2w), S(sTmp), WS_M2 + M2SZ))
    a('s_add_u32 %s, %s, 0x%x' % (S(sM2x), S(sTmp), WS_M2))
    a('s_lshl_b32 %s, %s, 14' % (S(sTmp), S(sH)))
    a('s_add_u32 %s, %s, 0x%x' % (S(sKV), S(sTmp), WS_KVB))
    a('s_add_u32 %s, %s, %s' % (S(sKXo), S(sKV), S(sTm2)))
    a('s_add_u32 %s, %s, 8192' % (S(sVXo), S(sKXo)))
    a('s_lshl_b32 %s, %s, 12' % (S(sTmp), S(sH)))
    a('s_add_u32 %s, %s, 0x%x' % (S(sKVM), S(sTmp), WS_KVM - (0x10000 if NOW[0] else 0x20000)))
    a('s_mov_b32 %s, 0' % S(sStep))
    a('s_mov_b32 %s, 0' % S(sTag)); a('s_mov_b32 %s, 0' % S(sOdd1))

def h_addr(d, t):
    x = V(vL16)
    return ['v_bfe_u32 %s, %s, 8, 1' % (V(d), x), 'v_bfe_u32 %s, %s, 9, 1' % (V(t), x),
            'v_lshl_or_b32 %s, %s, 1, %s' % (V(d), V(d), V(t)), 'v_bfe_u32 %s, %s, 5, 1' % (V(t), x),
            'v_lshl_or_b32 %s, %s, 1, %s' % (V(d), V(d), V(t)), 'v_and_b32 %s, 0xd0, %s' % (V(t), x),
            'v_lshlrev_b32 %s, 24, %s' % (V(t), V(t)), 'v_lshl_or_b32 %s, %s, 2, %s' % (V(d), V(d), V(t))]
def m2_addr(d, t):
    x = V(vL16)
    return ['v_bfe_u32 %s, %s, 8, 2' % (V(d), x), 'v_bfe_u32 %s, %s, 2, 4' % (V(t), x),
            'v_lshl_or_b32 %s, %s, 4, %s' % (V(d), V(d), V(t)), 'v_and_b32 %s, 0xc0, %s' % (V(t), x),
            'v_lshl_or_b32 %s, %s, 24, %s' % (V(d), V(t), V(d))]
def p1w_addr(d, t):
    return ['v_bfe_u32 %s, %s, 7, 5' % (V(d), V(vT16)), 'v_mul_u32_u24 %s, %d, %s' % (V(d), P1_STRIDE, V(d)),
            'v_bfe_u32 %s, %s, 4, 3' % (V(t), V(vL16)), 'v_lshl_add_u32 %s, %s, 3, %s' % (V(d), V(t), V(d))]

def init_handoff(a, q):
    for i in range(4): a('v_mov_b32 %s, 0' % V(W0 + i))
    a('v_mov_b32 %s, -1' % V(W0 + 7))
    a(h_addr(W0 + 4, W0 + 5)); a(m2_addr(W0 + 6, W0 + 5))
    for s_ in (sP1r, sP1h):
        for m in range(2):
            q('buffer_store_dwordx4 %s, %s, %s, %s offen offset:%d sc1' % (V(W0, 4), V(vL16), WS, S(s_), 1024 * m), 'init')
    for s_ in (sM2w, sM2x):
        q('buffer_store_dword %s, %s, %s, %s offen sc1' % (V(W0 + 7), V(W0 + 6), WS, S(s_)), 'init')
    for s_ in (sM2wh, sM2xh):
        q('buffer_store_dword %s, %s, %s, %s offen sc1' % (V(W0 + 7), V(W0 + 4), WS, S(s_)), 'init')

def load_weights(a, wflags, arrive, lead, mid):
    vA, vB, vR, vWb, T, vC = 12, 14, 16, 60, 40, 56
    a('v_and_b32 v30, 63, v0')
    a('v_bfe_u32 v31, v30, 1, 2'); a('v_lshrrev_b32 v32, 5, v30'); a('v_xor_b32 v31, v31, v32')
    a('v_lshlrev_b32 v31, 5, v31'); a('v_and_b32 v32, 1, v30'); a('v_lshl_add_u32 v31, v32, 4, v31')
    a('v_xor_b32 v33, 64, v31')
    a('v_lshrrev_b32 v32, 3, v30')
    a('s_lshl_b32 %s, s4, 4' % S(sTmp))
    a('v_and_b32 v34, 3, v32'); a('v_lshrrev_b32 v35, 2, v32'); a('v_lshl_add_u32 v34, v34, 1, v35')
    a('v_add_u32 v34, %s, v34' % S(sTmp))
    a('v_lshl_add_u32 %s, v34, 13, v31' % V(vA))
    a('v_add_u32 v34, 8, v34')
    a('v_lshl_add_u32 %s, v34, 13, v33' % V(vA + 1))
    a('v_and_b32 v34, 1, v32'); a('v_lshlrev_b32 v34, 6, v34'); a('v_and_b32 v35, 6, v32')
    a('s_lshl_b32 %s, s4, 3' % S(sTmp))
    a('v_add3_u32 v34, v34, v35, %s' % S(sTmp))
    a('v_lshl_add_u32 %s, v34, 13, v31' % V(vC))
    a('v_mul_u32_u24 v35, 1152, v34'); a('v_add_u32 %s, v35, v31' % V(vB))
    a('v_add_u32 v34, 1, v34')
    a('v_lshl_add_u32 %s, v34, 13, v33' % V(vC + 1))
    a('v_mul_u32_u24 v35, 1152, v34'); a('v_add_u32 %s, v35, v33' % V(vB + 1))
    a('v_bfe_u32 v31, v30, 4, 1'); a('v_bfe_u32 v32, v30, 3, 1')
    a('v_lshl_add_u32 v33, v32, 1, v31'); a('v_xor_b32 v33, s4, v33'); a('v_lshlrev_b32 v33, 5, v33')
    a('v_lshl_add_u32 v33, v31, 9, v33'); a('v_lshl_add_u32 v33, v32, 10, v33')
    a('v_bfe_u32 v31, v30, 2, 1'); a('v_lshl_add_u32 v33, v31, 7, v33')
    a('v_lshrrev_b32 v31, 5, v30'); a('v_lshl_add_u32 v33, v31, 11, v33')
    a('v_and_b32 v31, 3, v30'); a('v_lshl_add_u32 %s, v31, 3, v33' % V(vR))
    a('v_add_u32 %s, 0x10000, %s' % (V(vR + 1), V(vR))); a('v_add_u32 %s, 0x20000, %s' % (V(vR + 2), V(vR)))
    a('v_lshlrev_b32 %s, 4, v0' % V(vWb))
    a('v_add_u32 %s, 0x10000, %s' % (V(vWb + 1), V(vWb))); a('v_add_u32 %s, 0x20000, %s' % (V(vWb + 2), V(vWb)))
    sA, sB, sM = 70, 71, 72
    a('s_lshl_b32 %s, %s, 8' % (S(sA), S(sH)))
    a('s_mul_i32 %s, %s, 147456' % (S(sB), S(sH)))
    a('s_lshl_b32 %s, s4, 11' % S(sM))
    vTx, vTn, vTo, vTd, sGA, sGB = 19, 58, 59, 63, 76, 80
    a('s_lshl_b32 %s, s4, 4' % S(sTmp)); a('v_add_u32 v31, %s, v30' % S(sTmp))
    a('s_lshr_b32 %s, s4, 1' % S(sTmp)); a('s_lshl_b32 %s, %s, 5' % (S(sTmp), S(sTmp))); a('v_add_u32 v32, %s, v31' % S(sTmp))
    a('v_lshrrev_b32 v33, 4, v30'); a('v_lshlrev_b32 v33, 28, v33')
    a('v_lshl_or_b32 %s, v31, 13, v33' % V(vTn)); a('v_lshl_or_b32 %s, v32, 13, v33' % V(vTx))
    a('v_mul_u32_u24 v32, 1152, v32'); a('v_or_b32 %s, v32, v33' % V(vTo))
    def touch(n):
        m, t, tau = seq[n]
        if m == 'o':
            a('s_add_u32 %s, %s, %d' % (S(sTmp), S(sGB), 32 * t * 1152 + 128 * tau))
            a('buffer_load_dword %s, %s, s[24:27], %s offen' % (V(vTd), V(vTo), S(sTmp)))
        else:
            row = 512 if t == 8 else 128 * (t // 2) + 32 * (t % 2)
            a('s_add_u32 %s, %s, %d' % (S(sTmp), S(sGA), row * 8192 + 128 * tau))
            a('buffer_load_dword %s, %s, %s, %s offen' % (V(vTd), V(vTn if t == 8 else vTx), S(8 + 4 * 'qkv'.index(m), 4), S(sTmp)))
    def help_others(first):
        for d in range(1, 4):
            L = a.lab('hlp')
            a('s_add_u32 %s, %s, %d' % (S(sTm2), S(sH), d)); a('s_and_b32 %s, %s, 31' % (S(sTm2), S(sTm2)))
            a('s_bitcmp1_b32 s77, %s' % S(sTm2)); a('s_cbranch_scc1 ' + L)
            a('s_lshl_b32 %s, %s, 8' % (S(sGA), S(sTm2))); a('s_mul_i32 %s, %s, 147456' % (S(sGB), S(sTm2)))
            for n in range(first + d - 1, 72, 3): touch(n)
            a(L + ':')
    seq = list(reg_frags)
    n0 = len(seq)
    seq += [lds_frags[n % 17] for n in range(n0, n0 + 17)]
    D = lead[0]
    a('s_waitcnt lgkmcnt(0)')
    q = Seq(a)
    def dma(n):
        m, t, tau = seq[n]
        for zz in range(2):
            a('s_add_u32 m0, %s, %d' % (S(sM), L_F + 8192 * (n % 17) + 1024 * zz))
            if m == 'o':
                if zz == 0: a('s_add_u32 %s, %s, %d' % (S(sTmp), S(sB), 32 * t * 1152 + 128 * tau))
                else: a('s_nop 0')
                q('buffer_load_dwordx4 %s, s[24:27], %s offen %s lds' % (V(vB + zz), S(sTmp), wflags), n)
            else:
                row = 512 if t == 8 else 128 * (t // 2) + 32 * (t % 2)
                if zz == 0: a('s_add_u32 %s, %s, %d' % (S(sTmp), S(sA), row * 8192 + 128 * tau))
                else: a('s_nop 0')
                q('buffer_load_dwordx4 %s, %s, %s offen %s lds' % (V((vA if t == 8 else vC) + zz), S(8 + 4 * 'qkv'.index(m), 4), S(sTmp), wflags), n)
    def finish(n):
        f = seq[n]; t = T + 8 * (n % 2)
        if f in lds_frags:
            b, o = fbase(n % 17)
            for hf in range(2):
                a('ds_write_b128 %s, %s offset:%d' % (V(vWb + b // 65536), V(t + 4 * hf, 4), o + 4096 * hf))
    for n in range(D): dma(n)
    setup(a)
    for n in range(72):
        q.wait(n)
        a('s_waitcnt lgkmcnt(0)')
        a('s_barrier')
        if n + D < 72: dma(n + D)
        mid(n, q)
        if n == lead[2] and lead[1]: help_others(lead[1])
        if n: finish(n - 1)
        f = seq[n]
        dst = regpos.get(f, T + 8 * (n % 2))
        b, o = fbase(n % 17)
        for y in range(4):
            a('ds_read_b64_tr_b16 %s, %s offset:%d' % (U(dst + 2 * y, 2), V(vR + b // 65536), o + 4096 * (y // 2) + 256 * (y % 2)))
    a('s_waitcnt lgkmcnt(0)')
    a('s_barrier')
    finish(71)

def arrive(a, q):
    L = a.lab('arr')
    a('s_getreg_b32 s73, hwreg(HW_REG_XCC_ID, 0, 3)')
    a('s_lshl_b32 s73, s73, 3')
    a('s_lshl_b64 s[74:75], 1, s73')
    a('v_mov_b32 v64, s74'); a('v_mov_b32 v65, s75')
    a('v_mov_b32 v66, 0x7ff00000'); a('v_cmp_eq_u32 vcc, 0, v0'); a('s_nop 1')
    a('v_cndmask_b32 v66, v66, %s, vcc' % V(vZero))
    q('buffer_atomic_add_x2 v[64:65], v66, s[28:31], 0 offen offset:8', 'arr')

def wait_flag(a, soff, need, lab):
    L = a.lab(lab); Lok = a.lab(lab + 'ok')
    a(L + ':')
    a('buffer_load_dword %s, %s, %s, %s offen sc1' % (V(vDum), V(vZero), WS, soff))
    a('s_waitcnt vmcnt(0)')
    a('v_cmp_le_u32 vcc, %s, %s' % (need, V(vDum)))
    a('s_cbranch_vccnz ' + Lok)
    spin_fail(a, L)
    a(Lok + ':')

def frag_read(q, f, dst, name):
    b, o = fbase(f)
    assert b == q.base, (f, b, q.base)
    return ['ds_read_b128 %s, %s offset:%d' % (V(dst + 4 * hf, 4), V(vT16), o + 4096 * hf) for hf in range(2)]

def early(a, opt, rho):
    M = 20
    def dbg_load(q, name): q('buffer_load_dwordx4 v[68:71], v65, s[28:31], 0 offen sc1', name)
    def mid(n, q):
        if n == 0 and rho: q(rho[0](68), 'rho')
        if n == 9:
            if rho: q.wait('rho'); rho[1](a, 68, True)
            init_handoff(a, q)
        if n == 19: q.wait('init')
        if n == 20: arrive(a, q)
        if n == opt.get('nm', 11):
            a('v_lshrrev_b32 v68, 4, %s' % V(vL16))
            a('v_bfe_u32 v69, v68, 2, 2'); a('v_and_b32 v70, 1, v68'); a('v_lshl_add_u32 v69, v69, 1, v70')
            a('v_mul_u32_u24 v69, 1152, v69')
            a('v_and_b32 v70, 48, v68'); a('v_and_b32 v71, 2, v68'); a('v_lshl_add_u32 v71, v71, 2, v70')
            a('v_lshl_add_u32 v71, v71, 1, v69'); a('v_add_u32 v69, v70, v69')
            a('s_lshr_b32 %s, s4, 1' % S(sTmp)); a('s_lshl_b32 %s, %s, 8' % (S(sTmp), S(sTmp)))
            a('s_and_b32 %s, s4, 1' % S(sTm2)); a('s_lshl_b32 %s, %s, 6' % (S(sTm2), S(sTm2)))
            a('s_add_u32 %s, %s, %s' % (S(sTmp), S(sTmp), S(sTm2)))
            for m in range(2):
                for tl in range(2):
                    q('buffer_load_dwordx4 %s, v69, s[32:35], %s offen offset:%d' % (V(M + 8 * m + 4 * tl, 4), S(sTmp), 512 * m + 128 * tl), 'm0')
            q('buffer_load_dwordx4 %s, v71, s[32:35], 0 offen offset:1024' % V(M + 16, 4), 'm0')
        if n == opt.get('nm', 11) + 10:
            q.wait('m0')
            a('v_mov_b32 v68, 0x05040100'); a('v_mov_b32 v69, 0x07060302')
            a('v_cndmask_b32 v70, v68, v69, %s' % S(sHf, 2))
            for m in range(2):
                for i in range(4):
                    a('v_perm_b32 %s, %s, %s, v70' % (V(M + 8 * m + i), V(M + 8 * m + 4 + i), V(M + 8 * m + i)))
            for i in range(4):
                a('v_perm_b32 %s, %s, %s, v%d' % (V(M + 4 + i), V(M + 16 + 2 * (i % 2) + 1), V(M + 16 + 2 * (i % 2)), 68 + i // 2))
            for i in range(12): a('v_min_u32 %s, -2, %s' % (V(M + i), V(M + i)))
            a('ds_write_b128 v60, %s' % V(M, 4))
            a('ds_write_b128 v60, %s offset:4096' % V(M + 8, 4))
            a('ds_write_b128 %s, %s offset:8192' % (V(vL16), V(M + 4, 4)))
        if n == 34:
            a('v_min_u32 v65, 16, %s' % V(vL16)); a('v_lshlrev_b32 v65, 24, v65')
            dbg_load(q, 'd0')
        if n == 44:
            L = a.lab('hs'); Lc = a.lab('hsc'); Lok = a.lab('hsok')
            q.wait('d0')
            a('s_branch ' + Lc)
            a(L + ':')
            dbg_load(Seq(a), None); a('s_waitcnt vmcnt(0)')
            a(Lc + ':')
            a('v_sad_u8 v69, v70, 0, 0'); a('v_sad_u8 v69, v71, 0, v69'); a('v_lshrrev_b32 v69, 5, v69'); a('v_min_u32 v68, v68, v69')
            a('v_cmp_ne_u32 vcc, 0, v68')
            a('s_cbranch_vccnz ' + Lok)
            spin_fail(a, L)
            a(Lok + ':')
            a('v_readfirstlane_b32 s74, v70'); a('v_readfirstlane_b32 s75, v71')
            for s_ in (sP1r, sP1h):
                for m in range(2):
                    q('buffer_load_dwordx4 %s, %s, %s, %s offen offset:%d sc1' % (V(M, 4), V(vL16), WS, S(s_), 1024 * m), 'x')
            a('v_min_u32 v67, 3, v0'); a('v_add_u32 v68, 1, v67'); a('v_and_b32 v68, 4, v68'); a('v_lshlrev_b32 v68, 26, v68')
            a('v_lshl_or_b32 v68, v67, 7, v68')
            for b in range(2):
                a('s_mul_i32 %s, %s, 384' % (S(sTmp), S(sH))); a('s_add_u32 %s, %s, 0x%x' % (S(sTmp), S(sTmp), WS_M2 + M2SZ * b))
                q('buffer_load_dword %s, v68, %s, %s offen sc1' % (V(M), WS, S(sTmp)), 'x')
            a('v_lshlrev_b32 v67, 6, v0')
        if n == opt.get('mark', 50):
            a('s_lshl_b32 %s, %s, 2' % (S(sTmp), S(sH))); a('s_add_u32 %s, %s, 0x%x' % (S(sTmp), S(sTmp), FLAG(FL_LD)))
            a('v_mov_b32 v64, 1')
            q('buffer_store_dword v64, v66, %s, %s offen' % (WS, S(sTmp)), 'g')
        if n == opt.get('hm', 56):
            a('v_lshrrev_b32 v68, 2, %s' % V(vL16)); a('s_mov_b32 %s, 0x%x' % (S(sTmp), FLAG(FL_LD)))
            q('buffer_load_dword v68, v68, %s, %s offen sc1' % (WS, S(sTmp)), 'd1')
        if n == 66: q('buffer_load_dword %s, v65, %s, %s offen sc1' % (V(vDum), WS, S(sFPB)), 'pb')
        if n == opt.get('hn', 62): q.wait('d1'); a('v_cmp_ne_u32 vcc, 0, v68'); a('s_mov_b32 s77, vcc_lo')
        if n == opt.get('gate', 52):
            L = a.lab('gt')
            a('s_and_b32 %s, %s, 29' % (S(sTmp), S(sH))); a('s_cbranch_scc1 ' + L)
            a('buffer_store_dword v64, v66, s[28:31], 0 offen offset:128 sc1')
            a(L + ':')
    return mid

NSL = [0]
def start(a, st=None):
    a('v_lshlrev_b32 %s, 4, v0' % V(vT16))
    Lok = a.lab('pbk')
    a('s_waitcnt vmcnt(0)')
    a('v_cmp_le_u32 vcc, 2, %s' % V(vDum))
    a('s_cbranch_vccnz ' + Lok)
    wait_flag(a, S(sFPB), '2', 'pb0')
    a(Lok + ':')
    if st: st()
    a('s_lshl_b32 %s, s4, 11' % S(sTmp))
    a('s_add_u32 m0, %s, %d' % (S(sTmp), L_KX))
    a('s_add_u32 %s, %s, 0x80000' % (S(sPF), S(sKV)))
    for tau in range(2):
        a('buffer_load_dwordx4 %s, %s, %s offen offset:%d sc1 lds' % (V(vL16), WS, S(sKXo), 1024 * tau))
    a('buffer_load_dword %s, v67, %s, %s offen sc1' % (V(VX), WS, S(sKV)))
    for i in range(4): a('v_mov_b64 %s, 0' % V(W3 + 2 * i, 2))
    for r in range(4):
        a('s_mov_b32 %s, 0x%x' % (S(sSel + 2 * r), 0x000f000f << (4 * r))); a('s_mov_b32 %s, 0x%x' % (S(sSel + 2 * r + 1), 0x000f000f << (4 * r)))
    a('s_mov_b32 %s, 0xaaaaaaaa' % S(sOdd)); a('s_mov_b32 %s, 0xaaaaaaaa' % S(sOdd + 1))
    a('s_mov_b32 %s, 0x3f803f80' % S(sOne)); a('s_mov_b32 %s, 0x3f803f80' % S(sOne + 1))
    a('s_mov_b32 %s, -1' % S(sLo)); a('s_mov_b32 %s, 0' % S(sLo + 1))
    a('s_lshl_b32 %s, s4, 12' % S(sTmp)); a('s_add_u32 %s, %s, %s' % (S(sPF), S(sPF), S(sTmp)))
    a('v_mov_b32 %s, 0' % V(vVa)); a('v_mov_b32 %s, 0' % V(vVb))
    q = Seq(a); q.base = 0
    a('s_waitcnt lgkmcnt(0)')
    a(frag_read(q, 0, W0, None)); a(frag_read(q, 1, W0 + 8, None))
    for i in range(8): a('v_mov_b64 %s, 0' % V(W1 + 2 * i, 2))
    a(step_addrs())
    a('s_mov_b32 %s, 0x%x' % (S(sLo), (1 << (32 - NSL[0])) - 1))
    for s_ in TOGGLE:
        a('s_xor_b32 %s, %s, 0x%x' % (S(s_), S(s_), P1_BUF))
    a('s_lshr_b64 s[74:75], s[74:75], s73')
    a('s_and_b32 s74, s74, 0xff')
    a('s_cmp_eq_u32 s74, 32')
    a('s_waitcnt vmcnt(1)')

FMASK = [0]; NOW = [1]
def step_addrs():
    return ['v_lshl_add_u32 %s, %s, 3, %s' % (V(vDum), V(vL16), S(sPF)), 'v_cndmask_b32 %s, -16, %s, %s' % (V(vDum), V(vDum), S(sLo, 2)),
            'v_writelane_b32 %s, %s, 63' % (V(vDum), S(sFPB)),
            'v_min_u32 %s, 16, %s' % (V(vPm), V(vT16)), 'v_lshlrev_b32 %s, 24, %s' % (V(vPm), V(vPm))] + (
           ['s_add_u32 %s, %s, 1' % (S(sTmp), S(sStep)), 's_and_b32 %s, %s, %d' % (S(sTmp), S(sTmp), FMASK[0]), 'v_lshl_or_b32 %s, %s, 28, %s' % (V(vPm), S(sTmp), V(vPm))] if FMASK[0] else []) + [
            's_max_u32 %s, %s, 1' % (S(sTmp), S(sStep)), 'v_add_u32 %s, -1, %s' % (V(vVa), S(sTmp))][:0 if NOW[0] else 2] + (
           ['v_mov_b32 %s, %s' % (V(vVa), S(sStep))] if NOW[0] else [])

def kvm_stores(q, a, tmp, addr):
    return [lambda: a('v_add_u32 %s, %s, %s' % (V(addr), S(sXq), V(vXr))),
            lambda: q('ds_read_b64 %s, %s offset:%d' % (V(tmp, 2), V(addr), L_KM), 'kmr'),
            lambda: a('v_mov_b32 %s, %s' % (V(tmp + 2), V(vVa))),
            lambda: a('v_mov_b32 %s, %s' % (V(tmp + 3), V(vVb))),
            lambda: (q.wait('kmr'), q('buffer_store_dwordx4 %s, %s, %s, %s offen sc1' % (V(tmp, 4), V(vT16), WS, S(sKVM)), 'kvs'))]

def step_loop(a, sf, Lexit, opt, stamp=None):
    def add(d, x, y): return 'v_add_f32 %s, %s, %s' % (V(d), V(x), V(y))
    def add2(d, x): return [add(d, x, x + 2), add(d + 1, x + 1, x + 3)]
    def cvt(d, x, y): return 'v_cvt_pk_bf16_f32 %s, %s, %s' % (V(d), V(x), V(y))
    def cnd(d, x, y, m=sHf): return 'v_cndmask_b32 %s, %s, %s, %s' % (V(d), x, y, S(m, 2))
    def mov2(d, x): return 'v_mov_b64 %s, %s' % (V(d, 2), x)
    def sadd(d, x):
        if opt.get('nopf') and d in (sVXo, sKXo): x = 0
        return 's_add_u32 %s, %s, 0x%x' % (S(d), S(d), x)
    def sxor(d, x=P1_BUF): return 's_xor_b32 %s, %s, 0x%x' % (S(d), S(d), x)
    def delay(n):
        while n > 0: a('s_nop %d' % (min(n, 16) - 1)); n -= 16
    st = stamp or (lambda i: None)
    Lstep = a.lab('step'); Lfail = a.lab('fail')
    Sx = [W0, W0 + 4]; Sm = W0 + 8; R0 = W0 + 12; R1 = W2 + 8
    kxr = {(0, 0): Sx[0], (0, 1): Sx[1], (1, 0): R0, (1, 1): R0, (2, 0): W1, (2, 1): W1 + 4, (3, 0): R0, (3, 1): R1}
    qa, qb, ka, kb = W1, W1 + 4, W1 + 8, W1 + 12
    va, vb = W3, W3 + 4
    KQ, YH, FV = W3, W3 + 4, vVa
    tails = []
    def mem(u): return W2 + 4 * (u % 3 if u < 12 else u % 2)
    def mu3(d, x, y, z): return 'v_max3_u32 %s, %s, %s, %s' % (V(d), V(x), V(y), V(z))
    def ldi(x, so, n=2):
        return ['buffer_load_dwordx4 %s, %s, %s, %s offen offset:%d sc1' % (V(x + 4 * m, 4), V(vL16), WS, S(so), 1024 * m) for m in range(n)]
    def chk(quads, C, x=''):
        regs = [r + i for r in quads for i in range(4)]
        o = [mu3(C, *regs[:3])]; regs = regs[3:]
        while len(regs) > 1: o.append(mu3(C, C, regs[0], regs[1])); regs = regs[2:]
        o.append('v_max_u32 %s, %s, %s' % (V(C), V(C), V(regs[0])))
        return o + ['v_cmp%s_eq_u32 vcc, -1, %s' % (x, V(C))]
    def retry(L, loads, check, cnt, first=None):
        L1 = a.lab('rt'); Le = a.lab('rte')
        a(L + ':')
        a('s_mov_b64 exec, vcc')
        a(L1 + ':')
        for u in range(3):
            a(loads)
            if stamp: a('s_add_u32 s%d, s%d, %d' % (cnt[0], cnt[0], cnt[1]))
            a('s_waitcnt vmcnt(%d)' % (len(loads) * (opt.get('dep', 2) - 1)))
            a(check)
            a('s_cbranch_execz ' + Le)
        a('s_sub_u32 %s, %s, 1' % (S(sSpin), S(sSpin))); a('s_cbranch_scc0 ' + L1)
        a('s_endpgm')
        a(Le + ':')
        a('s_mov_b64 exec, -1')
    LstepB = a.lab('stepB')
    PF = 'buffer_load_dword %s, %s, %s, 0 offen sc1' % (V(vDum), V(vDum), WS)
    FS = 'buffer_store_dword %s, %s, %s, %s offen sc1' % (V(FV), V(vPm), WS, S(sFCH))
    def vs(u, tau, slot): a(smf(va + 4 * tau, slot, regpos[('v', KORD[u], tau)]))
    a('s_branch ' + Lstep)
    a('.p2align 3')
    a(LstepB + ':')
    a('s_mov_b64 exec, -1')
    Lsure = a.lab('sure'); Lsb = a.lab('sureb')
    a('s_cmp_lg_u32 %s, 0' % S(sOdd1)); a('s_cbranch_scc1 ' + Lsure)
    a(Lsb + ':')
    def sure():
        a(Lsure + ':')
        a('s_mov_b32 %s, 0' % S(sOdd1))
        a('s_waitcnt lgkmcnt(0)')
        a(ldi(VX, sM2a))
        a('s_sub_u32 %s, %s, 1' % (S(sSpin), S(sSpin))); a('s_cbranch_scc1 ' + Lfail)
        a('s_waitcnt vmcnt(0)')
        a(chk([VX, VX + 4], vVb))
        a('s_cbranch_vccnz ' + Lsure)
        a('s_branch ' + Lsb)
    tails.append(sure)
    for m in range(2): a('buffer_load_dwordx4 %s, %s, %s offen offset:%d sc1 lds' % (V(vL16), WS, S(sM2a), 1024 * m))
    a(Lstep + ':')
    q = Seq(a, vm=['pre']); q.base = 0
    def mread(u): q('ds_read_b128 %s, %s offset:%d' % (V(mem(u), 4), V(vL16), L_MEM + 1024 * KORD[u]), ('m', u))
    def kxread(kap, tau): q('ds_read_b128 %s, %s offset:%d' % (V(kxr[kap, tau], 4), V(vL16), L_KX + 2048 * kap + 1024 * tau), ('kx', kap, tau))
    ex = {}
    def at(g, f, name='x'):
        l = ex.setdefault(g, [])
        fn = f if callable(f) else (lambda: q(f, name))
        if not callable(f) and f.startswith('v_'): l.append(fn)
        else: l.insert(0, fn)
    def gap(n):
        for f in ex.pop(n, []): f()
    a('s_mov_b64 exec, -1')
    q.drain(vm=False)
    q(ldi(VX, sVXo), 'vx')
    a('s_barrier')
    st('B0')
    mread(0); mread(1); mread(2)
    now = opt.get('now', 0)
    if now: q(PF, 'x')
    elif opt.get('pfirst'): q(PF, 'x'); at(opt['pfirst'], kvm_stores(q, a, KQ, None)[4])
    elif opt.get('nokv'): at(opt.get('gpf', 3), PF)
    else: kvm_stores(q, a, KQ, None)[4](); at(opt.get('gpf', 3), PF)
    at(opt.get('gfs', 1), FS)
    if now: at(9, 'v_add_u32 %s, %s, %s' % (V(vPm), S(sXq), V(vXr)))
    else: at(4, mov2(W3, '0')); at(5, mov2(W3 + 2, '0'))
    GB = opt.get('gb', 13)
    at(GB - 2, lambda: q.wait('pre')); at(GB, lambda: (a('s_barrier'), st('Bc')))
    def checked(u, gr, gc, gb):
        for i in range(2): at(gr[i], lambda i=i: mread(u + i))
        full = chk([mem(u), mem(u + 1)], vVb)
        c = full if sf else ['v_max_u32 %s, %s, %s' % (V(vVb), V(mem(u) + 3), V(mem(u + 1) + 3)), full[-1]]
        L = a.lab('fx'); Lb = a.lab('fxb')
        at(gb, lambda: (a('s_cbranch_vccnz ' + L), a(Lb + ':')))
        at(gc, lambda: q.wait(('m', u + 1)))
        for x in c: at(gc, x)
        def tail():
            a(L + ':')
            if stamp: a('s_add_u32 s17, s17, 0x100')
            a('s_add_u32 %s, %s, %d' % (S(sTmp), S(sM2c), 1024 * KORD[u] - 8192))
            for i in range(2): a('buffer_load_dwordx4 %s, %s, %s, %s offen offset:%d sc1' % (V(mem(u + i), 4), V(vL16), WS, S(sTmp), 1024 * i))
            a('s_sub_u32 %s, %s, 1' % (S(sSpin), S(sSpin))); a('s_cbranch_scc1 ' + Lfail)
            a('s_waitcnt vmcnt(0)')
            a(full); a('s_cbranch_vccnz ' + L)
            a('ds_write_b128 %s, %s offset:%d' % (V(vL16), V(mem(u), 4), L_MEM + 1024 * KORD[u]))
            a('s_waitcnt lgkmcnt(0)')
            a('s_branch ' + Lb)
        tails.append(tail)
    checked(5, (16, 19), 23, 25)
    checked(7, (25, 29), 33, 35)
    flat = [(u, x) for u in range(7) for x in (('qa', 'qb', 'ka', 'va', 'vb', 'kb') if u in (2, 3, 4) else ('qa', 'qb', 'ka', 'kb'))]
    q.wait(('m', 0))
    st('m0')
    for n, (u, x) in enumerate(flat):
        t = KORD[u]
        if x == 'kb': a(smf(kb, mem(u), W0 + 8 * (u % 2)))
        else: a(smf({'qa': qa, 'qb': qb, 'ka': ka, 'va': va, 'vb': vb}[x], mem(u), regpos[(x[0], t, int(x[1] == 'b'))]))
        if u and x in ('qa', 'qb'): q(frag_read(q, u + 1, W0 + 8 * ((u + 1) % 2), None)[x == 'qb'], ('kb', u + 1))
        if x == 'ka' and u in (1, 2): mread(u + 2)
        if n + 1 < len(flat) and flat[n + 1][1] == 'kb':
            if u < 4: q.wait(('kb', u), ('m', u + 1))
            else: q.wait(('kb', u))
            if fbase(u + 2)[0] != q.base:
                a('v_add_u32 %s, 0x10000, %s' % (V(vT16), V(vT16))); q.base += 65536
        gap(n)
    def pk2(x, y): return [cvt(x, x, y), cvt(x + 1, x + 1, y + 1)]
    def w2(ad, x, o=0): return 'ds_write2_b32 %s, %s, %s offset0:%d offset1:%d' % (V(ad), V(x), V(x + 1), o, o + 16)
    SA, SB, SC_ = W2, W2 + 4, W2 + 8
    def rread(t, slot): q('ds_read_b128 %s, %s offset:%d' % (V(slot, 4), V(vL16), L_MEM + 1024 * KORD[t]), ('r', t))
    kxr.update({(1, 1): SA, (2, 0): R0, (2, 1): SC_, (3, 0): W1, (3, 1): SA})
    rd = frag_read(q, 8, W0, None)
    st('k7')
    pq = pk2(qa, qb)
    vs(6, 0, SA); q(rd[0], ('kb', 8))
    vs(6, 1, SA); gap(35)
    a(smf(qa, mem(7), regpos[('q', KORD[7], 0)])); q(rd[1], ('kb', 8))
    a(smf(qb, mem(7), regpos[('q', KORD[7], 1)])); rread(0, SA)
    a(smf(qa, mem(8), regpos[('q', KORD[8], 0)]))
    a(smf(qb, mem(8), regpos[('q', KORD[8], 1)]))
    a(smf(ka, mem(7), regpos[('k', KORD[7], 0)])); q.wait(('kb', 8)); a(add2(qa, qa))
    a(smf(kb, mem(7), W0 + 8)); kxread(1, 0); a(add2(qb, qb))
    a(smf(ka, mem(8), regpos[('k', KORD[8], 0)])); a(pq)
    a(smf(kb, mem(8), W0)); q(w2(vQw, qa), 'w')
    assert not ex, ex
    st('p1e')
    wb = [W1, W1 + 8, VX]
    def wo_read(p, hf):
        if fbase(9 + p)[0] != q.base:
            a('v_add_u32 %s, 0x10000, %s' % (V(vT16), V(vT16))); q.base += 65536
        q(frag_read(q, 9 + p, wb[p % 3], None)[hf], ('wo', p))
    vs(7, 0, SB); kxread(0, 0); a(add2(ka, ka))
    vs(7, 1, SB); q.wait(('r', 0))
    a(add2(kb, kb)); a(pk2(ka, kb))
    st('kw')
    if opt.get('kwf', 0):
        vs(0, 0, SA); q(w2(vXw, ka), 'w')
        vs(0, 1, SA); rread(1, SB); a(mov2(Sm, '0'))
        vs(8, 0, SC_); rread(5, SA); a(mov2(Sm + 2, '0'))
        vs(8, 1, SC_); kxread(0, 1)
    else:
        q(w2(vXw, ka), 'w')
        vs(0, 0, SA); rread(1, SB); a(mov2(Sm, '0'))
        vs(0, 1, SA); rread(5, SA); a(mov2(Sm + 2, '0'))
        vs(8, 0, SC_); kxread(0, 1)
        vs(8, 1, SC_)
    q.wait('w')
    a('s_barrier')
    st('B1')
    def qread(k): q('ds_read_b128 %s, %s offset:%d' % (V(W1 + 4 * k, 4), V(vQr), L_Q + 512 * k), ('q', k))
    def xrd(base, dst, tp, name): q('ds_read_b128 %s, %s offset:%d' % (V(dst, 4), V(vXr), base + 2048 * tp), name)
    kmr = [SC_, SB]
    def kmread(tp): xrd(L_KM, kmr[tp], tp, ('km', tp))
    qread(0); q.wait(('r', 1))
    vs(1, 0, SB); qread(1); q.wait(('r', 5))
    vs(1, 1, SB); kmread(0); qread(2)
    vs(5, 0, SA); qread(3)
    vs(5, 1, SA); kxread(1, 1)
    def sx(k, tau):
        q.wait(('q', k), ('kx', k, tau))
        a('v_mfma_f32_16x16x32_bf16 %s, %s, %s, %s' % (V(Sx[tau], 4), V(kxr[k, tau], 4), V(W1 + 4 * k, 4), V(Sx[tau], 4) if k else '0'))
    def sm(tp):
        q.wait(('km', tp), ('q', 2 * tp + 1))
        a(smf(Sm, kmr[tp], W1 + 8 * tp))
    T0, T1, T2, T3, ONE = Sm + 2, Sm + 3, Sm + 1, vPm, R0
    oa, ob, LL = W2, W2 + 4, W2 + 8
    def ex2(x): return 'v_exp_f32 %s, %s' % (V(x), V(x))
    def m16(d, b): return 'v_mfma_f32_16x16x16_bf16 %s, %s, %s, 0' % (V(d, 4), V(vPm, 2), V(b, 2))
    def sm32(d, b): return 'v_smfmac_f32_16x16x32_bf16 %s, %s, %s, %s' % (V(d, 4), V(T0, 2), V(b, 4), V(vIdx))
    cn = [cnd(Sx[0] + r, V(Sx[0] + r), V(Sx[1] + r)) for r in range(4)]
    pm = [cnd(Sm + 1, '0', V(Sm)), cnd(Sm, V(Sm), '0'), cvt(vPm, Sm, Sm + 1)]
    SC = 'v_mul_f32 %s, %s, %s' % (V(Sm), S(sC), V(Sm))
    wacc = [W3, W3 + 4, W0, W0 + 4, W0 + 8, W0 + 12, W2 + 8, W3, W0]
    zer = [mov2(x + 2 * i, '0') for x in wacc[:7] for i in range(2)]
    st('s0')
    sx(0, 0); kmread(1)
    sx(0, 1); a(add2(va, va))
    sx(1, 0); kxread(2, 0); a(cvt(vVa, va, va + 1)); a(add(vb, vb, vb + 2))
    sm(0); kxread(2, 1); kxread(3, 0); a(add(vb + 1, vb + 1, vb + 3))
    sx(1, 1); kxread(3, 1); a(cvt(vVb, vb, vb + 1))
    if now:
        kv = kvm_stores(q, a, W3, vPm)
        kv[2]()
        sm(1); wo_read(0, 1); kv[1](); kv[3]()
        zer = zer[2:4] + zer[:2] + zer[4:]
    else: sm(1); wo_read(0, 1)
    sx(2, 0); a(mov2(ONE, S(sOne, 2))); a(mov2(ONE + 2, S(sOne, 2)))
    sx(2, 1); wo_read(1, 0); a(add2(Sm, Sm))
    sx(3, 0); wo_read(0, 0); a(cnd(Sm, V(Sm), V(Sm + 1))); a(SC)
    sx(3, 1)
    st('Se')
    if now == 1:
        kv[4](); a(ex2(Sm)); wo_read(1, 1); a(pm); a(zer.pop(0))
    elif now == 2:
        wo_read(1, 1); a(ex2(Sm)); a(zer.pop(0)); a(pm); kv[4]()
    else:
        wo_read(1, 1)
        a(ex2(Sm)); a(zer.pop(0)); a(pm); a(zer.pop(0)); a(zer.pop(0))
    a(cn)
    st('max')
    a(m16(LL, ONE)); q.wait('vx'); a(ex2(Sx[0]))
    a(m16(oa, vVa)); a('s_cmp_eq_u32 %s, 63' % S(sStep)); a(ex2(Sx[0] + 1))
    a(m16(ob, vVb)); a(ex2(Sx[0] + 2)); a(ex2(Sx[0] + 3))
    pk = [cvt(T0, Sx[0], Sx[0] + 1), cvt(T1, Sx[0] + 2, Sx[0] + 3)]
    a(pk)
    a(zer.pop(0)); a(zer.pop(0))
    st('pv')
    for d, b in ((LL, ONE), (oa, VX), (ob, VX + 4)):
        a(sm32(d, b))
        if d == ob: a('s_nop 0')
        elif d == oa and not now: a(zer.pop(0))
        else: a(zer.pop(0)); a(zer.pop(0))
    def norm():
        a(add2(LL, LL))
        for i in range(2): a('v_rcp_f32 %s, %s' % (V(LL + i), V(LL + i)))
        a(add2(oa, oa))
        for i in range(2): a('v_mul_f32 %s, %s, %s' % (V(oa + i), V(oa + i), V(LL + i)))
        a(add2(ob, ob))
        for i in range(2): a('v_mul_f32 %s, %s, %s' % (V(ob + i), V(ob + i), V(LL + i)))
        a(pk2(oa, ob))
    OW = w2(vXw, oa, 128)
    norm()
    q(OW, 'ow')
    R = opt.get('rng', 60)
    for i in range(2): a('v_subrev_u32 %s, 0x%x, %s' % (V(LL + i), (127 - R) << 23, V(LL + i)))
    st('ow')
    a('v_max_u32 %s, %s, %s' % (V(LL), V(LL), V(LL + 1)))
    a('v_cmp_lt_u32 vcc, 0x%x, %s' % ((2 * R) << 23, V(LL)))
    a('s_cbranch_scc1 ' + Lexit)
    Lmx = a.lab('mx'); Lmb = a.lab('mxb')
    PW = vPm
    zer = zer[:-2] + p1w_addr(PW, LL) + zer[-2:]
    wo01 = frag_read(q, 9, wb[0], None) + frag_read(q, 10, wb[1], None)
    def true_max():
        def mx3(d, x, y, z): return 'v_max3_f32 %s, %s, %s, %s' % (V(d), V(x), V(y), V(z))
        a(Lmx + ':')
        if stamp: a('s_add_u32 s17, s17, 0x100')
        a('s_waitcnt lgkmcnt(0)')
        for k in range(4): a('ds_read_b128 %s, %s offset:%d' % (V(W1 + 4 * k, 4), V(vQr), L_Q + 512 * k))
        a(mov2(Sm, '0')); a(mov2(Sm + 2, '0'))
        for k in range(5):
            for tau in range(2):
                if k < 4: a('ds_read_b128 %s, %s offset:%d' % (V(W2 + 4 * tau, 4), V(vL16), L_KX + 2048 * k + 1024 * tau))
                else: a('ds_read_b128 %s, %s offset:%d' % (V(W2 + 4 * tau, 4), V(vXr), L_KM + 2048 * tau))
            a('s_waitcnt lgkmcnt(0)')
            for tau in range(2):
                if k < 4: a('v_mfma_f32_16x16x32_bf16 %s, %s, %s, %s' % (V(Sx[tau], 4), V(W2 + 4 * tau, 4), V(W1 + 4 * k, 4), V(Sx[tau], 4) if k else '0'))
                else: a(smf(Sm, W2 + 4 * tau, W1 + 8 * tau))
        a(wo01)
        a(mov2(ONE, S(sOne, 2))); a(mov2(ONE + 2, S(sOne, 2))); a('s_nop 1')
        a(add2(Sm, Sm))
        for i in range(2): a('v_mul_f32 %s, %s, %s' % (V(Sm + i), S(sC), V(Sm + i)))
        a('v_max_f32 %s, %s, %s' % (V(T0), V(Sm), V(Sm + 1))); a(cnd(Sm, V(Sm), V(Sm + 1)))
        for i in range(3): a(mx3(T0, T0, Sx[0] + 2 * i, Sx[0] + 2 * i + 1))
        a(mx3(T1, T0, Sx[1] + 2, Sx[1] + 3)); a(mx3(T2, T0, Sx[1] + 2, Sx[1] + 3))
        a(cn[:2])
        a('v_permlane16_swap_b32 %s, %s' % (V(T1), V(T2)))
        a('v_max_f32 %s, %s, %s' % (V(T0), V(T1), V(T2)))
        a('v_max_f32 %s, %s, %s' % (V(T3), V(T1), V(T2)))
        a(cn[2:])
        a('v_permlane32_swap_b32 %s, %s' % (V(T0), V(T3)))
        a('v_max_f32 %s, %s, %s' % (V(T0), V(T0), V(T3)))
        vals = [Sm] + [Sx[0] + r for r in range(4)]
        for x in vals: a('v_sub_f32 %s, %s, %s' % (V(x), V(x), V(T0)))
        for x in vals: a(ex2(x))
        a(pm); a(pk)
        a(m16(LL, ONE)); a(m16(oa, vVa)); a(m16(ob, vVb))
        a(sm32(LL, ONE)); a(sm32(oa, VX)); a(sm32(ob, VX + 4)); a('s_nop 0')
        norm()
        a(OW)
        for i in range(8): a(mov2(W0 + 2 * i, '0'))
        a('s_waitcnt lgkmcnt(0)')
        a('s_branch ' + Lmb)
    tails.append(true_max)
    sal = [sadd(sKXo, 0x80000), 's_add_u32 m0, %s, %d' % (S(sM2b), L_KX), sxor(sTag, 1), sadd(sVXo, 0x80000), sadd(sKVM, 0x20000),
           's_cmp_lt_u32 %s, 62' % S(sStep), 's_cselect_b32 %s, 0x%x, 0' % (S(sTmp), 0 if opt.get('nopf') else 0x80000), 's_add_u32 %s, %s, %s' % (S(sPF), S(sPF), S(sTmp)),
           's_add_u32 %s, %s, 1' % (S(sStep), S(sStep)), 's_add_u32 %s, %s, 2' % (S(sTm2), S(sStep)), 's_min_u32 %s, %s, 64' % (S(sTm2), S(sTm2))] + [sxor(x) for x in TOGGLE]
    ords = [0, 1]
    kxl = [0, 1]
    def kxd(): q('buffer_load_dwordx4 %s, %s, %s offen offset:%d sc1 lds' % (V(vL16), WS, S(sKXo), 1024 * kxl.pop(0)), 'kxd')
    def warm(pat):
        for c in pat:
            if c == 'v': a(zer.pop(0))
            elif c == 's': a(sal.pop(0))
            elif c == 'w': wo_read(2, 0); wo_read(2, 1)
            elif c == 'r': tp = ords.pop(0); xrd(L_O, W2 + 4 * tp, tp, ('oa', tp))
            elif c == 'x': wo_read(2, 0)
            elif c == 'y': wo_read(2, 1)
            elif c == 'd': kxd()
            elif c == 'k': a('v_mov_b32 %s, 0' % V(vZero))
            elif c == 'b': a('s_cbranch_vccnz ' + Lmx); a(Lmb + ':')
    warm(opt.get('wa', 'vvvvb'))
    q.wait('ow')
    warm(opt.get('wm', 'v'))
    a('s_barrier')
    st('B2')
    warm(opt.get('wb', 'rvrxvysvssvsv'))
    def fin(p):
        x = wacc[p]
        def tag(d): return 'v_and_or_b32 %s, %s, -2, %s' % (V(d), V(d), S(sTag))
        if p == 0:
            return add2(x, x) + [cvt(x + 1, x + 1, x + 1), cvt(x, x, x), tag(x + 1),
                    'buffer_store_dwordx2 %s, %s, %s, %s offen %s' % (V(x, 2), V(PW), WS, S(sP1w + 2), sf)]
        if p % 2: return add2(x, x)
        y = wacc[p - 1]; r = p // 2 - 1
        return add2(x, x) + [cvt(y + 1, y + 1, x + 1), cvt(y, y, x), tag(y + 1),
                'buffer_store_dwordx2 %s, %s, %s, %s offen offset:%d %s' % (V(y, 2), V(PW), WS, S(sP1w + r // 2), 2048 * (r % 2), sf)]
    order = [(0, 0)]
    for p in range(1, 9): order += [(p, 0), (p - 1, 1)]
    order += [(8, 1)]
    F = [fin(p) for p in range(9)]
    rz = {p: [mov2(wacc[p] + 2 * i, '0') for i in range(2)] for p in (7, 8)}
    ws_ = opt.get('ws', 1)
    if ws_ == 0:
        vw = {4: F[0][:2], 5: F[0][2:4], 6: F[0][4:5] + F[1], 7: rz[7], 8: F[2][:2], 9: F[2][2:4], 10: F[2][4:5] + F[3], 11: rz[8],
              12: F[4][:2], 13: F[4][2:5], 14: F[5][:1], 15: F[5][1:], 16: F[6][:2]}
        sw = {7: F[0][5], 11: F[2][5], 14: F[4][5]}
    else:
        vw = {4: F[0][:3], 5: F[0][3:5], 6: F[1], 7: rz[7], 8: F[2][:3], 9: F[2][3:5], 10: F[3], 11: rz[8],
              12: F[4][:3], 13: F[4][3:5], 14: F[5][:1], 15: F[5][1:], 16: F[6][:2]}
        sw = {6: F[0][5], 10: F[2][5], 14: F[4][5]}
    if opt.get('r2', 0): vw[16] = F[6][:5]
    kxg = [int(c) for c in str(opt.get('kxg', 'g02'))[1:]]
    q.wait(('oa', 0))
    st('wo0')
    for n, (p, tp) in enumerate(order):
        tl = WO_ORDER[p]
        k = 0
        st('w%d' % n)
        if tp == 0: a(smf(wacc[p], W2, regpos[('o', 0, tl)]))
        else: a(smf(wacc[p], W2 + 4, wb[p % 3] if p < 8 else regpos[('o', 1, tl)]))
        if n == 17: break
        if ws_ == 0:
            if tp and p < 5: wo_read(p + 3, 0); wo_read(p + 3, 1); k = 2
        elif 2 <= n < 12: wo_read(n // 2 + 2, n % 2); k = 1
        if n in sw: q(sw[n], 'p1'); k += 2
        if n in kxg and kxl: kxd(); k += 2
        if order[n + 1][1] == 1: k += q.wait(('oa', 1), ('wo', order[n + 1][0]))
        while k < 2 and sal: a(sal.pop(0)); k += 1
        if zer: a(zer.pop(0))
        if n == 3:
            a('v_add_u32 %s, 0x10000, %s' % (V(vT16), V(vT16))); q.base += 65536
        if k == 0: a('s_nop 0')
        a(vw.get(n, []))
    assert not zer
    pend = F[6][2:] + F[7] + ['s_nop 0'] + F[8]
    if opt.get('r2', 0): pend = F[6][5:] + ['s_nop 0'] + F[7] + ['s_nop 2'] + F[8]
    SEL, X, D, XH, DH = W1 + 8, W1, W1 + 12, W0, W0 + 8
    MA, HA, LA, C, TT, NEG = W2, W2 + 1, W2 + 2, W2 + 3, W2 + 6, W2 + 7
    sal_left = list(sal)
    a('s_cmp_eq_u32 s4, 0')
    n8 = len(F[8])
    a(pend[:-n8])
    if opt.get('wn', 0): a('s_nop %d' % (opt['wn'] - 1))
    a(pend[-n8:])
    st('Woe')
    def red(d, x, m): return 'v_mfma_f32_16x16x32_bf16 %s, %s, %s, %s' % (V(d, 4), V(SEL, 4), V(x + 4 * m, 4), V(d, 4) if m else '0')
    def tchk(quads, x=''):
        o = []
        for i, r in enumerate(quads):
            o.append('v_bitop3_b32 %s, %s, %s, %s bitop3:0x7e' % (V(C + min(i, 1) + (i == 2)), V(r + 1), V(r + 3), S(sTag)))
            if i == 2: o.append('v_or3_b32 %s, %s, %s, %s' % (V(C), V(C), V(C + 1), V(C + 2)))
        return o + ['v_bitop3_b32 %s, %s, 1, %s bitop3:0xc8' % (V(C), V(C), V(C + 1)), 'v_cmp%s_ne_u32 vcc, 0, %s' % (x, V(C))]
    def ror(d, n): return 'v_add_f32_dpp %s, %s, %s row_ror:%d row_mask:0xf bank_mask:0xf' % (V(d), V(d), V(d), n)
    def pub(d, ad, so): return [cvt(d, d, d + 1), 'buffer_store_dword %s, %s, %s, %s offen %s' % (V(d), V(ad), WS, S(so), sf)]
    lates = []
    def misc():
        a(sal_left)
        a('v_mov_b32 %s, 0x3f80' % V(SEL + 3))
        a(cnd(SEL + 3, V(SEL + 3), '1.0', sOdd))
        a([cnd(SEL + r, '0', V(SEL + 3), sSel + 2 * r) for r in range(4)])
        a(m2_addr(MA, TT))
        a('v_subrev_u32 %s, 0x20000, %s' % (V(vT16), V(vT16)))
        a('v_mov_b32 %s, -1' % V(NEG))
        a('v_add_u32 %s, %s, %s' % (V(LA), S(sM2b), V(vL16)))
        if now: a(mov2(W3, '0')); a(mov2(W3 + 2, '0'))
        else:
            for f in kvm_stores(Seq(a), a, KQ, TT)[:4]: f()
        a(mov2(W3 + 4, '0')); a(mov2(W3 + 6, '0'))
    def spf():
        if not NSL[0]: return 0
        a('s_add_u32 s78, s20, %s' % S(sPF)); a('s_addc_u32 s79, s21, 0')
        a('s_waitcnt lgkmcnt(0)')
        for i in range(2 * NSL[0]): a('s_load_dword s80, s[78:79], %d' % (4096 - 64 * (i + 1)))
        return 3 + 2 * NSL[0]
    def kb01():
        qq = Seq(a); qq.base = 0
        a(frag_read(qq, 0, W0, None)); a(frag_read(qq, 1, W0 + 8, None))
    def hop2(w, pol):
        hx = w == 0
        quads = [VX] if w == 2 else [VX, VX + 4]
        lds = ldi(VX, sM2c, 1) if w == 2 else ldi(VX, sM2a)
        a('buffer_store_dword %s, %s, %s, %s offen %s' % (V(NEG), V(MA), WS, S(sM2x), sf))
        if hx: a('buffer_store_dword %s, %s, %s, %s offen %s' % (V(NEG), V(HA), WS, S(sM2xh), sf))
        a('v_cmp_gt_u32 vcc, %s, %s' % (S(sTm2), V(vDum)))
        if hx: kb01()
        for i in range(8): a(mov2(W1 + 2 * i, '0'))
        Lf = a.lab('fok'); Lfw = a.lab('fw'); L2 = a.lab('p2')
        a('s_bitcmp1_b32 vcc_hi, 31')
        a('s_cbranch_scc1 ' + Lfw)
        a(Lf + ':')
        lates.append((Lfw, Lf))
        a(step_addrs())
        if w >= 2: a('s_add_u32 m0, %s, %d' % (S(sM2b), L_MEM))
        if w == 3:
            if opt.get('diag') == 1:
                a('s_memtime s[90:91]'); a('s_memrealtime s[92:93]'); a('s_lshl_b32 s94, %s, 3' % S(sStep)); a('v_mov_b32 %s, s94' % V(W2 + 10)); a('s_waitcnt lgkmcnt(0)')
                a('v_mov_b32 %s, s90' % V(W2 + 8)); a('v_mov_b32 %s, s92' % V(W2 + 9)); a('ds_write_b64 %s, %s offset:23552' % (V(W2 + 10), V(W2 + 8, 2)))
            a('s_waitcnt vmcnt(0)')
            a('s_cmp_lg_u32 %s, 0' % S(sOdd1)); a('s_cbranch_scc1 ' + Lsure)
            delay(pol[0] - 4)
            st('h2e'); a('s_branch ' + LstepB); return
        d, sp, dep = pol
        if hx and not opt.get('w0s', 0): d -= spf()
        delay(d)
        for i in range(dep - 1): a(lds); delay(sp)
        a(L2 + ':')
        for u in range(3):
            a(lds)
            if stamp: a('s_add_u32 s17, s17, 1')
            a('s_waitcnt vmcnt(%d)' % (len(lds) * (dep - 1)))
            c = chk(quads, C, 'x')
            a(c[:-1])
            if w == 2: a('ds_write_b128 %s, %s offset:%d' % (V(vL16), V(VX, 4), L_MEM + 8192))
            else:
                for m in range(2): a('ds_write_b128 %s, %s offset:%d' % (V(LA), V(quads[m], 4), L_MEM + 1024 * m))
            a(c[-1])
            st('h2e')
            a('s_cbranch_execz ' + (LstepB if w == 2 else Lstep))
        a('s_sub_u32 %s, %s, 1' % (S(sSpin), S(sSpin)))
        a('s_cbranch_scc0 ' + L2)
        a('s_endpgm')
    def reduce1(ins):
        Lr = a.lab('r1'); Lr2 = a.lab('r2'); Lb = a.lab('b1')
        def attempt(x, young, L):
            a('s_waitcnt vmcnt(%d)' % (young + 1)); a(red(D, x, 0))
            a('s_waitcnt vmcnt(%d)' % young); a(red(D, x, 1))
            st('got1')
            a(tchk([x, x + 4]))
            a('s_nop 3')
            a(ror(D, 4)); a(ror(D + 1, 4))
            a('s_cbranch_vccnz ' + L)
            a(ror(D, 8)); a(ror(D + 1, 8))
            a(pub(D, MA, sM2w))
        attempt(X, 2 * ins, Lr2 if ins else Lr)
        a(Lb + ':')
        st('pub')
        def tail():
            x = VX if ins else X
            if ins:
                a(Lr2 + ':')
                if stamp: a('s_add_u32 s17, s17, 0x100')
                attempt(VX, 0, Lr)
                a('s_branch ' + Lb)
            retry(Lr, ldi(x, sP1r), tchk([x, x + 4], 'x'), (16, 1))
            a('s_mov_b32 %s, %d' % (S(sOdd1), opt.get('sure', 0))); a('s_nop 1')
            a(red(D, x, 0)); a(red(D, x, 1)); a('s_nop 7')
            a(ror(D, 4)); a(ror(D + 1, 4)); a('s_nop 0'); a(ror(D, 8)); a(ror(D + 1, 8))
            a(pub(D, MA, sM2w))
            if not ins: a('s_waitcnt vmcnt(1)')
            a('s_branch ' + Lb)
        tails.append(tail)
    def P(w, dflt):
        return [int(x) for x in str(opt.get('p%d' % w, dflt)).split('.')]
    LH = a.lab('wH'); Lw = {w: a.lab('w') for w in (1, 2)}
    a('s_cbranch_scc1 ' + LH)
    a('s_cmp_eq_u32 s4, 1'); a('s_cbranch_scc1 ' + Lw[1])
    a('s_cmp_eq_u32 s4, 2'); a('s_cbranch_scc1 ' + Lw[2])
    for w in (3, 2, 1):
        p = P(w, {1: '2.0.5.0.17.24.2', 2: '1.0.28.1.5.24.2', 3: '0.0.28.1.44.0.0'}[w])
        if w < 3: a(Lw[w] + ':')
        if p[3]: misc(); kb01()
        a('s_waitcnt vmcnt(%d)' % p[0])
        delay(p[1])
        st('ack1')
        a(ldi(X, sP1r))
        if not p[3]: misc(); kb01()
        n = spf() if p[3] else 0
        if p[2]: delay(p[2] - 1 - n); a(ldi(VX, sP1r))
        if not p[3]: spf()
        reduce1(1 if p[2] else 0)
        hop2(w, p[4:])
    p = P(0, '3.8.0.0.11.24.2')
    a(LH + ':')
    st('pre1')
    a(h_addr(HA, TT))
    a('s_waitcnt vmcnt(%d)' % p[0]); delay(p[1])
    st('ack1')
    ld3 = ldi(XH, sP1h) + ldi(X, sP1r)
    a(ld3)
    misc()
    if opt.get('w0s', 0): spf()
    Lr = a.lab('r1'); Lb = a.lab('b1')
    quads = [X, X + 4, XH, XH + 4]
    a('s_waitcnt vmcnt(2)'); a(red(DH, XH, 0)); a(red(DH, XH, 1))
    a('s_waitcnt vmcnt(1)'); a(red(D, X, 0))
    a('s_waitcnt vmcnt(0)'); a(red(D, X, 1))
    st('got1')
    a(tchk(quads))
    def fin3(br):
        a(ror(DH + 1, 4)); a(ror(D, 4)); a(ror(D + 1, 4))
        a(ror(DH + 1, 8)); a(ror(D, 8)); a(ror(D + 1, 8))
        if br: a('s_cbranch_vccnz ' + Lr)
        a(pub(D, MA, sM2w))
        a('v_mov_b32_dpp %s, %s quad_perm:[1,0,3,2] row_mask:0xf bank_mask:0xf' % (V(DH + 2), V(DH + 1)))
        a(pub(DH + 1, HA, sM2wh))
    fin3(1)
    a(Lb + ':')
    st('pub')
    hop2(0, p[4:])
    retry(Lr, ld3, tchk(quads, 'x'), (16, 1))
    a('s_nop 2')
    a(red(DH, XH, 0)); a(red(DH, XH, 1)); a(red(D, X, 0)); a(red(D, X, 1)); a('s_nop 6')
    fin3(0)
    a('s_waitcnt vmcnt(2)')
    a('s_branch ' + Lb)
    for t_ in tails: t_()
    for Lfw, Lf in lates:
        a(Lfw + ':')
        if opt.get('diag') == 1: a('s_bitset1_b64 s[98:99], %s' % S(sStep))
        wait_flag(a, S(sFPB), S(sTm2), 'pb')
        a('s_branch ' + Lf)
    a(Lfail + ':')
    a('s_endpgm')

def chain(a, opt, flags_ready, wflags='nt', stamp=None, stamp_once=None, force_slow=False):
    srd(a, 8, 'B_wq'); srd(a, 12, 'B_wk'); srd(a, 16, 'B_wv'); srd(a, 24, 'B_wo'); srd(a, 28, 'dbg'); srd(a, 32, 'B_mem0')
    NOW[0] = opt.get('now', 0)
    FMASK[0] = opt.get('fmask', 0); NSL[0] = opt.get('nsl', 0)
    load_weights(a, wflags, arrive, (opt.get('cD', 5), opt.get('cL', 57), opt.get('hn', 62)), early(a, opt, flags_ready))
    if stamp_once: stamp_once(a, 1)
    start(a, (lambda: stamp_once(a, 2)) if stamp_once else None)
    if opt.get('diag') == 1: a('s_mov_b64 s[98:99], 0')
    Lslow = a.lab('slow'); Lexit = a.lab('chexit')
    if force_slow: a('s_branch ' + Lslow)
    a('s_cbranch_scc0 ' + Lslow)
    step_loop(a, '', Lexit, opt, stamp)
    a(Lslow + ':')
    step_loop(a, 'sc1', Lexit, opt, stamp)
    a(Lexit + ':')
    if not NOW[0]:
        q = Seq(a)
        a('s_add_u32 %s, %s, 0x10000' % (S(sKVM), S(sKVM)))
        for f in kvm_stores(q, a, W3, vPm): f()
    a('s_waitcnt vmcnt(0) lgkmcnt(0)')
    a('s_barrier')
    a('v_subrev_u32 %s, 0x10000, %s' % (V(vT16), V(vT16)))
    a('v_min_u32 %s, 16, %s' % (V(vT16), V(vT16))); a('v_lshlrev_b32 %s, 24, %s' % (V(vT16), V(vT16)))
    a('v_mov_b32 %s, 64' % V(vPm))
    a('buffer_store_dword %s, %s, %s, %s offen sc1' % (V(vPm), V(vT16), WS, S(sFCH)))
    if opt.get('diag') == 1:
        a('v_lshrrev_b32 v20, 1, %s' % V(vL16)); a('ds_read_b64 v[22:23], v20 offset:23552')
        a('s_lshl_b32 s94, %s, 9' % S(sH)); a('s_add_u32 s94, s94, 0x%x' % (WS_STAMP + 0x10000)); a('s_waitcnt lgkmcnt(0)')
        a('v_writelane_b32 v22, s98, 0'); a('v_writelane_b32 v23, s99, 0')
        a('buffer_store_dwordx2 v[22:23], v20, %s, s94 offen' % WS)
```

```python
from common import *
WS = 's[20:23]'
sCs, sT0, sDT, sN, sCtx, sOcol, sFb, sDX, sRot0 = range(32, 41)
sT, sTn, sCnt, sRot, sTmp, sA, sB, sNb, sLb, sSpin, sNeed, sHh, sFo, sOo = range(41, 55)
vL16, vFl, vFa, vRa, vWa, vOa, vRb, vPk = 1, 2, 3, 4, 5, 6, 7, 8
vW2 = 14
vWb = 16
vX, vAcc = 32, 96
WAVE = 40960
def wreg(j, ct, z=None):
    i = (3 * j + ct) * 4
    i = 256 + i if i < 256 else 128 + i - 256
    return U(i, 4) if z is None else U(i + 2 * z, 2)

def load_weights(a, wflags, D):
    vD, vR = 8, 10
    a('v_bfe_u32 v14, v15, 5, 1'); a('v_bfe_u32 v16, v15, 3, 1'); a('v_lshl_add_u32 v14, v14, 1, v16')
    a('v_bfe_u32 v16, v15, 4, 1'); a('v_lshl_add_u32 v14, v16, 6, v14'); a('v_mul_u32_u24 v14, 1152, v14')
    a('v_bfe_u32 v17, v15, 1, 2'); a('v_xor_b32 v17, v17, v16'); a('v_lshlrev_b32 v17, 5, v17')
    a('v_and_b32 v16, 1, v15'); a('v_lshl_add_u32 v17, v16, 4, v17')
    a('v_add_u32 %s, v14, v17' % V(vD))
    a('v_xor_b32 v17, 64, v17'); a('v_add_u32 %s, v14, v17' % V(vD + 1))
    a('v_lshrrev_b32 v14, 4, v15'); a('v_bfe_u32 v16, v15, 2, 2'); a('v_lshl_add_u32 v14, v14, 3, v16'); a('v_lshlrev_b32 v14, 7, v14')
    a('v_bfe_u32 v16, v15, 3, 2'); a('v_lshl_add_u32 v14, v16, 5, v14')
    a('v_and_b32 v16, 3, v15'); a('v_lshl_add_u32 v14, v16, 3, v14')
    for ct in range(4):
        a('v_xor_b32 v16, %d, v14' % (32 * ct)); a('v_add_u32 %s, %s, v16' % (V(vR + ct), S(sLb)))
    a('s_lshl_b32 %s, %s, 7' % (S(sB), S(sCs)))
    def slot(j): return 8192 + 4096 * (j % 8)
    def dma(j):
        if j % 4 == 0:
            a('s_add_u32 %s, %s, %d' % (S(sA), S(sRot), j // 4)); a('s_and_b32 %s, %s, 7' % (S(sA), S(sA)))
            a('s_lshl_b32 %s, s4, 3' % S(sTmp)); a('s_add_u32 %s, %s, %s' % (S(sA), S(sA), S(sTmp)))
            a('s_mul_i32 %s, %s, 147456' % (S(sA), S(sA))); a('s_add_u32 %s, %s, %s' % (S(sA), S(sA), S(sB)))
        for y in range(4):
            a('s_add_u32 m0, %s, %d' % (S(sLb), slot(j) + 1024 * y))
            a('s_add_u32 %s, %s, %d' % (S(sTmp), S(sA), (16 * (j % 4) + 4 * y) * 1152))
            a('buffer_load_dwordx4 %s, s[8:11], %s offen %s lds' % (V(vD + y % 2), S(sTmp), wflags))
    def held(j): return vWb + 4 * (j % 2) if j < 8 else vX + 4 * (j - 8)
    for j in range(D): dma(j)
    for j in range(32):
        a('s_waitcnt vmcnt(%d) lgkmcnt(0)' % (4 * min(D - 1, 31 - j)))
        if j + D < 32: dma(j + D)
        if 1 <= j <= 8: a('ds_write_b128 %s, %s offset:%d' % (V(vWa), V(held(j - 1), 4), 1024 * (j - 1)))
        for ct in range(4):
            for z in range(2):
                dst = wreg(j, ct, z) if ct < 3 else V(held(j) + 2 * z, 2)
                a('ds_read_b64_tr_b16 %s, %s offset:%d' % (dst, V(vR + ct), slot(j) + 512 * z))
    a('s_waitcnt lgkmcnt(0)')
    for j in range(8, 32): a('ds_write_b128 %s, %s offset:%d' % (V(vWa), V(held(j), 4), 1024 * j))
    a('s_waitcnt lgkmcnt(0)')

def ostream(a, flag_off, fcnt, wflags='', pre=None, stamp=None, slp=4, oflags='', D=6):
    st = stamp or (lambda a, i: None)
    a('v_and_b32 v15, 63, v0'); a('v_lshlrev_b32 %s, 4, v15' % V(vL16))
    a('v_and_b32 %s, %s, v15' % (V(vFa), fcnt)); a('v_lshlrev_b32 %s, 2, %s' % (V(vFa), V(vFa)))
    a('v_lshrrev_b32 v14, 4, v15'); a('v_min_u32 v14, 1, v14'); a('v_lshl_or_b32 %s, v14, 28, %s' % (V(vFa), V(vFa)))
    a('s_add_u32 %s, %s, %s' % (S(sRot), S(sCs), S(sRot0))); a('s_and_b32 %s, %s, 7' % (S(sRot), S(sRot)))
    a('s_mov_b32 %s, 0x%x' % (S(sSpin), SPIN))
    a('s_mul_i32 %s, s4, %d' % (S(sLb), WAVE))
    a('v_add_u32 %s, %s, %s' % (V(vWa), S(sLb), V(vL16)))
    load_weights(a, wflags, D)
    a('v_lshrrev_b32 v13, 2, v15'); a('v_and_b32 v14, 3, v15')
    a('s_lshr_b32 %s, s4, 1' % S(sTmp)); a('s_mul_i32 %s, %s, %d' % (S(sTmp), S(sTmp), 16 * 2304))
    a('s_and_b32 %s, s4, 1' % S(sA)); a('s_lshl_b32 %s, %s, 6' % (S(sA), S(sA))); a('s_add_u32 %s, %s, %s' % (S(sTmp), S(sTmp), S(sA)))
    a('s_add_u32 %s, %s, %s' % (S(sOcol), S(sOcol), S(sTmp)))
    a('v_mul_u32_u24 %s, 2304, v13' % V(vOa)); a('v_lshl_add_u32 %s, v14, 4, %s' % (V(vOa), V(vOa)))
    a('v_lshl_add_u32 v13, v14, 2, v13'); a('v_and_b32 v13, 15, v13'); a('v_lshlrev_b32 v13, 4, v13')
    a('s_lshl_b32 %s, s4, 11' % S(sTmp))
    a('v_lshl_add_u32 v12, v14, 9, v13'); a('v_add_u32 v12, %s, v12' % S(sTmp))
    a('v_lshrrev_b32 v13, 5, v15'); a('v_lshl_add_u32 v13, v13, 2, v15'); a('v_and_b32 v13, 15, v13')
    a('v_and_or_b32 v13, v15, 48, v13'); a('v_lshlrev_b32 v13, 4, v13')
    a('v_xor_b32 v14, 0x80, v13')
    a('v_add_u32 %s, %s, v14' % (V(vW2 + 1), S(sLb))); a('v_add_u32 %s, %s, v13' % (V(vW2), S(sLb)))
    a('v_add_u32 %s, %d, v12' % (V(vRa), 32768)); a('v_add_u32 %s, %d, v12' % (V(vRb), 32768 + 2 * WAVE))
    a('s_lshl_b32 %s, %s, 7' % (S(sTmp), S(sCs))); a('s_add_u32 %s, %s, %s' % (S(sOcol), S(sOcol), S(sTmp)))
    a('s_lshl_b32 %s, s4, 16' % S(sTmp)); a('s_add_u32 %s, %s, %s' % (S(sCtx), S(sCtx), S(sTmp)))
    a('s_mov_b32 %s, %s' % (S(sTn), S(sT0)))
    a('s_mov_b32 %s, 0' % S(sCnt))
    if pre: pre(a)
    st(a, 6)
    FL = 'buffer_load_dword %s, %s, %s, %s offen sc1' % (V(vFl), V(vFa), WS, S(sFo))
    CK = ['v_cmp_gt_u32 vcc, %s, %s' % (S(sNeed), V(vFl)), 's_and_b32 %s, vcc_lo, 0xffff' % S(sHh)]
    def spin(L, Lok):
        a(L + ':'); a(FL)
        a('s_waitcnt vmcnt(0)')
        a(CK)
        a('s_cbranch_scc0 ' + Lok)
        a('s_sleep %d' % slp)
        a('s_sub_u32 %s, %s, 1' % (S(sSpin), S(sSpin))); a('s_cbranch_scc0 ' + L)
        a('s_endpgm')
    def head_off(hh):
        return ['s_add_u32 %s, %s, %d' % (S(sHh), S(sRot), hh), 's_and_b32 %s, %s, 7' % (S(sHh), S(sHh)),
                's_lshl_b32 %s, %s, 13' % (S(sHh), S(sHh)), 's_add_u32 %s, %s, %s' % (S(sA), S(sNb), S(sHh)),
                's_add_u32 %s, %s, 4096' % (S(sB), S(sA))]
    def xload(j, tt):
        b = 2 * (j % 4) + tt
        return 'buffer_load_dwordx4 %s, %s, %s, %s offen offset:%d sc1' % (V(vX + 8 * (j % 8) + 4 * tt, 4), V(vL16), WS, S(sB if b >= 4 else sA), 1024 * (b % 4))
    def wread(j): return 'ds_read_b128 %s, %s offset:%d' % (V(vWb + 4 * (j % 4), 4), V(vWa), 1024 * (j % 32))
    NB = ['s_lshl_b32 %s, %s, 18' % (S(sNb), S(sTn)), 's_add_u32 %s, %s, %s' % (S(sNb), S(sNb), S(sCtx))]
    L0 = a.lab('os0'); L0k = a.lab('os0k')
    Lloop = a.lab('osl'); Lw = a.lab('osw'); Lend = a.lab('ose')
    a(flag_off(sFo, sTn))
    a(wread(0)); a(wread(1))
    spin(L0, L0k)
    a(L0k + ':')
    a(NB)
    for j in range(8):
        if j % 4 == 0: a(head_off(j // 4))
        a(xload(j, 0)); a(xload(j, 1))
    def kstep(j, sal, loads=True):
        a('s_waitcnt vmcnt(%d) lgkmcnt(1)' % (14 if loads else 2 * (31 - j)))
        for tt in range(2):
            for ct in range(4):
                d = V(vAcc + 16 * tt + 4 * ct, 4)
                w = wreg(j, ct) if ct < 3 else V(vWb + 4 * (j % 4), 4)
                a('v_mfma_f32_16x16x32_bf16 %s, %s, %s, %s' % (d, w, V(vX + 8 * (j % 8) + 4 * tt, 4), d if j else '0'))
                if ct == 3:
                    if loads: a(xload(j + 8, tt))
                elif tt == 0: a(sal[2 * ct:2 * ct + 2])
                elif ct == 0: a(wread(j + 2))
    def reduce():
        for t in range(8): a('ds_write_b128 %s, %s offset:%d' % (V(vW2 + t % 2), V(vAcc + 4 * t, 4), 32768 + 1024 * t))
        a('s_waitcnt lgkmcnt(0)')
        a('s_barrier')
        for w in range(4):
            for gg in range(2): a('ds_read_b128 %s, %s offset:%d' % (V(vAcc + 8 * w + 4 * gg, 4), V(vRb if w >= 2 else vRa), WAVE * (w % 2) + 256 * gg))
        for w in range(1, 4):
            a('s_waitcnt lgkmcnt(%d)' % (6 - 2 * w))
            for i in range(4): a('v_pk_add_f32 %s, %s, %s' % (V(vAcc + 2 * i, 2), V(vAcc + 2 * i, 2), V(vAcc + 8 * w + 2 * i, 2)))
        for i in range(4): a('v_cvt_pk_bf16_f32 %s, %s, %s' % (V(vPk + i), V(vAcc + 2 * i), V(vAcc + 2 * i + 1)))
        a('buffer_store_dwordx4 %s, %s, s[24:27], %s offen %s' % (V(vPk, 4), V(vOa), S(sOo), oflags))
    a('.p2align 3'); a(Lloop + ':')
    for j in range(32):
        sal = []
        if j == 1:
            sal = ['s_mov_b32 %s, %s' % (S(sT), S(sTn)), 's_add_u32 %s, %s, 1' % (S(sCnt), S(sCnt)), 's_cmp_lt_u32 %s, %s' % (S(sCnt), S(sN)),
                   's_cselect_b32 %s, %s, 0' % (S(sTmp), S(sDT)), 's_xor_b32 %s, %s, %s' % (S(sDT), S(sDT), S(sDX)),
                   's_add_u32 %s, %s, %s' % (S(sTn), S(sTn), S(sTmp))]
        if j == 2: sal = flag_off(sFo, sTn)
        if j == 3: sal = ['s_mul_i32 %s, %s, %d' % (S(sOo), S(sT), 32 * 2304), 's_add_u32 %s, %s, %s' % (S(sOo), S(sOo), S(sOcol)),
                          's_cmp_lt_u32 %s, %s' % (S(sCnt), S(sN)), 's_cselect_b32 %s, %s, -1' % (S(sNeed), S(sNeed))]
        if j == 10: sal = ['s_barrier']
        if j == 13: sal = [FL]
        if j == 22: sal = CK[:1]
        if j == 23: sal = NB + CK[1:]
        if j % 4 == 0: sal = head_off((j // 4 + 2) % 8)
        kstep(j, sal)
        if j == 23: a('s_cbranch_scc1 ' + Lw)
    a('s_nop 0')
    reduce()
    a('s_branch ' + Lloop)
    a(Lw + ':')
    for j in range(24, 32): kstep(j, [], False)
    a('s_cmp_lt_u32 %s, %s' % (S(sCnt), S(sN)))
    reduce()
    a('s_cbranch_scc1 ' + L0)
```

```python
from common import *

sW0, sW1, sO0, sO1, sN, sT0 = 32, 33, 34, 35, 36, 37
sTc, sTp1, sTp2, sCnt, sSlotR, sSlotW, sTmp, sXo, sSt0, sSt1, sM0, sScale = 39, 40, 41, 42, 43, 44, 45, 46, 47, 48, 49, 50

vXb, vXr, vWr = 4, 6, 8
vOffX, vOffW, vOffO, vFlagOff, vFlagVal = 10, 11, 12, 13, 14
vPK = 16
vXF = 32
vACC = 64
def wreg(m, tau, j, NK, z=None):
    i = ((m * 2 + tau) * NK + j) * 4
    i = 256 + i if i < 256 else 224 + i - 256
    return U(i, 4) if z is None else U(i + 2 * z, 2)
def acc(P, m, tau, tt): return vACC + 32 * P + 16 * m + 8 * tau + 4 * tt

def setup_lanes(a, KD):
    PX = KD * 2
    XS = 32 * PX
    a('v_and_b32 v1, 63, v0')
    a('v_lshrrev_b32 v2, 3, v0')
    a('v_mul_u32_u24 %s, %d, v2' % (V(vOffX), PX))
    a('v_lshrrev_b32 v2, 4, v0')
    a('v_xor_b32 v2, v2, v0')
    a('v_and_b32 v2, 7, v2')
    a('v_lshl_add_u32 %s, v2, 4, %s' % (V(vOffX), V(vOffX)))
    a('v_lshrrev_b32 v2, 4, v1')
    a('v_bfe_u32 v3, v1, 1, 3')
    a('v_xor_b32 v2, v2, v3')
    a('v_and_b32 v3, 15, v1')
    a('v_lshlrev_b32 v3, 7, v3')
    a('v_lshl_add_u32 %s, v2, 4, v3' % V(vXb))
    a('v_xor_b32 %s, 64, %s' % (V(vXb + 1), V(vXb)))
    a('v_lshrrev_b32 v2, 4, v0')
    a('v_lshlrev_b32 %s, 13, v2' % V(vOffW))
    a('v_lshrrev_b32 v2, 7, v0')
    a('v_lshrrev_b32 v3, 4, v1')
    a('v_lshl_add_u32 v3, v2, 2, v3')
    a('v_bfe_u32 v2, v1, 1, 3')
    a('v_xor_b32 v2, v2, v3')
    a('v_lshl_add_u32 %s, v2, 5, %s' % (V(vOffW), V(vOffW)))
    a('v_and_b32 v2, 1, v1')
    a('v_lshl_add_u32 %s, v2, 4, %s' % (V(vOffW), V(vOffW)))
    a('v_bfe_u32 v2, v1, 2, 3')
    a('v_xor_b32 v3, s4, v2')
    a('v_lshlrev_b32 v3, 5, v3')
    a('v_and_b32 v2, 3, v2')
    a('v_lshl_add_u32 v3, v2, 8, v3')
    a('v_lshrrev_b32 v2, 4, v1')
    a('v_lshl_add_u32 v3, v2, 11, v3')
    a('v_and_b32 v2, 3, v1')
    a('v_lshl_add_u32 v3, v2, 3, v3')
    a('v_add_u32 %s, %d, v3' % (V(vWr), 2 * XS))
    a('v_xor_b32 v3, 0x80, v3')
    a('v_add_u32 %s, %d, v3' % (V(vWr + 1), 2 * XS))
    a('s_lshl_b32 %s, s4, 11' % S(sTmp))
    a('v_lshl_add_u32 %s, v1, 4, %s' % (V(vOffO), S(sTmp)))

def x_dma(KD, xflags):
    return [('s_add_u32 m0, %s, %d' % (S(sM0), 3968 * kb),
             'buffer_load_dwordx4 %s, s[8:11], %s offen offset:%d %s lds' % (V(vOffX), S(sXo), 128 * kb, xflags))
            for kb in range(KD // 64)]

def default_next(dt):
    def f(dst, src): return ['s_add_u32 %s, %s, %d' % (S(dst), S(src), dt)]
    return f

def pack2(t0, t1, pk, scale=None, zipped=False):
    ins = []
    if scale:
        for t in (t0, t1):
            for i in range(4): ins.append('v_mul_f32 %s, %s, %s' % (V(t + i), scale, V(t + i)))
    if zipped: return ins + ['v_cvt_pk_bf16_f32 %s, %s, %s' % (V(pk + j), V(t0 + j), V(t1 + j)) for j in range(4)]
    for j, (t, hf) in enumerate([(t0, 0), (t1, 0), (t0, 1), (t1, 1)]):
        ins.append('v_cvt_pk_bf16_f32 %s, %s, %s' % (V(pk + j), V(t + 2 * hf), V(t + 2 * hf + 1)))
    return ins

def load_weights(a, KD, wflags):
    NK = KD // 32; XS = 64 * KD; STG = 2 * XS
    def dma(u):
        o = []
        for m in range(2):
            for pp in range(2):
                o.append('s_add_u32 m0, %s, %d' % (S(sM0), STG + (u % 4) * 16384 + m * 8192 + pp * 4096))
                o.append('s_add_u32 %s, %s, %d' % (S(sTmp), S(sW0 + m), (32 * u + 16 * pp) * 8192))
                o.append('buffer_load_dwordx4 %s, %s, %s offen %s lds' % (V(vOffW), S(12 + 4 * m, 4), S(sTmp), wflags))
        return o
    a('s_lshl_b32 %s, s4, 10' % S(sM0))
    for u in range(3): a(dma(u))
    for u in range(NK):
        left = min(2, NK - 1 - u)
        a('s_waitcnt vmcnt(%d) lgkmcnt(0)' % (4 * left))
        a('s_barrier')
        if u + 3 < NK: a(dma(u + 3))
        for m in range(2):
            for tau in range(2):
                for z in range(2):
                    a('ds_read_b64_tr_b16 %s, %s offset:%d' % (wreg(m, tau, u, NK, z), V(vWr + tau),
                      (u % 4) * 16384 + m * 8192 + z * 1024))

def prologue(a, KD, nxt, xflags, wflags):
    XS = 64 * KD
    setup_lanes(a, KD)
    a('s_mov_b32 %s, %s' % (S(sTc), S(sT0)))
    a(nxt(sTp1, sTc))
    a('s_min_u32 %s, %s, 63' % (S(sTp1), S(sTp1)))
    for slot, t in ((0, sTc), (1, sTp1)):
        a('s_lshl_b32 %s, s4, 10' % S(sM0))
        if slot: a('s_add_u32 %s, %s, %d' % (S(sM0), S(sM0), XS))
        a('s_mul_i32 %s, %s, %d' % (S(sXo), S(t), XS))
        for s_, d in x_dma(KD, xflags): a([s_, 's_nop 0', d])
    load_weights(a, KD, wflags)
    a('s_mov_b32 %s, 0x%x' % (S(sScale), QSCALE))
    a('s_mov_b32 %s, 0' % S(sCnt))
    a('s_mov_b32 %s, 0' % S(sSlotR))
    a('s_mov_b32 %s, %d' % (S(sSlotW), 2 * XS))
    for s in range(2): a('v_mov_b32 %s, %s' % (V(vXr + s), V(vXb + s)))

def xfrag(J, tt): return V(vXF + 8 * (J % 4) + 4 * tt, 4)
def xread(J, tt, NK):
    j = J % NK
    return 'ds_read_b128 %s, %s offset:%d' % (xfrag(J, tt), V(vXr + j % 2), 4096 * (j // 2) + 2048 * tt)

def tile_mfmas(P, KD, mode, accset=None):
    NK = KD // 32
    main = []
    for j in range(NK):
        for tt in range(2):
            for m in range(2):
                for tau in range(2):
                    d = V(acc(P if accset is None else accset, m, tau, tt), 4)
                    c = d if j else '0'
                    w = wreg(m, tau, j, NK); xf = xfrag(P * NK + j, tt)
                    if m == 1 and mode == 'kv': main.append('v_mfma_f32_16x16x32_bf16 %s, %s, %s, %s' % (d, xf, w, c))
                    else: main.append('v_mfma_f32_16x16x32_bf16 %s, %s, %s, %s' % (d, w, xf, c))
    return main

def stream_fill(put, P, KD, nxt, xflags, vm, after_bar=None, d0=1):
    NK = KD // 32; XS = 64 * KD
    for j in range(NK):
        if j == NK - 2:
            put(8 * j, ['s_waitcnt vmcnt(%d)' % vm, 's_barrier'])
        put(8 * j, xread(P * NK + j + 2, 0, NK))
        put(8 * j + 1, xread(P * NK + j + 2, 1, NK))
        if j == NK - 2 and after_bar: put(8 * j + 2, after_bar)
        put(8 * j + 7, 's_waitcnt lgkmcnt(2)')
    put(2, nxt(sTp2, sTp1))
    put(3, ['s_add_u32 %s, %s, 2' % (S(sTmp), S(sCnt)), 's_mul_i32 %s, %s, %d' % (S(sXo), S(sTp2), XS)])
    put(4, ['s_cmp_lt_u32 %s, %s' % (S(sTmp), S(sN)), 's_cselect_b32 %s, %s, 0' % (S(sXo), S(sXo))])
    put(5, ['s_lshl_b32 %s, s4, 10' % S(sM0), 's_add_u32 %s, %s, %s' % (S(sM0), S(sM0), S(sSlotW))])
    for kb, (s_, d) in enumerate(x_dma(KD, xflags)):
        b = 8 * (d0 + kb // 2) + 2 + 2 * (kb % 2)
        put(b, s_); put(b + 1, d)
    b = 8 * (NK - 5)
    put(b + 2, ['s_add_u32 %s, %s, %d' % (S(sSlotR), S(sSlotR), XS), 's_cmp_eq_u32 %s, %d' % (S(sSlotR), 4 * XS)])
    put(b + 3, ['s_cselect_b32 %s, 0, %s' % (S(sSlotR), S(sSlotR)), 's_add_u32 %s, %s, %d' % (S(sSlotW), S(sSlotW), XS)])
    put(b + 4, ['s_cmp_eq_u32 %s, %d' % (S(sSlotW), 4 * XS), 's_cselect_b32 %s, 0, %s' % (S(sSlotW), S(sSlotW))])
    for s in range(2):
        put(8 * (NK - 4 + s) + 2, 'v_add_u32 %s, %s, %s' % (V(vXr + s), S(sSlotR), V(vXb + s)))

def spread(put, fill, ins, lo, hi, cap=2):
    free = [g for g in range(lo, hi) for _ in range(max(0, cap - len(fill.get(g, []))))]
    assert len(free) >= len(ins), (len(free), len(ins))
    for i, x in enumerate(ins): put(free[(i * len(free)) // len(ins)], x)

def pstream(a, KD, mode, ostride, nxt, flag=True, xflags='', wflags='', stflags='sc1', pre_loop=None, dbg='', xpf=0, soon=0, kscale=0, mark=None):
    NK = KD // 32; ND = KD // 64
    prologue(a, KD, nxt, xflags, wflags)
    if pre_loop: pre_loop(a)
    scale = S(sScale) if mode == 'qq' else None
    a('s_lshl_b32 %s, s2, 13' % S(sSt0))
    a('s_add_u32 %s, %s, 0x%x' % (S(sSt0), S(sSt0), WS_DUMP))
    a('s_mov_b32 %s, %s' % (S(sSt1), S(sSt0)))
    a('v_mov_b32 %s, 0' % V(vFlagVal))
    a('s_waitcnt vmcnt(0) lgkmcnt(0)')
    a('s_barrier')
    for J in range(2):
        for tt in range(2): a(xread(J, tt, NK))
    if isinstance(xpf, tuple):
        G, sidx, ahead = xpf
        n = 64 * KD // 128 // G
        a('s_mul_i32 %s, %s, %d' % (S(sTmp), sidx, n * 128))
        a('v_lshl_add_u32 v1, v0, 7, %s' % S(sTmp)); a('v_add_u32 v1, %d, v1' % (ahead * 64 * KD))
        a('v_mov_b32 v2, 0x7ff00000'); a('v_cmp_gt_u32 vcc, %d, v0' % n); a('s_nop 1'); a('v_cndmask_b32 v1, v2, v1, vcc')
    elif xpf:
        a('v_lshlrev_b32 v1, 12, v0'); a('s_lshl_b32 %s, s6, 7' % S(sTmp))
        for i in range((2048 * KD * 2 + 0xfffff) >> 20):
            a('buffer_load_dword v15, v1, s[8:11], %s offen %s' % (S(sTmp), xflags))
            a('v_add_u32 v1, 0x100000, v1')
    a('s_waitcnt lgkmcnt(2)')
    def stores(P):
        ins = []
        for m in range(2):
            for b in range(2):
                if m == 1 and mode == 'kv': t0, t1 = acc(P, m, b, 0), acc(P, m, b, 1)
                else: t0, t1 = acc(P, m, 0, b), acc(P, m, 1, b)
                pk = vPK + 8 * m + 4 * b
                ins += pack2(t0, t1, pk, S(sScale) if (kscale and m == 0) else scale, kscale and m == 0)
                ins.append('buffer_store_dwordx4 %s, %s, s[20:23], %s offen offset:%d %s' %
                           (V(pk, 4), V(vOffO), S(sSt0 + m), 1024 * b, stflags))
        if mark: ins.append('buffer_store_dwordx4 v[128:131], v132, s[20:23], s51 offen sc1')
        return ins
    if mark:
        for i in range(4): a('v_mov_b32 v%d, -1' % (128 + i))
        a('v_lshlrev_b32 v132, 4, v0'); a('s_mov_b32 s51, %s' % S(sSt0))
    Lloop = a.lab('ps_loop')
    a(Lloop + ':')
    for P in range(2):
        fill = {}
        def put(i, x): fill.setdefault(i, []).extend(x if isinstance(x, list) else [x])
        main = tile_mfmas(P, KD, mode)
        fl = 'buffer_store_dword %s, %s, s[20:23], 0 offen sc1' % (V(vFlagVal), V(vFlagOff)) if flag is True else None
        roll = isinstance(xpf, tuple)
        stream_fill(put, P, KD, nxt, xflags, (ND if soon else ND + 4 + bool(mark)) + roll, fl, 5 if soon else 1)
        if roll:
            g = 8 * ((5 if soon else 1) + ND // 2) + 5
            put(g - 1, 'v_add_u32 v2, %s, v1' % S(sXo)); put(g, 'buffer_load_dword v15, v2, s[8:11], 0 offen %s' % xflags)
        e = 8 * (NK - 1)
        put(e + 2, ['s_mul_i32 %s, %s, %d' % (S(sTmp), S(sTc), ostride), 's_add_u32 %s, %s, %s' % (S(sSt0), S(sO0), S(sTmp))])
        put(e + 3, ['s_add_u32 %s, %s, %s' % (S(sSt1), S(sO1), S(sTmp)), ('v_add_u32 %s, 1, %s' % (V(vFlagVal), V(vFlagVal))) if soon else 'v_mov_b32 %s, %s' % (V(vFlagVal), S(sCnt))])
        if mark: put(e - 2, ['s_lshl_b32 s51, %s, 17' % S(sTc), 's_add_u32 s51, s51, %s' % mark])
        put(e + 4, ['s_mov_b32 %s, %s' % (S(sTc), S(sTp1)), 's_mov_b32 %s, %s' % (S(sTp1), S(sTp2))])
        put(e + 5, ['s_add_u32 %s, %s, 1' % (S(sCnt), S(sCnt))] + (['s_cmp_lt_u32 %s, %s' % (S(sCnt), S(sN))] if P else []))
        if soon: spread(put, fill, stores(1 - P), 6, 40, cap=2 if kscale else 1)
        else: spread(put, fill, stores(1 - P), 8 * (2 + ND // 2), 8 * (NK - 2), cap=1 if mode == 'kv' and not kscale else 2)
        body = weave(main, fill)
        if 'nost' in dbg: body = [x if 'buffer_store_dwordx4' not in x else 's_nop 0' for x in body]
        if 'x0' in dbg: body = [x if not x.startswith('s_cselect_b32 s46') else 's_mov_b32 s46, 0' for x in body]
        if 'st0' in dbg: body = [x if not x.startswith('s_mul_i32 s45') else 's_mov_b32 s45, 0' for x in body]
        if 'nodma' in dbg: body = [x if ' lds' not in x else 's_nop 0' for x in body]
        a(body)
    a('s_cbranch_scc1 ' + Lloop)
    a('s_nop 7')
    a(stores(1))
    a('s_waitcnt vmcnt(0) lgkmcnt(0)')
    a('s_barrier')
    if flag:
        a('v_mov_b32 %s, %s' % (V(vFlagVal), S(sN)))
        a('buffer_store_dword %s, %s, s[20:23], 0 offen sc1' % (V(vFlagVal), V(vFlagOff)))
```

```python
from common import *
import pstream as P
from pstream import sTc, sTp1, sTp2, sCnt, sN, sTmp, sScale
WS = 's[20:23]'
KD = 576; NK = 18; ND = 9
L_Q = 4 * 64 * KD
sHm, sKV, sKV2, sKm, sCx, sFch, sSpin, sFq, sNeed, sKVb, sKmb, sCxb, sOk = range(52, 65)
vL16, vQw, vQr, vIdx, vZ, vFv, vFo = 1, 2, 3, 12, 13, 14, 15
vPK = 16
vF0 = 8
vTo = 11
vO, vQ, vS, vSm = 64, 96, 112, 120
vL = 124
vK, vV, vM, vC, vB = 128, 160, 192, 208, 216
vOne = 220
MF = 'v_mfma_f32_16x16x32_bf16 %s, %s, %s, %s'

KML = ['buffer_load_dwordx4 %s, %s, %s, %s offen offset:%d sc1' % (V(vM + 4 * i, 4), V(vL16), WS, S(sKm), 1024 * i) for i in range(4)]

TOUCH = 'buffer_load_dword %s, %s, %s, %s offen sc1' % (V(vPK + 1), V(vTo), WS, S(sCx))

FLST = 'buffer_store_dword %s, %s, %s, %s offen sc1' % (V(vFv), V(vF0), WS, S(sFq))

def cross_max(x, t):
    return ['v_mov_b32 %s, %s' % (V(t), V(x)), 's_nop 1', 'v_permlane16_swap_b32 %s, %s' % (V(x), V(t)),
            'v_max_f32 %s, %s, %s' % (V(x), V(x), V(t)), 'v_mov_b32 %s, %s' % (V(t), V(x)), 's_nop 1',
            'v_permlane32_swap_b32 %s, %s' % (V(x), V(t)), 'v_max_f32 %s, %s, %s' % (V(x), V(x), V(t))]

SLP = [2]
def spin(a, so, need, t):
    L = a.lab('qs'); Lok = a.lab('qsk')
    a(L + ':')
    a('buffer_load_dword %s, %s, %s, %s offen sc1' % (V(t), V(vFo), WS, S(so)))
    a('s_waitcnt vmcnt(0)')
    a('v_cmp_le_u32 vcc, %s, %s' % (need, V(t)))
    a('s_cbranch_vccnz ' + Lok)
    a('s_sleep %d' % SLP[0])
    a('s_sub_u32 %s, %s, 1' % (S(sSpin), S(sSpin))); a('s_cbranch_scc0 ' + L)
    a('s_endpgm')
    a(Lok + ':')

def attention(a):
    a('s_nop 7')
    for m in range(2):
        for tt in range(2):
            pk = vPK + 8 * m + 4 * tt
            a(P.pack2(P.acc(0, m, 0, tt), P.acc(0, m, 1, tt), pk, None, True))
            a('ds_write_b128 %s, %s offset:%d' % (V(vQw), V(pk, 4), 8192 * m + 1024 * tt))
    a('v_mov_b64 %s, 0' % V(vSm, 2)); a('v_mov_b64 %s, 0' % V(vSm + 2, 2))
    a('s_waitcnt lgkmcnt(0)')
    a('s_barrier')
    for k in range(4): a('ds_read_b128 %s, %s offset:%d' % (V(vQ + 4 * k, 4), V(vQr), 2048 * k))
    Lpre = a.lab('qpre')
    a('s_cmp_lg_u32 %s, 0' % S(sOk)); a('s_cbranch_scc1 ' + Lpre)
    spin(a, sFch, S(sNeed), vPK)
    a(KML)
    a(Lpre + ':')
    a('s_waitcnt vmcnt(4) lgkmcnt(0)')
    for k in range(4):
        for tau in range(2):
            d = V(vS + 4 * tau, 4)
            a(MF % (d, V(vK + 4 * (2 * k + tau), 4), V(vQ + 4 * k, 4), d if k else V(vC + 4 * tau, 4)))
    T = vPK + 8
    a('s_nop 7')
    a('v_max3_f32 %s, %s, %s, %s' % (V(T), V(vS), V(vS + 1), V(vS + 2)))
    a('v_max3_f32 %s, %s, %s, %s' % (V(T), V(T), V(vS + 3), V(vS + 4)))
    a('v_max3_f32 %s, %s, %s, %s' % (V(T), V(T), V(vS + 5), V(vS + 6)))
    a('v_max_f32 %s, %s, %s' % (V(T), V(T), V(vS + 7)))
    for tp in range(2):
        a('s_waitcnt vmcnt(%d)' % (2 - 2 * tp))
        for z in range(2): a('v_mov_b64 %s, %s' % (V(vPK + 4 * tp + 2 * z, 2), V(vM + 4 * (2 * tp + z), 2)))
        a('s_nop 1')
        a('v_smfmac_f32_16x16x64_bf16 %s, %s, %s, %s' % (V(vSm, 4), V(vPK + 4 * tp, 4), V(vQ + 8 * tp, 8), V(vIdx)))
    a('s_nop 7')
    for i in range(2): a('v_add_f32 %s, %s, %s' % (V(vSm + i), V(vSm + i), V(vSm + 2 + i)))
    for i in range(2): a('v_mul_f32 %s, %s, %s' % (V(vSm + i), S(sScale), V(vSm + i)))
    a('v_max3_f32 %s, %s, %s, %s' % (V(T), V(T), V(vSm), V(vSm + 1)))
    a(cross_max(T, T + 1))
    vals = list(range(vS, vS + 10))
    for x in vals: a('v_sub_f32 %s, %s, %s' % (V(x), V(x), V(T)))
    for x in vals[8:] + vals[:8]: a('v_exp_f32 %s, %s' % (V(x), V(x)))
    Px = T + 4
    a('v_cvt_pk_bf16_f32 %s, %s, %s' % (V(vB), V(vSm), V(vSm + 1)))
    a('v_cvt_pk_bf16_f32 %s, %s, %s' % (V(vB + 3), V(vSm), V(vSm + 1)))
    for j, o in enumerate((0, 4, 2, 6)): a('v_cvt_pk_bf16_f32 %s, %s, %s' % (V(Px + j), V(vS + o), V(vS + o + 1)))
    M16 = 'v_mfma_f32_16x16x16_bf16 %s, %s, %s, 0'
    a(M16 % (V(vL, 4), V(vOne, 2), V(vB, 2)))
    for f in range(8): a(M16 % (V(vO + 4 * f, 4), V(vM + 4 * (f // 2) + 2, 2), V(vB + 2 * (f % 2), 2)))
    a(MF % (V(vL, 4), V(vOne, 4), V(Px, 4), V(vL, 4)))
    for f in range(8): a(MF % (V(vO + 4 * f, 4), V(vV + 4 * f, 4), V(Px, 4), V(vO + 4 * f, 4)))
    a('v_rcp_f32 %s, %s' % (V(vL), V(vL)))
    a('s_add_u32 %s, %s, 4096' % (S(sTmp), S(sCx)))
    for k in range(4):
        x = vO + 8 * k; pk = vQ + 4 * k
        for i in range(8): a('v_mul_f32 %s, %s, %s' % (V(x + i), V(x + i), V(vL)))
        for j, o in enumerate((0, 4, 2, 6)): a('v_cvt_pk_bf16_f32 %s, %s, %s' % (V(pk + j), V(x + o), V(x + o + 1)))
        a('buffer_store_dwordx4 %s, %s, %s, %s offen offset:%d sc1' % (V(pk, 4), V(vL16), WS, S(sTmp if k >= 2 else sCx), 2048 * (k % 2)))

def qb(a, nxt, xflags='', wflags='', pre=None, stamp=None):
    st = stamp or (lambda a, i: None)
    P.prologue(a, KD, nxt, xflags, wflags)
    if pre: pre(a)
    a('v_and_b32 v17, 63, v0'); a('v_lshlrev_b32 %s, 4, v17' % V(vL16))
    a('s_lshl_b32 %s, s4, 11' % S(sTmp)); a('s_add_u32 %s, %s, %d' % (S(sTmp), S(sTmp), L_Q))
    a('v_add_u32 %s, %s, %s' % (V(vQw), S(sTmp), V(vL16)))
    a('s_lshr_b32 %s, s4, 1' % S(sKV)); a('s_and_b32 %s, s4, 1' % S(sKV2))
    a('s_add_u32 %s, %s, %s' % (S(sHm), S(sHm), S(sKV)))
    a('s_lshl_b32 %s, %s, 13' % (S(sKV), S(sKV))); a('s_lshl_b32 %s, %s, 10' % (S(sKV2), S(sKV2)))
    a('s_add_u32 %s, %s, %s' % (S(sTmp), S(sKV), S(sKV2))); a('s_add_u32 %s, %s, %d' % (S(sTmp), S(sTmp), L_Q))
    a('v_add_u32 %s, %s, %s' % (V(vQr), S(sTmp), V(vL16)))
    a('s_lshl_b32 %s, %s, 13' % (S(sCxb), S(sHm))); a('s_add_u32 %s, %s, %s' % (S(sCxb), S(sCxb), S(sKV2)))
    a('s_add_u32 %s, %s, 0x%x' % (S(sCxb), S(sCxb), WS_CTXB))
    a('s_lshl_b32 %s, %s, 14' % (S(sKVb), S(sHm))); a('s_add_u32 %s, %s, 0x%x' % (S(sKVb), S(sKVb), WS_KVB))
    a('s_lshl_b32 %s, %s, 12' % (S(sKmb), S(sHm))); a('s_add_u32 %s, %s, 0x%x' % (S(sKmb), S(sKmb), WS_KVM))
    a('s_lshl_b32 %s, %s, 7' % (S(sFch), S(sHm))); a('s_add_u32 %s, %s, 0x%x' % (S(sFch), S(sFch), FLAG(FL_CH)))
    a('s_waitcnt lgkmcnt(0)')
    a('v_min_u32 %s, 1, v0' % V(vF0)); a('v_lshlrev_b32 %s, 28, %s' % (V(vF0), V(vF0)))
    a('s_mov_b32 %s, 0x%x' % (S(sSpin), SPIN))
    a('v_mov_b32 %s, 0' % V(vZ)); a('v_mov_b32 %s, 0' % V(vFv))
    a('v_min_u32 %s, 1, v17' % V(vFo)); a('v_lshlrev_b32 %s, 28, %s' % (V(vFo), V(vFo)))
    a('v_bfe_u32 v18, v17, 3, 2'); a('v_and_b32 v19, 7, v17'); a('v_lshlrev_b32 v19, 7, v19'); a('v_lshl_add_u32 v18, v18, 11, v19')
    a('v_lshrrev_b32 v19, 5, v17'); a('v_lshl_or_b32 %s, v19, 28, v18' % V(vTo))
    a('s_mov_b32 %s, %s' % (S(sCx), S(sKVb)))
    a('v_mov_b32 v18, 0x44444444'); a('v_mov_b32 v19, 0xeeeeeeee')
    a('v_and_b32 v20, 2, v17'); a('v_cmp_eq_u32 vcc, 0, v20'); a('s_nop 1')
    a('v_cndmask_b32 %s, v19, v18, vcc' % V(vIdx))
    a('v_mov_b32 %s, 0' % V(vB + 1)); a('v_mov_b32 %s, 0' % V(vB + 2))
    for i in range(4): a('v_mov_b32 %s, 0x3f803f80' % V(vOne + i))
    a('v_and_b32 v18, 15, v17'); a('v_lshrrev_b32 v19, 4, v17'); a('v_lshlrev_b32 v19, 2, v19'); a('v_sub_u32 v18, v18, v19')
    a('s_lshr_b32 %s, %s, 6' % (S(sTmp), S(sKV2))); a('v_add_u32 v18, %s, v18' % S(sTmp))
    a('v_mov_b32 v19, 0xff800000')
    for tau in range(2):
        for r in range(4):
            a('v_cmp_le_i32 vcc, %d, v18' % (16 * tau + r)); a('s_nop 1')
            a('v_cndmask_b32 %s, v19, %s, vcc' % (V(vC + 4 * tau + r), V(vZ)))
    a('s_sub_u32 %s, %s, %d' % (S(sKV), S(sFch), FLAG(FL_CH) - FLAG(FL_PB))); a('s_add_u32 %s, %s, 1' % (S(sNeed), S(sTc)))
    spin(a, sKV, S(sNeed), vPK)
    st(a, 4)
    a('s_waitcnt vmcnt(0) lgkmcnt(0)')
    a('s_barrier')
    for J in range(2):
        for tt in range(2): a(P.xread(J, tt, NK))
    a('s_waitcnt lgkmcnt(2)')
    Lloop = a.lab('qb_loop'); Lout = a.lab('qb_out')
    a(Lloop + ':')
    for ph in range(2):
        fill = {}
        def put(i, x): fill.setdefault(i, []).extend(x if isinstance(x, list) else [x])
        main = [m.replace('XXX', '') for m in P.tile_mfmas(ph, KD, 'qq', accset=0)]
        P.stream_fill(put, ph, KD, nxt, xflags, ND + 19)
        put(6, ['s_lshl_b32 %s, %s, 19' % (S(sKV), S(sTc)), 's_add_u32 %s, %s, %s' % (S(sKV), S(sKV), S(sKVb))])
        put(14, ['s_lshl_b32 %s, %s, 17' % (S(sKm), S(sTc)), 's_add_u32 %s, %s, %s' % (S(sKm), S(sKm), S(sKmb))])
        put(54, ['s_lshl_b32 %s, %s, 18' % (S(sCx), S(sTc)), 's_add_u32 %s, %s, %s' % (S(sCx), S(sCx), S(sCxb))])
        put(30, 's_add_u32 %s, %s, 1' % (S(sNeed), S(sTc)))
        put(50, ['s_waitcnt vmcnt(%d)' % ND, TOUCH])
        put(51, ['s_barrier', FLST])
        for f in range(16):
            g = 8 * (7 + f // 2) + 2 + 2 * (f % 2)
            if f and f % 4 == 0: put(g - 4, 's_add_u32 %s, %s, 4096' % (S(sKV), S(sKV)))
            put(g, 'buffer_load_dwordx4 %s, %s, %s, %s offen offset:%d sc1' % (V(vK + 4 * f, 4), V(vL16), WS, S(sKV), 1024 * (f % 4)))
        Lsk = a.lab('qsk')
        put(52, 'buffer_load_dword %s, %s, %s, %s offen sc1' % (V(vPK), V(vFo), WS, S(sFch)))
        put(131, ['s_waitcnt vmcnt(16)', 'v_cmp_le_u32 vcc, %s, %s' % (S(sNeed), V(vPK))])
        put(133, ['s_and_b32 %s, vcc_lo, 1' % S(sOk), 's_cbranch_scc0 ' + Lsk] + KML + [Lsk + ':'])
        e = 8 * (NK - 1)
        put(e + 3, ['s_mov_b32 %s, %s' % (S(sTc), S(sTp1)), 's_mov_b32 %s, %s' % (S(sTp1), S(sTp2))])
        put(e + 4, ['s_add_u32 %s, %s, 1' % (S(sCnt), S(sCnt)), 'v_mov_b32 %s, %s' % (V(vFv), S(sCnt))])
        a(weave(main, fill))
        attention(a)
        a('s_cmp_lt_u32 %s, %s' % (S(sCnt), S(sN)))
        a(('s_cbranch_scc1 ' + Lloop) if ph else ('s_cbranch_scc0 ' + Lout))
    a(Lout + ':')
    a('s_waitcnt vmcnt(0)')
    a(TOUCH)
    a('s_barrier')
    a(FLST)
```

```python
import sys, os
from common import *
import pstream as P, chain as C, att as T, qb as Q, ostream as O, hazard

def gen(opt, name):
    a = Asm()
    diag = opt.get('diag')
    perm = [int(c) for c in str(opt.get('perm', 'p14023567'))[1:]]
    ROLE = sum(r << (4 * i) for i, r in enumerate(perm))
    def stamp(a, idx, v=20, who='x'):
        if not diag: return
        if diag == 2:
            slot = {(0, 'x'): 4, (1, 'c'): 6, (2, 'c'): 7, (7, 'c'): 8, (7, 'x'): 9, (1, 'x'): 10, (2, 'x'): 11, (5, 'x'): 12, (6, 'x'): 13}.get((idx, who))
            if slot is None: return
            a('s_load_dwordx2 s[80:81], s[0:1], 112'); a('s_memrealtime s[96:97]'); a('s_mov_b32 s82, 256'); a('s_mov_b32 s83, 0x20000'); a('s_waitcnt lgkmcnt(0)')
            a('v_mbcnt_lo_u32_b32 v%d, -1, s4' % (v + 2)); a('v_min_u32 v%d, 1, v%d' % (v + 2, v + 2)); a('v_lshlrev_b32 v%d, 28, v%d' % (v + 2, v + 2))
            a('v_mov_b32 v%d, s96' % v); a('v_not_b32 v%d, v%d' % (v + 1, v))
            a('buffer_atomic_umax v%d, v%d, s[80:83], 0 offen offset:%d' % (v, v + 2, 4 * slot))
            if idx == 0: a('buffer_atomic_umax v%d, v%d, s[80:83], 0 offen offset:%d' % (v + 1, v + 2, 4 * slot + 4))
            return
        a('s_memrealtime s[96:97]'); a('s_memtime s[98:99]'); a('s_waitcnt lgkmcnt(0)')
        a('v_mov_b32 v%d, s98' % v); a('v_mov_b32 v%d, s96' % (v + 1))
        a('s_lshl_b32 s96, s2, 6'); a('s_add_u32 s96, s96, %d' % (WS_STAMP + idx * 8))
        a('v_mov_b32 v%d, 0' % (v + 2))
        a('buffer_store_dwordx2 v[%d:%d], v%d, s[20:23], s96 offen' % (v, v + 1, v + 2))
    def probe(k):
        for i in range(opt.get(k, 0)): a('s_sleep 64')
    def far(cond, lab):
        a('s_cbranch_%s %s' % (cond, lab))
    def rho_check(a, v=20, loaded=False):
        L = a.lab('rh'); Lc = a.lab('rhc'); Lok = a.lab('rhk')
        if loaded: a('s_branch ' + Lc)
        a(L + ':')
        a(rho_load(v)); a('s_waitcnt vmcnt(0)')
        a(Lc + ':')
        a('v_readfirstlane_b32 s89, v%d' % v)
        a('s_cmp_eq_u32 s89, s88'); a('s_cbranch_scc1 ' + Lok)
        a('s_cmp_lg_u32 s89, 0'); a('s_cbranch_scc1 Lredo')
        a('s_sub_u32 s95, s95, 1'); a('s_cbranch_scc0 ' + L)
        a('s_endpgm')
        a(Lok + ':')
    def rho_load(v):
        return ['v_mbcnt_lo_u32_b32 v%d, -1, 0' % (v + 1), 'v_min_u32 v%d, 1, v%d' % (v + 1, v + 1), 'v_lshlrev_b32 v%d, 28, v%d' % (v + 1, v + 1),
                'buffer_load_dword v%d, v%d, s[28:31], 0 offen offset:4 sc1' % (v, v + 1)]
    def flags_ready(a, v=20, gate=False):
        L = a.lab('fr'); Lok = a.lab('frk')
        rho_check(a, v)
        a('s_cmp_lg_u32 s4, 0'); a('s_cbranch_scc1 ' + Lok)
        a('v_min_u32 v%d, 1, v0' % (v + 1)); a('v_lshlrev_b32 v%d, 28, v%d' % (v + 1, v + 1))
        a(L + ':')
        if gate == 2:
            a('s_cmp_eq_u32 s5, 2'); a('s_cselect_b32 s7, 0, 0x80')
            a('buffer_load_dword v%d, v%d, s[28:31], s7 offen sc1' % (v, v + 1))
        else: a('buffer_load_dword v%d, v%d, s[28:31], 0 offen offset:%d sc1' % (v, v + 1, 128 if gate else 0))
        a('s_waitcnt vmcnt(0)')
        a('v_cmp_eq_u32 vcc, %d, v%d' % (1, v))
        a('s_cbranch_vccnz ' + Lok)
        if gate: a('s_sleep 12')
        a('s_sub_u32 s95, s95, 1'); a('s_cbranch_scc0 ' + L)
        a('s_endpgm')
        a(Lok + ':')
    def flag_lane(off_code):
        a(off_code)
        a('v_min_u32 v1, 1, v0'); a('v_lshlrev_b32 v1, 28, v1'); a('v_add_u32 %s, s7, v1' % V(P.vFlagOff))
    def ps_pre(a): flags_ready(a); stamp(a, 1)
    def ps_gate(a): flags_ready(a, gate=opt.get('usegate', 0)); stamp(a, 1)
    xf, wf = opt.get('xf', ''), opt.get('wf', '')
    xa = (8, 's86', 4 * opt.get('ra', 2)) if opt.get('ra', 2) else opt.get('xpf', 1)
    a('s_cmp_ge_u32 s2, 256'); far('scc1', 'Lend')
    srd(a, 20, 'ws'); srd(a, 28, 'dbg')
    a('v_lshrrev_b32 v1, 6, v0')
    a('s_lshr_b32 s6, s2, 3'); a('s_lshr_b32 s86, s2, 5')
    a('v_readfirstlane_b32 s4, v1')
    a('s_getreg_b32 s73, hwreg(HW_REG_XCC_ID, 0, 3)')
    a('s_sub_u32 s88, s73, s2'); a('s_and_b32 s88, s88, 7'); a('s_add_u32 s88, s88, 1')
    if opt.get('norot'): a('s_mov_b32 s88, 1')
    a('s_mov_b32 s95, 0x%x' % SPIN)
    a('s_waitcnt lgkmcnt(0)')
    a('s_cmp_eq_u32 s2, 0'); a('s_cbranch_scc0 Lrole')
    a('v_min_u32 v1, 1, v0'); a('v_lshlrev_b32 v1, 28, v1'); a('v_mov_b32 v2, s88')
    a('buffer_store_dword v2, v1, s[28:31], 0 offen offset:4 sc1')
    a('Lrole:')
    a('s_add_u32 s5, s2, s88'); a('s_sub_u32 s5, s5, 1'); a('s_and_b32 s5, s5, 7')
    a('s_lshl_b32 s5, s5, 2'); a('s_lshr_b32 s5, 0x%x, s5' % ROLE); a('s_and_b32 s5, s5, 7')
    stamp(a, 0)
    if opt.get('tlb', 0):
        a('s_cmp_eq_u32 s4, 3'); a('s_cbranch_scc0 Ltlb')
        a('v_and_b32 v1, 63, v0'); a('v_lshlrev_b32 v1, 21, v1'); a('s_lshl_b32 s7, s6, 14')
        a('buffer_load_dword v254, v1, s[20:23], s7 offen sc1')
        a('Ltlb:')
    if opt.get('cpf', 1):
        a('s_getpc_b64 s[8:9]'); a('Lpc:')
        a('s_lshl_b32 s7, s6, 13'); a('s_cmp_le_u32 s7, Lend - Lpc'); a('s_cselect_b32 s3, s4, 1')
        a('s_cmp_eq_u32 s3, 0'); a('s_cbranch_scc0 Lcpf')
        a('v_lshl_add_u32 v1, v0, 7, s7'); a('v_min_u32 v1, Lend - Lpc, v1')
        a('global_load_dword v255, v1, s[8:9]')
        a('Lcpf:')
    a('s_cmp_eq_u32 s5, 0'); far('scc1', 'Lchain')
    a('s_cmp_eq_u32 s5, 1'); far('scc1', 'Lpb')
    a('s_cmp_lt_u32 s5, 4'); far('scc1', 'Lqa')
    srd(a, 8, 'A_ckv'); srd(a, 12, 'A_wuk'); srd(a, 16, 'A_wuv')
    a('s_sub_u32 s3, s5, 4'); a('s_lshl_b32 s3, s3, 3'); a('s_lshr_b32 s7, s6, 2'); a('s_add_u32 s3, s3, s7')
    a('s_lshl_b32 s32, s3, 8'); a('s_mov_b32 s33, s32')
    a('s_lshl_b32 s34, s3, 14'); a('s_add_u32 s34, s34, 0x%x' % WS_KVA); a('s_add_u32 s35, s34, 8192')
    a('s_mov_b32 s36, 16'); a('s_and_b32 s37, s6, 3')
    flag_lane(['s_lshl_b32 s7, s3, 5', 's_add_u32 s7, s7, s37', 's_lshl_b32 s7, s7, 2', 's_add_u32 s7, s7, 0x%x' % FLAG(FL_PA)])
    a('s_waitcnt lgkmcnt(0)')
    P.pstream(a, 512, 'kv', 16384 * 32, P.default_next(4), xflags=xf, wflags=wf, pre_loop=ps_gate, xpf=xa, flag='end')
    stamp(a, 2)
    probe('zA')
    a('s_mov_b32 s32, s3'); a('s_and_b32 s33, s6, 3'); a('s_sub_u32 s34, 7, s33')
    def att_wait(first):
        def f(a):
            L = a.lab('aw'); Lok = a.lab('awk')
            if first:
                a('s_lshl_b32 s7, s3, 7'); a('s_add_u32 s7, s7, 0x%x' % FLAG(FL_PA))
                a('s_lshr_b32 s94, s3, 1'); a('s_lshl_b32 s94, s94, 7'); a('s_add_u32 s94, s94, 0x%x' % FLAG(FL_QA))
            a('v_min_u32 v10, 16, v1'); a('v_lshlrev_b32 v10, 24, v10')
            a(L + ':')
            a('buffer_load_dwordx4 v[240:243], v10, s[20:23], s94 offen sc1')
            if first: a('buffer_load_dwordx4 v[244:247], v10, s[20:23], s7 offen sc1')
            a('s_waitcnt vmcnt(0)')
            a('v_min3_u32 v240, v240, v241, v242'); a('v_min_u32 v240, v240, v243')
            if first: a('v_lshlrev_b32 v240, 1, v240'); a('v_min3_u32 v240, v240, v244, v245'); a('v_min3_u32 v240, v240, v246, v247')
            a('v_cmp_le_u32 vcc, 16, v240')
            a('s_cbranch_vccnz ' + Lok)
            a('s_sleep 2')
            a('s_sub_u32 s95, s95, 1'); a('s_cbranch_scc0 ' + L)
            a('s_endpgm')
            a(Lok + ':')
        return f
    T.att(a, att_wait(1), att_wait(0), opt, (lambda a, i: stamp(a, i, 8)))
    stamp(a, 5)
    a('s_cmp_ge_u32 s6, 27'); far('scc1', 'Lfin')
    srd(a, 8, 'A_wo')
    a('s_mul_i32 s7, s6, 29'); a('s_lshr_b32 s7, s7, 8'); a('s_mul_i32 s94, s7, 9')
    a('s_sub_u32 %s, s6, s94' % S(O.sCs))
    a('s_mul_i32 %s, s7, 3' % S(O.sRot0))
    a('s_lshl_b32 s7, s7, 2'); a('s_add_u32 s7, s7, s5'); a('s_sub_u32 %s, s7, 4' % S(O.sT0))
    a('s_mov_b32 %s, 12' % S(O.sDT)); a('s_cmp_lt_u32 %s, 4' % S(O.sT0)); a('s_cselect_b32 %s, 6, 5' % S(O.sN))
    a('s_mov_b32 %s, 0x%x' % (S(O.sCtx), WS_CTXA)); a('s_mov_b32 %s, 0' % S(O.sOcol))
    a('s_lshl_b32 %s, s4, 5' % S(O.sFb)); a('s_add_u32 %s, %s, 0x%x' % (S(O.sFb), S(O.sFb), FLAG(FL_AT)))
    a('s_mov_b32 %s, 0' % S(O.sDX))
    a('s_mov_b32 s93, 0x38'); a('s_mov_b32 s92, 7'); a('s_mov_b32 s91, 4'); a('s_mov_b32 s90, 31')
    a('s_branch Los')
    a('Lpb:')
    srd(a, 8, 'B_x'); srd(a, 12, 'B_wk'); srd(a, 16, 'B_wv')
    a('s_lshl_b32 s32, s6, 8'); a('s_mov_b32 s33, s32')
    a('s_lshl_b32 s34, s6, 14'); a('s_add_u32 s34, s34, 0x%x' % WS_KVB); a('s_add_u32 s35, s34, 8192')
    a('s_mov_b32 s36, 64'); a('s_mov_b32 s37, 0')
    a('s_lshl_b32 s52, s6, 12'); a('s_add_u32 s52, s52, 0x%x' % WS_KVM)
    flag_lane(['s_lshl_b32 s7, s6, 7', 's_add_u32 s7, s7, 0x%x' % FLAG(FL_PB)])
    a('s_waitcnt lgkmcnt(0)')
    P.pstream(a, 576, 'kv', 16384 * 32, P.default_next(1), xflags=xf, wflags=wf, pre_loop=ps_pre, xpf=(32, 's6', opt.get('rb', 3)) if opt.get('rb', 3) else opt.get('xpf', 1), soon=opt.get('soon', 1), kscale=1, mark='s52' if opt.get('mk', 0) else None)
    stamp(a, 2)
    a('s_cmp_ge_u32 s6, 25'); far('scc1', 'Lfin')
    a('s_mov_b32 s3, 2')
    a('s_branch Lqb')
    a('Lqa:')
    srd(a, 8, 'A_x'); srd(a, 12, 'A_wq'); srd(a, 16, 'A_wq')
    a('s_lshl_b32 s7, s5, 5'); a('s_add_u32 s7, s7, s6'); a('s_cmp_eq_u32 s7, %d' % (3 * 32 + 31)); a('s_cbranch_scc0 Lqa1')
    rho_check(a, 4)
    for i in range(4): a('v_mov_b32 v%d, 0' % (4 + i))
    a('v_lshlrev_b32 v1, 4, v0')
    for i in range(5):
        a('s_mov_b32 s7, %d' % (WS_FLAGS + 4096 * i))
        a('buffer_store_dwordx4 v[4:7], v1, s[20:23], s7 offen sc1')
    a('v_min_u32 v1, 1, v0'); a('v_lshlrev_b32 v1, 28, v1'); a('v_mov_b32 v2, 1')
    a('s_waitcnt vmcnt(0)'); a('s_barrier')
    a('buffer_store_dword v2, v1, s[28:31], 0 offen sc1')
    a('Lqa1:')
    a('s_sub_u32 s3, s5, 2'); a('s_lshl_b32 s3, s3, 3'); a('s_lshr_b32 s7, s6, 2'); a('s_add_u32 s3, s3, s7')
    a('s_lshl_b32 s32, s3, 9'); a('s_add_u32 s33, s32, 256')
    a('s_lshl_b32 s34, s3, 14'); a('s_add_u32 s34, s34, 0x%x' % WS_QA); a('s_add_u32 s35, s34, 8192')
    a('s_mov_b32 s36, 16'); a('s_and_b32 s37, s6, 3')
    flag_lane(['s_lshl_b32 s7, s3, 5', 's_add_u32 s7, s7, s37', 's_lshl_b32 s7, s7, 2', 's_add_u32 s7, s7, 0x%x' % FLAG(FL_QA)])
    a('s_waitcnt lgkmcnt(0)')
    P.pstream(a, 576, 'qq', 8192 * 32, P.default_next(4), xflags=xf, wflags=wf, pre_loop=lambda a: (flags_ready(a, gate=opt.get('gq', 0)), stamp(a, 1)), xpf=xa)
    stamp(a, 2)
    a('s_sub_u32 s3, s5, 2')
    a('s_add_u32 s7, s6, s3'); a('s_cmp_ge_u32 s7, 30'); far('scc1', 'Lfin')
    probe('zQ')
    a('Lqb:')
    a('s_cmp_ge_u32 s6, 16'); far('scc1', 'Lob')
    srd(a, 8, 'B_x'); srd(a, 12, 'B_wq'); srd(a, 16, 'B_wq')
    a('s_lshl_b32 s32, s6, 9'); a('s_add_u32 s33, s32, 256')
    a('s_sub_u32 s36, 32, s3'); a('s_cmp_eq_u32 s3, 2'); a('s_cselect_b32 s36, 1, s36'); a('s_cselect_b32 s37, 63, s3')
    a('s_lshl_b32 %s, s6, 1' % S(Q.sHm))
    a('s_lshl_b32 s7, s3, 4'); a('s_add_u32 s7, s7, s6'); a('s_and_b32 s94, s7, 3'); a('s_lshr_b32 s7, s7, 2'); a('s_lshl_b32 s7, s7, 5')
    a('s_add_u32 s7, s7, s94'); a('s_lshl_b32 s7, s7, 2'); a('s_add_u32 %s, s7, 0x%x' % (S(Q.sFq), FLAG(FL_QB)))
    a('s_waitcnt lgkmcnt(0)')
    Q.SLP[0] = opt.get('qslp', 2)
    Q.qb(a, P.default_next(2), xflags=xf, wflags=opt.get('wf2', ''), stamp=stamp)
    a('s_branch Lfin')
    a('Lob:')
    srd(a, 8, 'B_wo')
    a('s_sub_u32 %s, s6, 16' % S(O.sCs))
    a('s_mul_i32 s7, s3, 5'); a('s_add_u32 s7, s7, s6'); a('s_sub_u32 s7, s7, 25')
    a('s_sub_u32 %s, 2, s3' % S(O.sT0)); a('s_lshl_b32 %s, 2, s3' % S(O.sDT))
    a('s_cmp_lt_u32 s6, 25')
    a('s_cselect_b32 %s, %s, s7' % (S(O.sCs), S(O.sCs)))
    a('s_cselect_b32 %s, %s, 0' % (S(O.sT0), S(O.sT0))); a('s_cselect_b32 %s, %s, 3' % (S(O.sDT), S(O.sDT))); a('s_cselect_b32 %s, 6, 0' % S(O.sDX))
    a('s_cselect_b32 %s, 0, 4' % S(O.sRot0))
    a('s_cmp_eq_u32 s3, 2')
    a('s_cselect_b32 %s, 63, %s' % (S(O.sT0), S(O.sT0))); a('s_cselect_b32 %s, 1, 21' % S(O.sN))
    a('s_cselect_b32 s90, 31, 1'); a('s_cselect_b32 s91, 10, 9')
    a('s_mov_b32 %s, 0x%x' % (S(O.sCtx), WS_CTXB)); a('s_mov_b32 %s, 1152' % S(O.sOcol))
    a('s_lshl_b32 s7, s4, 7'); a('s_add_u32 %s, s7, 0x%x' % (S(O.sFb), FLAG(FL_QB)))
    a('s_mov_b32 s93, 1'); a('s_mov_b32 s92, 3')
    a('Los:')
    srd(a, 24, 'out')
    a('s_waitcnt lgkmcnt(0)')
    O.ostream(a, lambda d, t: ['s_and_b32 %s, %s, s93' % (S(d), S(t)), 's_lshl_b32 %s, %s, s91' % (S(d), S(d)), 's_add_u32 %s, %s, %s' % (S(d), S(d), S(O.sFb)),
                               's_lshr_b32 %s, %s, s90' % (S(O.sNeed), S(t)), 's_add_u32 %s, %s, 1' % (S(O.sNeed), S(O.sNeed))],
              's92', wflags=opt.get('wf2', ''), stamp=stamp, slp=opt.get('slp', 4), oflags=opt.get('of', ''), D=opt.get('od', 1))
    a('s_branch Lfin')
    a('Lchain:')
    C.chain(a, opt, (rho_load, rho_check), wflags=wf, stamp_once=(lambda a, i: stamp(a, i, 20, 'c')) if diag else None, force_slow=opt.get('slow'))
    if diag == 2: stamp(a, 7, 20, 'c')
    a('Lfin:')
    stamp(a, 7)
    a('Lend:')
    a('s_endpgm')
    a('Lredo:')
    a('s_mov_b32 s88, s89')
    a('s_waitcnt vmcnt(0) lgkmcnt(0)')
    a('s_barrier')
    a('s_branch Lrole')
    head = open(os.path.join(os.path.dirname(os.path.abspath(__file__)), 'header.txt')).read()
    t = head + '; @launch grid=(256,1,1) block=(256,1,1) lds=163840\n' + HEAD + kernel_open(name) + a.text() + RODATA + kernel_desc(name)
    assert hazard.check(t) == 0
    return t
if __name__ == '__main__':
    opt = {}
    for x in (sys.argv[1] if len(sys.argv) > 1 else '').split(','):
        if x:
            k, v = x.split('='); opt[k] = int(v) if v.lstrip('-').isdigit() else v
    print(gen(opt, KNAME + '_kernel'), end='')
```
